```python
import torch

def _softmax(x, axis=-1):
    return torch.softmax(x, dim=axis)
def _gelu(x):
    return torch.nn.functional.gelu(x, approximate="tanh")
def _silu(x):
    return torch.nn.functional.silu(x)
def _sigmoid(x):
    return torch.sigmoid(x)
def _layernorm(x, axis=-1, eps=1e-5):
    m = x.mean(dim=axis, keepdim=True)
    v = x.var(dim=axis, keepdim=True, unbiased=False)
    return (x - m) / torch.sqrt(v + eps)
def _scatter_add(tgt, idx, src, axis=0):
    return tgt.clone().index_add_(axis, idx, src)
def _segment_sum(src, seg, n):
    out = torch.zeros((n,) + src.shape[1:], dtype=src.dtype)
    return out.index_add_(0, seg, src)
def _pad(x, pw):
    flat = tuple(v for pair in reversed(pw) for v in pair)
    return torch.nn.functional.pad(x, flat)

kernel_name = 'interleave_layers__grouped_kv_mqa__sliding_block__prompt'

def setup_inputs():

    _w = (lambda a: (lambda t: t.to(torch.bfloat16) if t.is_floating_point() else t)(torch.as_tensor(a)))
    def _A_setup():
        B, S, D, H = 1, 2048, 448, 16
        Dh = D // H
        return {
            "x": _w((lambda *s: torch.randn(*s, dtype=torch.bfloat16) * 0.05)(B, S, D)),
            "wq": _w((lambda *s: torch.randn(*s, dtype=torch.bfloat16) * 0.05)(D, H * Dh)),
            "wk": _w((lambda *s: torch.randn(*s, dtype=torch.bfloat16) * 0.05)(D, Dh)),
            "wv": _w((lambda *s: torch.randn(*s, dtype=torch.bfloat16) * 0.05)(D, Dh)),
            "wo": _w((lambda *s: torch.randn(*s, dtype=torch.bfloat16) * 0.05)(H * Dh, D)),
        }
    _A_in = _A_setup()

    def _B_setup():
        B, S, D = 1, 2048, 448
        return {
            "x": _w((lambda *s: torch.randn(*s, dtype=torch.bfloat16) * 0.05)(B, S, D)),
            "wqkv": _w((lambda *s: torch.randn(*s, dtype=torch.bfloat16) * 0.05)(D, 3 * D)),
            "wo": _w((lambda *s: torch.randn(*s, dtype=torch.bfloat16) * 0.05)(D, D)),
        }
    _B_in = _B_setup()

    return {
        "A_x": _A_in["x"],
        "A_wq": _A_in["wq"],
        "A_wk": _A_in["wk"],
        "A_wv": _A_in["wv"],
        "A_wo": _A_in["wo"],
        "B_x": _B_in["x"],
        "B_wqkv": _B_in["wqkv"],
        "B_wo": _B_in["wo"],
    }

def reference(A_x, A_wq, A_wk, A_wv, A_wo, B_x, B_wqkv, B_wo):
    def _A_ref(x, wq, wk, wv, wo):
        B, S, D = x.shape
        H = 16
        Dh = D // H
        q = (lambda x, *d: x.permute(*d))((x @ wq).reshape(B, S, H, Dh), 0, 2, 1, 3)
        k = x @ wk
        v = x @ wv
        scores = torch.einsum("bhqd,bkd->bhqk", q, k) * (Dh ** -0.5)
        p = _softmax(scores, axis=-1)
        o = torch.einsum("bhqk,bkd->bhqd", p, v)
        return (lambda x, *d: x.permute(*d))(o, 0, 2, 1, 3).reshape(B, S, H * Dh) @ wo

    def _B_ref(x, wqkv, wo):
        B, S, D = x.shape
        H = 16; Dh = D // H; W = 256
        qkv = (lambda x, *d: x.permute(*d))((x @ wqkv).reshape(B, S, 3, H, Dh), 2, 0, 3, 1, 4)
        q, k, v = qkv[0], qkv[1], qkv[2]
        scores = torch.einsum("bhqd,bhkd->bhqk", q, k) * (Dh ** -0.5)
        idx = torch.arange(S)
        mask = (idx[:, None] - idx[None, :] >= 0) & (idx[:, None] - idx[None, :] < W)
        scores = torch.where(mask[None, None], scores, -1e9)
        p = _softmax(scores, axis=-1)
        o = torch.einsum("bhqk,bhkd->bhqd", p, v)
        return (lambda x, *d: x.permute(*d))(o, 0, 2, 1, 3).reshape(B, S, D) @ wo

    x = A_x
    x = x + _A_ref(_layernorm(x, axis=-1), A_wq, A_wk, A_wv, A_wo)
    x = x + _B_ref(_layernorm(x, axis=-1), B_wqkv, B_wo)
    x = x + _A_ref(_layernorm(x, axis=-1), A_wq, A_wk, A_wv, A_wo)
    x = x + _B_ref(_layernorm(x, axis=-1), B_wqkv, B_wo)
    return x
```

```python
from common import *
class Asm:
    def __init__(self):
        self.lines = []; self.kernels = []; self.launches = []; self.uid = 0
    def e(self, s):
        for ln in s.strip('\n').split('\n'):
            ln = ln.strip()
            if not ln: continue
            if ln.endswith(':') or ln.startswith('.'): self.lines.append(ln)
            else: self.lines.append('    ' + ln)
    def c(self, s): self.lines.append('    ; ' + s)
    def lab(self, base):
        self.uid += 1; return f"L_{base}_{self.uid}"
    def begin(self, name, grid, vgpr, agpr=0, lds=0, block=256, sgpr=96):
        self.e(f".globl {name}\n.p2align 8\n.type {name},@function\n{name}:")
        self.kernels.append((name, vgpr, agpr, sgpr))
        self.launches.append((name, grid, block, lds))
    def relaunch(self, name, grid, lds=0, block=256):
        self.launches.append((name, grid, block, lds))
    def srd(self, d, lo, nbytes):
        self.e(f"s_mov_b32 s{d}, s{lo}\ns_mov_b32 s{d+1}, s{lo+1}\ns_mov_b32 s{d+2}, {nbytes}\ns_mov_b32 s{d+3}, 0x00020000")
    def text(self, header=''):
        out = [header] if header else []
        for (n, g, b, l) in self.launches:
            out.append(f"; @launch kernel={n} grid=({g},1,1) block=({b},1,1) lds={l}")
        out.append('.amdgcn_target "amdgcn-amd-amdhsa--gfx950"\n.text')
        out += self.lines
        out.append('.section .rodata,"a"')
        for (n, v, a, sg) in self.kernels:
            acc = (v + 3) // 4 * 4
            nfv = acc + a if a else v
            out.append(f""".p2align 6
.amdhsa_kernel {n}
  .amdhsa_next_free_vgpr {nfv}
  .amdhsa_next_free_sgpr {sg}
  .amdhsa_accum_offset {acc}
  .amdhsa_group_segment_fixed_size 0
  .amdhsa_kernarg_size 88
  .amdhsa_user_sgpr_count 2
  .amdhsa_user_sgpr_kernarg_segment_ptr 1
  .amdhsa_system_sgpr_workgroup_id_x 1
.end_amdhsa_kernel""")
        return "\n".join(out) + "\n"
```

```python
S, D, H, DH = 2048, 448, 16, 28
NMT = 64
def al(x, a=4096): return (x + a - 1) // a * a
class L: pass
off = 0
def alloc(n):
    global off
    o = off; off = al(off + n); return o
L.WQA = alloc(16 * 28 * 1024)
L.WOA = alloc(14 * 32 * 1024)
L.WOB = alloc(14 * 32 * 1024)
L.WB  = alloc(48 * 28 * 1024)
L.CSA = alloc(16 * 32 * 4)
L.CSB = alloc(48 * 32 * 4)
L.X   = [alloc(NMT * 28 * 1024) for _ in range(4)]
L.ST  = [alloc(NMT * 16 * 256) for _ in range(4)]
L.QA  = [alloc(256 * 8192) for _ in range(2)]
L.KA  = [alloc(64 * 2048) for _ in range(2)]
L.VA  = [alloc(64 * 2048) for _ in range(2)]
L.KNA = [alloc(8 * 64 * 4) for _ in range(2)]
L.OA  = [alloc(NMT * 32 * 1024) for _ in range(2)]
L.QB  = [alloc(16 * 64 * 2048) for _ in range(2)]
L.KB  = [alloc(16 * 64 * 2048) for _ in range(2)]
L.VB  = [alloc(16 * 64 * 2048) for _ in range(2)]
L.KNB = [alloc(16 * 64 * 4) for _ in range(2)]
L.OB  = [alloc(NMT * 32 * 1024) for _ in range(2)]
L.TOTAL = off
def dperm(s, hh, t): return 16 * s + 8 * (t >> 2) + 4 * hh + (t & 3)
if __name__ == '__main__':
    for k, v in vars(L).items():
        if not k.startswith('_'): print(k, v)
```

```python
from asm import *
import math
QS = (28 ** -0.5) * math.log2(math.e)
def fbits(x):
    import struct
    return '0x%08x' % struct.unpack('<I', struct.pack('<f', x))[0]
MF = 'v_mfma_f32_32x32x16_bf16'
def vr(b, n=4): return f"v[{b}:{b+n-1}]"
def ar(b, n=4): return f"a[{b}:{b+n-1}]"

def prologue(a, done):
    a.e(f"""
    s_cmp_ge_u32 s2, 256
    s_cbranch_scc1 {done}
    s_load_dwordx2 s[16:17], s[0:1], 80
    s_load_dwordx2 s[18:19], s[0:1], 64
    v_lshrrev_b32 v4, 6, v0
    v_and_b32 v1, 63, v0
    v_and_b32 v2, 31, v0
    v_readfirstlane_b32 s3, v4
    v_bfe_u32 v3, v0, 5, 1
    v_lshlrev_b32 v1, 4, v1
    s_and_b32 s4, s2, 7
    s_lshl_b32 s4, s4, 1
    s_lshr_b32 s5, s2, 7
    s_add_u32 s4, s4, s5
    s_lshr_b32 s5, s2, 3
    s_and_b32 s5, s5, 15
    s_lshl_b32 s6, s4, 2
    s_add_u32 s6, s6, s3
    s_waitcnt lgkmcnt(0)
    """)
    a.srd(8, 16, L.TOTAL)
    a.srd(12, 18, S * 896)

def load_frags(a, dst_fn, n, sbase, flags='', start=0):
    for k in range(n):
        a.e(f"buffer_load_dwordx4 {dst_fn(start+k)}, v1, s[8:11], s{sbase} offen offset:{(k%4)*1024} {flags}")
        if k % 4 == 3 and k != n - 1: a.e(f"s_add_u32 s{sbase}, s{sbase}, 4096")

def swap_add(a, x, t):
    a.e(f"""
    v_mov_b32 v{t}, v{x}
    s_nop 1
    v_permlane32_swap_b32 v{x}, v{t}
    s_nop 1
    v_add_f32 v{x}, v{x}, v{t}
    """)

def row_max16(a, x):
    for m in ('quad_perm:[1,0,3,2]', 'quad_perm:[2,3,0,1]', 'row_half_mirror', 'row_mirror'):
        a.e(f"s_nop 1\nv_max_f32_dpp v{x}, v{x}, v{x} {m} row_mask:0xf bank_mask:0xf")

def stats_finish(a, st0, mu, rs, t):
    for q in range(1, 7):
        a.e(f"v_add_f32 v{st0}, v{st0}, v{st0+2*q}\nv_add_f32 v{st0+1}, v{st0+1}, v{st0+2*q+1}")
    a.e(f"""
    v_mov_b32 v{t}, v{st0}
    v_mov_b32 v{t+1}, v{st0+1}
    s_nop 1
    v_permlane32_swap_b32 v{st0}, v{t}
    v_permlane32_swap_b32 v{st0+1}, v{t+1}
    s_nop 1
    v_add_f32 v{st0}, v{st0}, v{t}
    v_add_f32 v{st0+1}, v{st0+1}, v{t+1}
    v_mul_f32 v{mu}, {fbits(-1.0/448)}, v{st0}
    v_mul_f32 v{t}, {fbits(1.0/448)}, v{st0+1}
    v_fma_f32 v{t}, -v{mu}, v{mu}, v{t}
    v_max_f32 v{t}, 0, v{t}
    v_add_f32 v{t}, {fbits(1e-5)}, v{t}
    v_rsq_f32 v{rs}, v{t}
    s_nop 0
    """)

def load_stats(a, st0, li_st, vaddr):
    a.e(f"""
    v_mul_u32_u24 v{vaddr}, {7*256}, v3
    v_lshl_add_u32 v{vaddr}, v2, 3, v{vaddr}
    s_lshl_b32 s20, s6, 12
    s_add_u32 s20, s20, {L.ST[li_st]}
    """)
    for q in range(7):
        a.e(f"buffer_load_dwordx2 v[{st0+2*q}:{st0+2*q+1}], v{vaddr}, s[8:11], s20 offen offset:{q*256}")

def load_cs(a, dst, sbase_expr_reg, vaddr):
    a.e(f"v_lshlrev_b32 v{vaddr}, 4, v3")
    for q in range(4):
        a.e(f"buffer_load_dwordx4 {vr(dst+4*q)}, v{vaddr}, s[8:11], s{sbase_expr_reg} offen offset:{q*32}")

def c_pieces(a, c, t, d0, d1):
    a.e(f"""
    v_and_b32 v{t}, 0xffff0000, v{c}
    v_sub_f32 v{t+1}, v{c}, v{t}
    v_and_b32 v{t+2}, 0xffff0000, v{t+1}
    v_sub_f32 v{t+1}, v{t+1}, v{t+2}
    v_lshrrev_b32 v{t}, 16, v{t}
    v_or_b32 v{t}, v{t}, v{t+2}
    v_lshrrev_b32 v{t+1}, 16, v{t+1}
    v_xor_b32 v{d0}, 0x80008000, v{t}
    v_xor_b32 v{d1}, 0x00008000, v{t+1}
    """)

def qkv_a(a, li):
    XF, ACC, CS, STT, MU, RS, T, PK = 16, 128, 144, 160, 174, 175, 176, 184
    a.c(f"==== QKV_A layer-pair {li}")
    a.e(f"""
    s_mul_i32 s20, s5, {28*1024}
    s_add_u32 s20, s20, {L.WQA}
    s_mul_i32 s21, s6, {28*1024}
    s_add_u32 s21, s21, {L.X[2*li]}
    """)
    for k in range(28):
        a.e(f"buffer_load_dwordx4 {ar(4*k)}, v1, s[8:11], s20 offen offset:{(k%4)*1024}")
        a.e(f"buffer_load_dwordx4 {vr(XF+4*k)}, v1, s[8:11], s21 offen offset:{(k%4)*1024}")
        if k % 4 == 3 and k != 27: a.e("s_add_u32 s20, s20, 4096\ns_add_u32 s21, s21, 4096")
    load_stats(a, STT, 2 * li, T)
    a.e(f"s_lshl_b32 s21, s5, 7\ns_add_u32 s21, s21, {L.CSA}")
    load_cs(a, CS, 21, T + 1)
    for k in range(28):
        a.e(f"s_waitcnt vmcnt({min(63, 2*(27-k)+11)})")
        a.e(f"{MF} {vr(ACC,16)}, {ar(4*k)}, {vr(XF+4*k)}, {'0' if k == 0 else vr(ACC,16)}")
    a.e("s_waitcnt vmcnt(4)")
    stats_finish(a, STT, MU, RS, T)
    a.e(f"""
    v_cmp_eq_u32 vcc, 1, v3
    v_mul_f32 v{T}, {fbits(QS)}, v{RS}
    s_waitcnt vmcnt(0)
    v_cndmask_b32 v{T+1}, v{T}, v{RS}, vcc
    """)
    for r in range(16):
        a.e(f"v_fma_f32 v{ACC+r}, v{MU}, v{CS+r}, v{ACC+r}")
    for r in range(16):
        a.e(f"v_mul_f32 v{ACC+r}, v{ACC+r}, v{T if r < 12 else T+1}")
    for q in range(8):
        a.e(f"v_cvt_pk_bf16_f32 v{PK+q}, v{ACC+2*q}, v{ACC+2*q+1}")
    a.c("|q'|^2 from the rounded values (excluding the K/V quad held by the upper half)")
    a.e(f"""
    v_cndmask_b32 v{T+2}, v{PK+6}, 0, vcc
    v_cndmask_b32 v{T+3}, v{PK+7}, 0, vcc
    v_mov_b32 v{T}, 0
    v_mov_b32 v{T+1}, 0
    """)
    for q in range(6):
        a.e(f"v_dot2_f32_bf16 v{T+(q&1)}, v{PK+q}, v{PK+q}, v{T+(q&1)}")
    a.e(f"""
    v_dot2_f32_bf16 v{T}, v{T+2}, v{T+2}, v{T}
    v_dot2_f32_bf16 v{T+1}, v{T+3}, v{T+3}, v{T+1}
    s_nop 3
    v_add_f32 v{T}, v{T}, v{T+1}
    """)
    swap_add(a, T, T + 1)
    QP = 192
    a.e(f"""
    v_mov_b32 v{QP}, v{PK+4}
    v_mov_b32 v{QP+1}, v{PK+5}
    v_cndmask_b32 v{QP+2}, v{PK+6}, v{T}, vcc
    v_cndmask_b32 v{QP+3}, v{PK+7}, 0, vcc
    v_lshrrev_b32 v{T+2}, 3, v2
    v_lshlrev_b32 v{T+2}, 13, v{T+2}
    v_and_b32 v{T+3}, 7, v2
    v_lshl_add_u32 v{T+2}, v{T+3}, 4, v{T+2}
    v_lshl_add_u32 v{T+2}, v3, 9, v{T+2}
    s_lshl_b32 s20, s6, 15
    s_lshr_b32 s21, s5, 2
    s_lshl_b32 s21, s21, 11
    s_add_u32 s20, s20, s21
    s_and_b32 s21, s5, 3
    s_lshl_b32 s21, s21, 7
    s_add_u32 s20, s20, s21
    s_add_u32 s20, s20, {L.QA[li]}
    buffer_store_dwordx4 {vr(PK)}, v{T+2}, s[8:11], s20 offen
    buffer_store_dwordx4 {vr(QP)}, v{T+2}, s[8:11], s20 offen offset:1024
    """)
    lv, ld = a.lab('qa_v'), a.lab('qa_done')
    a.e(f"""
    s_cmp_ge_u32 s5, 14
    s_cbranch_scc1 {ld}
    s_cmp_ge_u32 s5, 7
    s_cbranch_scc1 {lv}
    """)
    a.c("K quad j: 8 bytes per row, from the upper half-wave; partial norm max")
    a.e(f"""
    v_mul_f32 v{T}, v{ACC+12}, v{ACC+12}
    v_fma_f32 v{T}, v{ACC+13}, v{ACC+13}, v{T}
    v_fma_f32 v{T}, v{ACC+14}, v{ACC+14}, v{T}
    v_fma_f32 v{T}, v{ACC+15}, v{ACC+15}, v{T}
    s_lshl_b32 s20, s6, 11
    s_lshr_b32 s21, s5, 2
    s_lshl_b32 s21, s21, 10
    s_add_u32 s20, s20, s21
    s_and_b32 s21, s5, 1
    s_lshl_b32 s21, s21, 9
    s_add_u32 s20, s20, s21
    s_and_b32 s21, s5, 2
    s_lshl_b32 s21, s21, 2
    s_add_u32 s20, s20, s21
    s_add_u32 s20, s20, {L.KA[li]}
    v_lshlrev_b32 v{T+2}, 4, v2
    """)
    row_max16(a, T)
    a.e(f"""
    s_nop 1
    v_readlane_b32 s22, v{T}, 32
    v_readlane_b32 s23, v{T}, 48
    s_lshl_b32 s21, s5, 8
    s_lshl_b32 s24, s6, 2
    s_add_u32 s21, s21, s24
    s_add_u32 s21, s21, {L.KNA[li]}
    s_max_u32 s22, s22, s23
    v_mov_b32 v{T+3}, s22
    v_mov_b32 v{T+4}, 0
    s_mov_b32 exec_lo, 0
    buffer_store_dwordx2 v[{PK+6}:{PK+7}], v{T+2}, s[8:11], s20 offen
    s_mov_b64 exec, 1
    buffer_store_dword v{T+3}, v{T+4}, s[8:11], s21 offen
    s_mov_b64 exec, -1
    s_branch {ld}
{lv}:
    """)
    a.c("V quad: pair rows (2m,2m+1) via DPP, 4-byte stores")
    a.e(f"""
    v_mov_b32_dpp v{T}, v{PK+6} quad_perm:[1,0,3,2] row_mask:0xf bank_mask:0xf
    v_mov_b32_dpp v{T+1}, v{PK+7} quad_perm:[1,0,3,2] row_mask:0xf bank_mask:0xf
    v_and_b32 v{T+2}, 1, v2
    v_cmp_eq_u32 vcc, 0, v{T+2}
    s_mov_b32 s22, 0x05040100
    s_mov_b32 s23, 0x07060302
    v_cndmask_b32 v{T+3}, v{T+1}, v{PK+6}, vcc
    v_cndmask_b32 v{T+4}, v{PK+7}, v{T}, vcc
    v_perm_b32 v{T}, v{T+4}, v{T+3}, s22
    v_perm_b32 v{T+1}, v{T+4}, v{T+3}, s23
    """)
    a.e(f"""
    v_lshrrev_b32 v{T+3}, 4, v2
    v_lshlrev_b32 v{T+3}, 10, v{T+3}
    v_bfe_u32 v{T+4}, v2, 3, 1
    v_lshl_add_u32 v{T+3}, v{T+4}, 3, v{T+3}
    v_bfe_u32 v{T+4}, v2, 2, 1
    v_lshl_add_u32 v{T+3}, v{T+4}, 9, v{T+3}
    v_bfe_u32 v{T+4}, v2, 1, 1
    v_lshl_add_u32 v{T+3}, v{T+4}, 2, v{T+3}
    v_lshl_add_u32 v{T+3}, v{T+2}, 5, v{T+3}
    s_lshl_b32 s20, s6, 11
    s_sub_u32 s21, s5, 7
    s_lshl_b32 s21, s21, 6
    s_add_u32 s20, s20, s21
    s_add_u32 s20, s20, {L.VA[li]}
    s_mov_b32 exec_lo, 0
    buffer_store_dword v{T}, v{T+3}, s[8:11], s20 offen
    buffer_store_dword v{T+1}, v{T+3}, s[8:11], s20 offen offset:16
    s_mov_b64 exec, -1
{ld}:
    """)

THR = 2.0 ** -80
def attn_a(a, li):
    QF, S0, S1, P, O, KV, T = 16, 48, 64, 80, 88, 152, 216
    NB = 4
    SS = [S0, S1]
    a.c(f"==== attention A layer-pair {li}")
    a.e(f"""
    s_lshl_b32 s7, s4, 4
    s_add_u32 s7, s7, s5
    s_lshl_b32 s20, s7, 13
    s_add_u32 s20, s20, {L.QA[li]}
    s_mov_b32 s26, s20
    """)
    load_frags(a, lambda k: vr(QF + 4 * k), 8, 20)
    a.e(f"v_lshrrev_b32 v{T+8}, 2, v1\ns_mov_b32 s21, {L.KNA[li]}")
    for q in range(7):
        a.e(f"buffer_load_dword v{T+q}, v{T+8}, s[8:11], s21 offen offset:{q*256}")
    a.e(f"""
    s_lshl_b32 s22, s3, 15
    s_add_u32 s23, s22, {L.VA[li]}
    s_add_u32 s22, s22, {L.KA[li]}
    """)
    def kv_load(b):
        a.e(f"""
        buffer_load_dwordx4 {vr(KV+16*b)}, v1, s[8:11], s22 offen
        buffer_load_dwordx4 {vr(KV+16*b+4)}, v1, s[8:11], s22 offen offset:1024
        buffer_load_dwordx4 {vr(KV+16*b+8)}, v1, s[8:11], s23 offen
        buffer_load_dwordx4 {vr(KV+16*b+12)}, v1, s[8:11], s23 offen offset:1024
        s_add_u32 s22, s22, 2048
        s_add_u32 s23, s23, 2048
        """)
    for b in range(NB - 1): kv_load(b)
    for r in range(64): a.e(f"v_mov_b32 v{O+r}, 0")
    for r in range(8): a.e(f"v_mov_b32 v{P+r}, 0")
    for r in range(8): a.e(f"v_mov_b32 v{KV+16*(NB-1)+8+r}, 0")
    a.c("stand-in shift c = 1.02*|q'|*Kmax (Cauchy-Schwarz upper bound of the row max); checked at the end, exact fallback")
    a.e(f"s_waitcnt vmcnt({4*(NB-1)})")
    for q in range(1, 7): a.e(f"v_add_f32 v{T}, v{T}, v{T+q}")
    row_max16(a, T)
    a.e(f"""
    s_nop 1
    v_readlane_b32 s24, v{T}, 0
    v_readlane_b32 s25, v{T}, 16
    v_readlane_b32 s27, v{T}, 32
    v_readlane_b32 s28, v{T}, 48
    s_max_u32 s24, s24, s25
    s_max_u32 s27, s27, s28
    s_max_u32 s24, s24, s27
    s_mov_b32 exec_lo, 0
    """)
    for t in range(4):
        q2 = QF + 8 * t + 6
        a.e(f"""
        v_mul_f32 v{T}, s24, v{q2}
        v_sqrt_f32 v{T}, v{T}
        s_nop 0
        v_mul_f32 v{T}, {fbits(1.02)}, v{T}
        """)
        c_pieces(a, T, T + 1, q2, q2 + 1)
    a.e(f"""
    s_mov_b64 exec, -1
    s_waitcnt vmcnt({4*(NB-2)})
    s_nop 1
    {MF} {vr(S0,16)}, {vr(KV)}, {vr(QF)}, 0
    {MF} {vr(S0,16)}, {vr(KV+4)}, {vr(QF+4)}, {vr(S0,16)}
    s_mov_b32 s29, 0
    s_nop 7
    s_nop 3
    """)
    lp = a.lab('aa_loop')
    a.e(f".p2align 6\n{lp}:")
    u = 0
    for b in range(NB):
        for t in range(4):
            sb = SS[u & 1]; sn = SS[(u + 1) & 1]
            kb = KV + 16 * (b if t < 3 else (b + 1) % NB)
            qn = QF + 8 * ((t + 1) % 4)
            vp = KV + 16 * (b if t > 0 else (b - 1) % NB) + 12
            vc = KV + 16 * b + 8
            op = O + 16 * ((t - 1) % 4); oc = O + 16 * t
            def ex(i0):
                for i in range(i0, i0 + 4): a.e(f"v_exp_f32 v{sb+i}, v{sb+i}")
            def cv(j0):
                for jx in (j0, j0 + 1): a.e(f"v_cvt_pk_bf16_f32 v{P+jx}, v{sb+2*jx}, v{sb+2*jx+1}")
            ex(0)
            if t == 3: a.e(f"s_waitcnt vmcnt({4*(NB-2)})")
            a.e(f"{MF} {vr(sn,16)}, {vr(kb)}, {vr(qn)}, 0")
            cv(0); ex(4)
            a.e(f"{MF} {vr(sn,16)}, {vr(kb+4)}, {vr(qn+4)}, {vr(sn,16)}")
            cv(2); ex(8)
            a.e(f"{MF} {vr(op,16)}, {vr(vp)}, {vr(P+4)}, {vr(op,16)}")
            cv(4)
            if t == 0: kv_load((b - 1) % NB)
            ex(12)
            a.e(f"{MF} {vr(oc,16)}, {vr(vc)}, {vr(P)}, {vr(oc,16)}")
            cv(6)
            u += 1
    a.e(f"""
    s_add_u32 s29, s29, 1
    s_cmp_lt_u32 s29, {16//NB}
    s_cbranch_scc1 {lp}
    s_nop 0
    {MF} {vr(O+48,16)}, {vr(KV+16*(NB-1)+12)}, {vr(P+4)}, {vr(O+48,16)}
    s_lshl_b32 s20, s3, 14
    v_add_u32 v{T}, s20, v1
    s_lshl_b32 s20, s3, 12
    v_add_u32 v{T+1}, s20, v1
    """)
    a.c("cross-wave reduction of the partial O^T through LDS")
    for t in range(3):
        for q in range(4): a.e(f"ds_write_b128 v{T}, {vr(O+16*t+4*q)} offset:{t*4096+q*1024}")
    for q in range(4): a.e(f"ds_write_b128 v{T}, {vr(O+48+4*q)} offset:{3*4096+q*1024}")
    a.e("s_waitcnt vmcnt(0) lgkmcnt(0)\ns_barrier")
    R = KV
    for w in range(4):
        for q in range(4): a.e(f"ds_read_b128 {vr(R+16*w+4*q)}, v{T+1} offset:{w*16384+q*1024}")
    a.e("s_waitcnt lgkmcnt(8)")
    for r in range(16): a.e(f"v_add_f32 v{R+r}, v{R+r}, v{R+16+r}")
    a.e("s_waitcnt lgkmcnt(0)")
    for r in range(16): a.e(f"v_add_f32 v{R+32+r}, v{R+32+r}, v{R+48+r}")
    for r in range(16): a.e(f"v_add_f32 v{O+r}, v{R+r}, v{R+32+r}")
    lnorm, lslow = a.lab('aa_norm'), a.lab('aa_slow')
    a.e(f"""
    v_mov_b32 v{T+2}, v{O+12}
    v_mov_b32 v{T+3}, v{O+12}
    s_nop 1
    v_permlane32_swap_b32 v{T+2}, v{T+3}
    s_mov_b32 s20, {fbits(THR)}
    s_nop 0
    v_cmp_gt_f32 vcc, s20, v{T+3}
    s_nop 1
    s_cmp_lg_u64 vcc, 0
    s_cbranch_scc1 {lslow}
{lnorm}:
    v_rcp_f32 v{T+3}, v{T+3}
    v_lshrrev_b32 v{T+4}, 3, v2
    v_lshlrev_b32 v{T+4}, 11, v{T+4}
    v_and_b32 v{T+5}, 7, v2
    v_lshl_add_u32 v{T+4}, v{T+5}, 4, v{T+4}
    v_lshl_add_u32 v{T+4}, v3, 9, v{T+4}
    s_lshr_b32 s20, s7, 2
    s_lshl_b32 s20, s20, 15
    s_lshl_b32 s21, s3, 13
    s_add_u32 s20, s20, s21
    s_and_b32 s21, s7, 3
    s_lshl_b32 s21, s21, 7
    s_add_u32 s20, s20, s21
    s_add_u32 s20, s20, {L.OA[li]}
    """)
    for r in range(16): a.e(f"v_mul_f32 v{O+r}, v{O+r}, v{T+3}")
    for q in range(8): a.e(f"v_cvt_pk_bf16_f32 v{P+q}, v{O+2*q}, v{O+2*q+1}")
    a.e(f"""
    buffer_store_dwordx4 {vr(P)}, v{T+4}, s[8:11], s20 offen
    buffer_store_dwordx4 {vr(P+4)}, v{T+4}, s[8:11], s20 offen offset:1024
    """)
    ldone = a.lab('aa_done')
    a.e(f"s_branch {ldone}\n{lslow}:")
    a.c("exact fallback: this wave redoes its 32 queries over all keys with the true row max")
    l1, l2 = a.lab('aa_s1'), a.lab('aa_s2')
    a.e(f"""
    s_lshl_b32 s20, s3, 11
    s_add_u32 s20, s20, s26
    buffer_load_dwordx4 {vr(QF)}, v1, s[8:11], s20 offen
    buffer_load_dwordx4 {vr(QF+4)}, v1, s[8:11], s20 offen offset:1024
    v_cmp_eq_u32 vcc, 1, v3
    v_mov_b32 v{T}, 0xff800000
    s_mov_b32 s22, {L.KA[li]}
    s_mov_b32 s29, 0
    s_waitcnt vmcnt(0)
    v_cndmask_b32 v{QF+6}, v{QF+6}, 0, vcc
    v_cndmask_b32 v{QF+7}, v{QF+7}, 0, vcc
{l1}:
    buffer_load_dwordx4 {vr(KV)}, v1, s[8:11], s22 offen
    buffer_load_dwordx4 {vr(KV+4)}, v1, s[8:11], s22 offen offset:1024
    s_add_u32 s22, s22, 2048
    s_waitcnt vmcnt(0)
    {MF} {vr(S0,16)}, {vr(KV)}, {vr(QF)}, 0
    {MF} {vr(S0,16)}, {vr(KV+4)}, {vr(QF+4)}, {vr(S0,16)}
    s_nop 15
    """)
    for r in range(0, 16, 2): a.e(f"v_max3_f32 v{T}, v{T}, v{S0+r}, v{S0+r+1}")
    a.e(f"""
    s_add_u32 s29, s29, 1
    s_cmp_lt_u32 s29, 64
    s_cbranch_scc1 {l1}
    v_mov_b32 v{T+1}, v{T}
    s_nop 1
    v_permlane32_swap_b32 v{T}, v{T+1}
    s_nop 1
    v_max_f32 v{T}, v{T}, v{T+1}
    s_mov_b32 exec_lo, 0
    """)
    c_pieces(a, T, T + 1, QF + 6, QF + 7)
    a.e(f"""
    s_mov_b64 exec, -1
    s_mov_b32 s22, {L.KA[li]}
    s_mov_b32 s23, {L.VA[li]}
    s_mov_b32 s29, 0
    """)
    for r in range(16): a.e(f"v_mov_b32 v{O+r}, 0")
    a.e(f"""
{l2}:
    buffer_load_dwordx4 {vr(KV)}, v1, s[8:11], s22 offen
    buffer_load_dwordx4 {vr(KV+4)}, v1, s[8:11], s22 offen offset:1024
    buffer_load_dwordx4 {vr(KV+8)}, v1, s[8:11], s23 offen
    buffer_load_dwordx4 {vr(KV+12)}, v1, s[8:11], s23 offen offset:1024
    s_add_u32 s22, s22, 2048
    s_add_u32 s23, s23, 2048
    s_waitcnt vmcnt(0)
    {MF} {vr(S0,16)}, {vr(KV)}, {vr(QF)}, 0
    {MF} {vr(S0,16)}, {vr(KV+4)}, {vr(QF+4)}, {vr(S0,16)}
    s_nop 15
    """)
    for r in range(16): a.e(f"v_exp_f32 v{S0+r}, v{S0+r}")
    a.e("s_nop 0")
    for q in range(8): a.e(f"v_cvt_pk_bf16_f32 v{P+q}, v{S0+2*q}, v{S0+2*q+1}")
    a.e(f"""
    s_nop 1
    {MF} {vr(O,16)}, {vr(KV+8)}, {vr(P)}, {vr(O,16)}
    {MF} {vr(O,16)}, {vr(KV+12)}, {vr(P+4)}, {vr(O,16)}
    s_add_u32 s29, s29, 1
    s_cmp_lt_u32 s29, 64
    s_cbranch_scc1 {l2}
    s_nop 15
    v_mov_b32 v{T+2}, v{O+12}
    v_mov_b32 v{T+3}, v{O+12}
    s_nop 1
    v_permlane32_swap_b32 v{T+2}, v{T+3}
    s_nop 1
    s_branch {lnorm}
{ldone}:
    """)

def out_proj(a, which, li, done):
    OF, ACC, XR, PK, T = 16, 144, 160, 168, 176
    Osrc = (L.OA if which == 'A' else L.OB)[li]
    W = L.WOA if which == 'A' else L.WOB
    xin = 2 * li + (0 if which == 'A' else 1)
    final = (which == 'B' and li == 1)
    a.c(f"==== out projection {which} layer-pair {li}")
    a.e(f"""
    s_lshl_b32 s6, s4, 2
    s_and_b32 s20, s5, 3
    s_add_u32 s6, s6, s20
    s_lshr_b32 s7, s5, 2
    s_lshl_b32 s7, s7, 2
    s_add_u32 s7, s7, s3
    s_lshl_b32 s20, s6, 15
    s_lshl_b32 s21, s3, 13
    s_add_u32 s20, s20, s21
    s_add_u32 s20, s20, {Osrc}
    v_add_u32 v{T}, s21, v1
    """)
    load_frags(a, lambda k: vr(OF + 4 * k), 8, 20)
    a.e(f"""
    s_min_u32 s22, s7, 13
    s_lshl_b32 s20, s22, 15
    s_add_u32 s20, s20, {W}
    """)
    load_frags(a, lambda k: ar(4 * k), 32, 20)
    a.e(f"""
    s_mul_i32 s20, s6, {28*1024}
    s_lshl_b32 s21, s22, 11
    s_add_u32 s20, s20, s21
    s_add_u32 s21, s20, {L.X[xin]}
    buffer_load_dwordx4 {vr(XR)}, v1, s[8:11], s21 offen
    buffer_load_dwordx4 {vr(XR+4)}, v1, s[8:11], s21 offen offset:1024
    """)
    for k in range(8):
        a.e(f"s_waitcnt vmcnt({34+7-k})\nds_write_b128 v{T}, {vr(OF+4*k)} offset:{k*1024}")
    a.e(f"""
    s_waitcnt lgkmcnt(0)
    s_barrier
    s_cmp_ge_u32 s7, 14
    s_cbranch_scc1 {done}
    """)
    for k in range(32): a.e(f"ds_read_b128 {vr(OF+4*k)}, v1 offset:{k*1024}")
    for k in range(32):
        a.e(f"s_waitcnt vmcnt({31-k+2}) lgkmcnt({min(15, 31-k)})")
        a.e(f"{MF} {vr(ACC,16)}, {ar(4*k)}, {vr(OF+4*k)}, {'0' if k == 0 else vr(ACC,16)}")
    a.e("s_waitcnt vmcnt(0)")
    XU = OF
    for q in range(8):
        a.e(f"v_lshlrev_b32 v{XU+2*q}, 16, v{XR+q}\nv_and_b32 v{XU+2*q+1}, 0xffff0000, v{XR+q}")
    for r in range(16): a.e(f"v_add_f32 v{ACC+r}, v{ACC+r}, v{XU+r}")
    for q in range(8): a.e(f"v_cvt_pk_bf16_f32 v{PK+q}, v{ACC+2*q}, v{ACC+2*q+1}")
    if final:
        a.e(f"""
        s_lshl_b32 s21, s6, 5
        v_add_u32 v{T}, s21, v2
        v_mul_u32_u24 v{T}, 896, v{T}
        v_lshl_add_u32 v{T}, v3, 3, v{T}
        s_lshl_b32 s21, s7, 6
        """)
        for q in range(4):
            a.e(f"buffer_store_dwordx2 v[{PK+2*q}:{PK+2*q+1}], v{T}, s[12:15], s21 offen offset:{16*q}")
    else:
        a.e(f"""
        s_add_u32 s21, s20, {L.X[xin+1]}
        buffer_store_dwordx4 {vr(PK)}, v1, s[8:11], s21 offen
        buffer_store_dwordx4 {vr(PK+4)}, v1, s[8:11], s21 offen offset:1024
        s_mov_b32 s22, 0x3f803f80
        v_mov_b32 v{T}, 0
        v_mov_b32 v{T+1}, 0
        """)
        for q in range(8):
            a.e(f"v_dot2_f32_bf16 v{T}, v{PK+q}, s22, v{T}\nv_dot2_f32_bf16 v{T+1}, v{PK+q}, v{PK+q}, v{T+1}")
        a.e(f"""
        s_nop 3
        v_mov_b32 v{T+2}, v{T}
        v_mov_b32 v{T+3}, v{T+1}
        s_nop 1
        v_permlane32_swap_b32 v{T}, v{T+2}
        v_permlane32_swap_b32 v{T+1}, v{T+3}
        s_nop 1
        v_add_f32 v{T}, v{T}, v{T+2}
        v_add_f32 v{T+1}, v{T+1}, v{T+3}
        v_lshlrev_b32 v{T+2}, 3, v2
        s_lshl_b32 s21, s6, 12
        s_lshl_b32 s22, s7, 8
        s_add_u32 s21, s21, s22
        s_add_u32 s21, s21, {L.ST[xin+1]}
        s_mov_b32 exec_hi, 0
        buffer_store_dwordx2 v[{T}:{T+1}], v{T+2}, s[8:11], s21 offen
        s_mov_b64 exec, -1
        """)

def qkv_b(a, li):
    XF, AQ, AK, AV, WR, CQ, CK, STT, MU, RS, T, PK = 16, 128, 144, 160, 176, 200, 216, 232, 246, 247, 248, 176
    NWR = 6
    a.c(f"==== QKV_B layer-pair {li}")
    a.e(f"""
    s_mul_i32 s20, s5, {84*1024}
    s_mul_i32 s21, s3, {21*1024}
    s_add_u32 s20, s20, s21
    s_add_u32 s20, s20, {L.WB}
    s_mov_b32 m0, s21
    s_nop 0
    """)
    for k in range(21):
        a.e(f"buffer_load_dwordx4 v1, s[8:11], s20 offen offset:{(k%4)*1024} lds")
        if k % 4 == 3:
            a.e("s_add_u32 s20, s20, 4096\ns_add_u32 s21, s21, 4096\ns_mov_b32 m0, s21\ns_nop 0")
    a.e(f"""
    s_mul_i32 s21, s6, {28*1024}
    s_add_u32 s21, s21, {L.X[2*li+1]}
    """)
    load_frags(a, lambda k: vr(XF + 4 * k), 28, 21)
    load_stats(a, STT, 2 * li + 1, T)
    a.e(f"s_mul_i32 s21, s5, 384\ns_add_u32 s21, s21, {L.CSB}")
    load_cs(a, CQ, 21, T + 1)
    a.e(f"""
    s_add_u32 s22, s21, 128
    buffer_load_dwordx4 {vr(CK)}, v{T+1}, s[8:11], s22 offen
    buffer_load_dwordx4 {vr(CK+4)}, v{T+1}, s[8:11], s22 offen offset:32
    buffer_load_dwordx4 {vr(CK+8)}, v{T+1}, s[8:11], s22 offen offset:64
    buffer_load_dwordx4 {vr(CK+12)}, v{T+1}, s[8:11], s22 offen offset:96
    v_lshlrev_b32 v{T+2}, 2, v2
    buffer_load_dword v{T+3}, v{T+2}, s[8:11], s21 offen offset:256
    s_waitcnt vmcnt({28+7+9})
    s_barrier
    """)
    NT = 7 + 9
    a.e(f"v_add_u32 v{T+4}, {56*1024}, v1")
    seq = [(k, p) for k in range(28) for p in range(3)]
    def rd(idx):
        k, p = seq[idx]; o = (p * 28 + k) * 1024
        if o >= 56 * 1024: a.e(f"ds_read_b128 {vr(WR+4*(idx%NWR))}, v{T+4} offset:{o-56*1024}")
        else: a.e(f"ds_read_b128 {vr(WR+4*(idx%NWR))}, v1 offset:{o}")
    for idx in range(NWR - 1): rd(idx)
    for idx, (k, p) in enumerate(seq):
        if idx + NWR - 1 < len(seq): rd(idx + NWR - 1)
        rem = min(NWR - 1, len(seq) - 1 - idx)
        if p == 0: a.e(f"s_waitcnt vmcnt({27-k+NT}) lgkmcnt({rem})")
        else: a.e(f"s_waitcnt lgkmcnt({rem})")
        acc = [AQ, AK, AV][p]; w = vr(WR + 4 * (idx % NWR)); x = vr(XF + 4 * k)
        cc = '0' if k == 0 else vr(acc, 16)
        if p < 2: a.e(f"{MF} {vr(acc,16)}, {w}, {x}, {cc}")
        else: a.e(f"{MF} {vr(acc,16)}, {x}, {w}, {cc}")
    a.e("s_waitcnt vmcnt(9)")
    stats_finish(a, STT, MU, RS, T + 5)
    a.c("row stats to LDS (wave private) for the V orientation")
    LST = 84 * 1024
    a.e(f"""
    v_mul_f32 v{T+5}, v{MU}, v{RS}
    s_lshl_b32 s20, s3, 8
    s_add_u32 s20, s20, {LST}
    v_lshl_add_u32 v{T+6}, v2, 2, s20
    v_lshl_add_u32 v{T+7}, v3, 4, s20
    ds_write_b32 v{T+6}, v{RS}
    ds_write_b32 v{T+6}, v{T+5} offset:128
    v_mul_f32 v{T+5}, {fbits(QS)}, v{RS}
    s_waitcnt vmcnt(0) lgkmcnt(0)
    """)
    RR = STT - 0
    RSr, MRr = XF, XF + 16
    for q in range(4):
        a.e(f"ds_read_b128 {vr(RSr+4*q)}, v{T+7} offset:{q*32}\nds_read_b128 {vr(MRr+4*q)}, v{T+7} offset:{128+q*32}")
    for r in range(16): a.e(f"v_fma_f32 v{AQ+r}, v{MU}, v{CQ+r}, v{AQ+r}")
    for r in range(16): a.e(f"v_fma_f32 v{AK+r}, v{MU}, v{CK+r}, v{AK+r}")
    for r in range(16): a.e(f"v_mul_f32 v{AQ+r}, v{AQ+r}, v{T+5}")
    for r in range(16): a.e(f"v_mul_f32 v{AK+r}, v{AK+r}, v{RS}")
    PQ, PKK, PV = XF + 32, XF + 40, XF + 48
    for q in range(8): a.e(f"v_cvt_pk_bf16_f32 v{PQ+q}, v{AQ+2*q}, v{AQ+2*q+1}")
    for q in range(8): a.e(f"v_cvt_pk_bf16_f32 v{PKK+q}, v{AK+2*q}, v{AK+2*q+1}")
    a.e("s_waitcnt lgkmcnt(0)")
    for r in range(16): a.e(f"v_mul_f32 v{AV+r}, v{AV+r}, v{RSr+r}")
    for r in range(16): a.e(f"v_fma_f32 v{AV+r}, v{T+3}, v{MRr+r}, v{AV+r}")
    for q in range(8): a.e(f"v_cvt_pk_bf16_f32 v{PV+q}, v{AV+2*q}, v{AV+2*q+1}")
    a.c("norms")
    a.e(f"v_mov_b32 v{T}, 0\nv_mov_b32 v{T+1}, 0")
    for q in range(8):
        a.e(f"v_dot2_f32_bf16 v{T}, v{PQ+q}, v{PQ+q}, v{T}\nv_dot2_f32_bf16 v{T+1}, v{PKK+q}, v{PKK+q}, v{T+1}")
    a.e(f"""
    v_cmp_eq_u32 vcc, 1, v3
    v_cmp_eq_u32 s[24:25], 28, v2
    s_mov_b32 s22, 0x3f803f80
    s_nop 1
    v_mov_b32 v{T+2}, v{T}
    v_mov_b32 v{T+3}, v{T+1}
    v_mov_b32 v{T+4}, s22
    s_nop 0
    v_permlane32_swap_b32 v{T}, v{T+2}
    v_permlane32_swap_b32 v{T+1}, v{T+3}
    s_nop 1
    v_add_f32 v{T}, v{T}, v{T+2}
    v_add_f32 v{T+1}, v{T+1}, v{T+3}
    v_mov_b32 v{T+5}, 0x00003f80
    v_cndmask_b32 v{PQ+6}, v{PQ+6}, v{T}, vcc
    v_cndmask_b32 v{PKK+6}, v{PKK+6}, v{T+4}, vcc
    v_cndmask_b32 v{PKK+7}, v{PKK+7}, v{T+5}, vcc
    """)
    for q in range(8): a.e(f"v_cndmask_b32 v{PV+q}, v{PV+q}, v{T+4}, s[24:25]")
    row_max16(a, T + 1)
    a.e(f"""
    s_lshl_b32 s20, s5, 17
    s_lshl_b32 s21, s6, 11
    s_add_u32 s20, s20, s21
    s_add_u32 s21, s20, {L.KB[li]}
    s_add_u32 s22, s20, {L.VB[li]}
    s_add_u32 s20, s20, {L.QB[li]}
    v_readlane_b32 s24, v{T+1}, 0
    v_readlane_b32 s25, v{T+1}, 16
    buffer_store_dwordx4 {vr(PKK)}, v1, s[8:11], s21 offen
    buffer_store_dwordx4 {vr(PKK+4)}, v1, s[8:11], s21 offen offset:1024
    buffer_store_dwordx4 {vr(PV)}, v1, s[8:11], s22 offen
    buffer_store_dwordx4 {vr(PV+4)}, v1, s[8:11], s22 offen offset:1024
    buffer_store_dwordx4 {vr(PQ)}, v1, s[8:11], s20 offen
    buffer_store_dwordx4 {vr(PQ+4)}, v1, s[8:11], s20 offen offset:1024
    s_max_u32 s24, s24, s25
    s_lshl_b32 s20, s5, 8
    s_lshl_b32 s21, s6, 2
    s_add_u32 s20, s20, s21
    s_add_u32 s20, s20, {L.KNB[li]}
    v_mov_b32 v{T}, s24
    v_mov_b32 v{T+2}, 0
    s_mov_b64 exec, 1
    buffer_store_dword v{T}, v{T+2}, s[8:11], s20 offen
    s_mov_b64 exec, -1
    """)

def attn_b(a, li):
    QF, S0, S1, P, O, MHI, MLO, KV, T = 16, 24, 40, 56, 64, 80, 96, 112, 256 - 0
    T = 4
    SS = [S0, S1]
    NEG = fbits(-1e30)
    a.c(f"==== attention B layer-pair {li}")
    a.e(f"""
    s_lshl_b32 s20, s5, 17
    s_lshl_b32 s21, s6, 11
    s_add_u32 s21, s21, s20
    s_add_u32 s21, s21, {L.QB[li]}
    buffer_load_dwordx4 {vr(QF)}, v1, s[8:11], s21 offen
    buffer_load_dwordx4 {vr(QF+4)}, v1, s[8:11], s21 offen offset:1024
    v_mov_b32 v{T}, s6
    v_sub_u32 v{T}, v{T}, v2
    v_max_i32 v{T}, 0, v{T}
    v_lshlrev_b32 v{T}, 2, v{T}
    s_lshl_b32 s21, s5, 8
    s_add_u32 s21, s21, {L.KNB[li]}
    buffer_load_dword v{T+1}, v{T}, s[8:11], s21 offen
    """)
    for k in range(9):
        a.e(f"""
        s_sub_i32 s21, s6, {k}
        s_max_i32 s21, s21, 0
        s_lshl_b32 s21, s21, 11
        s_add_u32 s21, s21, s20
        s_add_u32 s22, s21, {L.VB[li]}
        s_add_u32 s21, s21, {L.KB[li]}
        buffer_load_dwordx4 {vr(KV+16*k)}, v1, s[8:11], s21 offen
        buffer_load_dwordx4 {vr(KV+16*k+4)}, v1, s[8:11], s21 offen offset:1024
        buffer_load_dwordx4 {vr(KV+16*k+8)}, v1, s[8:11], s22 offen
        buffer_load_dwordx4 {vr(KV+16*k+12)}, v1, s[8:11], s22 offen offset:1024
        """)
    a.c("mask tiles used as MFMA C operand")
    a.e(f"v_lshlrev_b32 v{T+2}, 2, v3\nv_sub_u32 v{T+2}, v2, v{T+2}\nv_mov_b32 v{T+3}, {NEG}")
    for r in range(16):
        ar_ = (r & 3) + 8 * (r >> 2)
        a.e(f"""
        v_cmp_le_i32 vcc, {ar_}, v{T+2}
        s_nop 1
        v_cndmask_b32 v{MHI+r}, v{T+3}, 0, vcc
        v_cndmask_b32 v{MLO+r}, 0, v{T+3}, vcc
        """)
    a.e(f"""
    s_min_u32 s7, s6, 8
    v_cmp_gt_u32 vcc, 9, v2
    s_waitcnt vmcnt(36)
    v_cndmask_b32 v{T+1}, 0, v{T+1}, vcc
    """)
    row_max16(a, T + 1)
    a.e(f"""
    s_nop 1
    v_readlane_b32 s24, v{T+1}, 0
    s_mov_b32 exec_lo, 0
    s_nop 1
    v_mul_f32 v{T}, s24, v{QF+6}
    v_sqrt_f32 v{T}, v{T}
    s_nop 0
    v_mul_f32 v{T}, {fbits(1.02)}, v{T}
    """)
    c_pieces(a, T, T + 1, QF + 6, QF + 7)
    a.e("s_mov_b64 exec, -1\ns_mov_b32 s29, 0")
    lmain, lfin, lslow, lnorm, ldone = a.lab('ab_main'), a.lab('ab_fin'), a.lab('ab_slow'), a.lab('ab_norm'), a.lab('ab_done')
    a.e(f"{lmain}:")
    for r in range(16): a.e(f"v_mov_b32 v{O+r}, 0")
    def cmask(k): return vr(MHI, 16) if k == 0 else (vr(MLO, 16) if k == 8 else '0')
    a.e(f"""
    s_waitcnt vmcnt(32)
    {MF} {vr(S0,16)}, {vr(KV)}, {vr(QF)}, {cmask(0)}
    {MF} {vr(S0,16)}, {vr(KV+4)}, {vr(QF+4)}, {vr(S0,16)}
    s_nop 7
    s_nop 3
    """)
    stubs = []
    for k in range(9):
        sb = SS[k & 1]; sn = SS[(k + 1) & 1]
        def ex(i0):
            for i in range(i0, i0 + 4): a.e(f"v_exp_f32 v{sb+i}, v{sb+i}")
        def cv(j0):
            for jx in (j0, j0 + 1): a.e(f"v_cvt_pk_bf16_f32 v{P+jx}, v{sb+2*jx}, v{sb+2*jx+1}")
        ex(0)
        if k < 8:
            a.e(f"s_waitcnt vmcnt({4*(7-k)})")
            a.e(f"{MF} {vr(sn,16)}, {vr(KV+16*(k+1))}, {vr(QF)}, {cmask(k+1)}")
        cv(0); ex(4)
        if k < 8: a.e(f"{MF} {vr(sn,16)}, {vr(KV+16*(k+1)+4)}, {vr(QF+4)}, {vr(sn,16)}")
        cv(2); ex(8)
        if k > 0: a.e(f"{MF} {vr(O,16)}, {vr(KV+16*(k-1)+12)}, {vr(P+4)}, {vr(O,16)}")
        cv(4); ex(12)
        a.e(f"{MF} {vr(O,16)}, {vr(KV+16*k+8)}, {vr(P)}, {vr(O,16)}")
        cv(6)
        if k < 8:
            st = a.lab('ab_x'); stubs.append((st, k))
            a.e(f"s_cmp_eq_u32 s7, {k}\ns_cbranch_scc1 {st}")
        else:
            a.e(f"s_nop 1\n{MF} {vr(O,16)}, {vr(KV+16*k+12)}, {vr(P+4)}, {vr(O,16)}")
    a.e(f"""
{lfin}:
    s_nop 15
    v_mov_b32 v{T+2}, v{O+12}
    v_mov_b32 v{T+3}, v{O+12}
    s_nop 1
    v_permlane32_swap_b32 v{T+2}, v{T+3}
    s_mov_b32 s20, {fbits(THR)}
    s_nop 0
    v_cmp_gt_f32 vcc, s20, v{T+3}
    s_nop 1
    s_cmp_eq_u64 vcc, 0
    s_cbranch_scc1 {lnorm}
    s_cmp_eq_u32 s29, 0
    s_cbranch_scc1 {lslow}
{lnorm}:
    v_rcp_f32 v{T+3}, v{T+3}
    s_lshl_b32 s20, s6, 15
    s_lshl_b32 s21, s5, 11
    s_add_u32 s20, s20, s21
    s_add_u32 s20, s20, {L.OB[li]}
    """)
    for r in range(16): a.e(f"v_mul_f32 v{O+r}, v{O+r}, v{T+3}")
    for q in range(8): a.e(f"v_cvt_pk_bf16_f32 v{P+q}, v{O+2*q}, v{O+2*q+1}")
    a.e(f"""
    buffer_store_dwordx4 {vr(P)}, v1, s[8:11], s20 offen
    buffer_store_dwordx4 {vr(P+4)}, v1, s[8:11], s20 offen offset:1024
    s_branch {ldone}
    """)
    for st, k in stubs:
        a.e(f"{st}:\n{MF} {vr(O,16)}, {vr(KV+16*k+12)}, {vr(P+4)}, {vr(O,16)}\ns_branch {lfin}")
    a.c("exact fallback: true (masked) row max, then rerun")
    lsm = a.lab('ab_sm')
    a.e(f"""
{lslow}:
    s_waitcnt vmcnt(0)
    v_cmp_eq_u32 vcc, 1, v3
    v_mov_b32 v{T}, 0xff800000
    s_mov_b32 s29, 1
    v_cndmask_b32 v{QF+6}, v{QF+6}, 0, vcc
    v_cndmask_b32 v{QF+7}, v{QF+7}, 0, vcc
    s_nop 1
    """)
    for k in range(9):
        a.e(f"""
        {MF} {vr(S0,16)}, {vr(KV+16*k)}, {vr(QF)}, {cmask(k)}
        {MF} {vr(S0,16)}, {vr(KV+16*k+4)}, {vr(QF+4)}, {vr(S0,16)}
        s_nop 15
        """)
        for r in range(0, 16, 2): a.e(f"v_max3_f32 v{T}, v{T}, v{S0+r}, v{S0+r+1}")
        if k < 8: a.e(f"s_cmp_eq_u32 s7, {k}\ns_cbranch_scc1 {lsm}")
    a.e(f"""
{lsm}:
    v_mov_b32 v{T+1}, v{T}
    s_nop 1
    v_permlane32_swap_b32 v{T}, v{T+1}
    s_nop 1
    v_max_f32 v{T}, v{T}, v{T+1}
    s_mov_b32 exec_lo, 0
    """)
    c_pieces(a, T, T + 1, QF + 6, QF + 7)
    a.e(f"s_mov_b64 exec, -1\ns_branch {lmain}\n{ldone}:")
```

```python
from asm import *
NPREP = 832
def gen_prep(a):
    a.begin('prep_kernel', NPREP, vgpr=48, lds=2048, sgpr=64)
    a.e(f"""
    s_cmp_ge_u32 s2, {NPREP}
    s_cbranch_scc1 P_done
    s_load_dwordx16 s[16:31], s[0:1], 0
    s_load_dwordx2 s[32:33], s[0:1], 80
    v_and_b32 v1, 63, v0
    v_lshrrev_b32 v4, 6, v0
    v_and_b32 v2, 31, v0
    v_bfe_u32 v3, v0, 5, 1
    v_readfirstlane_b32 s3, v4
    v_lshlrev_b32 v5, 4, v1
    v_mov_b32 v8, 0
    v_mov_b32 v9, 0
    v_mov_b32 v16, 0
    v_mov_b32 v17, 0
    v_mov_b32 v18, 0
    v_mov_b32 v19, 0
    v_mov_b32 v20, 0
    v_mov_b32 v21, 0
    v_mov_b32 v22, 0
    v_mov_b32 v23, 0
    s_lshl_b32 s4, s2, 2
    s_add_u32 s4, s4, s3
    s_waitcnt lgkmcnt(0)
    """)
    a.srd(8, 32, L.TOTAL)
    a.e("""
    s_cmp_ge_u32 s2, 800
    s_cbranch_scc1 P_pads
    s_cmp_ge_u32 s2, 736
    s_cbranch_scc1 P_x0
    s_cmp_ge_u32 s2, 672
    s_cbranch_scc1 P_cs
    s_cmp_ge_u32 s2, 336
    s_cbranch_scc1 P_wb
    """)
    for t in range(8): a.e(f"s_mov_b32 s{40+t}, {(8*(t>>2)+(t&3))*896}")
    a.e("""
    s_cmp_ge_u32 s2, 112
    s_cbranch_scc1 P_wo
    """)
    def gather(srd, voff, use_s=True, ld=56):
        for t in range(8):
            op = 'buffer_load_ushort'
            if use_s: a.e(f"{op} v{16+t}, v{voff}, s[{srd}:{srd+3}], s{40+t} offen")
            else: a.e(f"{op} v{16+t}, v{voff}, s[{srd}:{srd+3}], 0 offen offset:{(8*(t>>2)+(t&3))*ld}")
    PACK = "\n".join(f"v_lshl_or_b32 v{8+q}, v{17+2*q}, 16, v{16+2*q}" for q in range(4))
    a.c("WQA fragments: task=s4 -> j=s5, ks=s6")
    a.e("""
    s_mul_i32 s5, s4, 2341
    s_lshr_b32 s5, s5, 16
    s_mul_i32 s6, s5, 28
    s_sub_u32 s6, s4, s6
    """)
    a.srd(12, 18, 448 * 896)
    a.e(f"""
    s_lshl_b32 s7, s6, 4
    v_lshl_add_u32 v6, v3, 2, s7
    s_mul_i32 s34, s5, 56
    v_mul_u32_u24 v7, 896, v6
    v_lshl_add_u32 v7, v2, 1, v7
    v_add_u32 v7, s34, v7
    v_cmp_gt_u32 vcc, 28, v2
    s_and_saveexec_b64 s[36:37], vcc
    """)
    gather(12, 7)
    a.e(f"""
    s_andn2_b64 exec, s[36:37], exec
    s_cmp_ge_u32 s5, 14
    s_cbranch_scc1 P_wqa_st
    s_cmp_ge_u32 s5, 7
    s_cbranch_scc1 P_wqa_v
    s_mov_b32 s12, s20
    s_mov_b32 s13, s21
    s_lshl_b32 s34, s5, 3
    s_branch P_wqa_kv
P_wqa_v:
    s_mov_b32 s12, s22
    s_mov_b32 s13, s23
    s_sub_u32 s34, s5, 7
    s_lshl_b32 s34, s34, 3
P_wqa_kv:
    s_mov_b32 s14, {448*56}
    s_mov_b32 s15, 0x00020000
    s_sub_u32 s34, s34, 56
    v_mul_u32_u24 v7, 56, v6
    v_lshl_add_u32 v7, v2, 1, v7
    v_add_u32 v7, s34, v7
    """)
    gather(12, 7, use_s=False)
    a.e(f"""
P_wqa_st:
    s_mov_b64 exec, s[36:37]
    s_lshl_b32 s34, s4, 10
    s_add_u32 s34, s34, {L.WQA}
    s_waitcnt vmcnt(0)
    {PACK}
    buffer_store_dwordx4 v[8:11], v5, s[8:11], s34 offen
    s_endpgm
    """)
    a.e(f"""
P_wo:
    s_sub_u32 s4, s4, 448
    s_cmp_ge_u32 s2, 224
    s_cbranch_scc1 P_wob
    s_mov_b32 s12, s24
    s_mov_b32 s13, s25
    s_mov_b32 s35, {L.WOA}
    s_branch P_wo2
P_wob:
    s_sub_u32 s4, s4, 448
    s_mov_b32 s12, s30
    s_mov_b32 s13, s31
    s_mov_b32 s35, {L.WOB}
P_wo2:
    s_mov_b32 s14, {448*896}
    s_mov_b32 s15, 0x00020000
    s_lshr_b32 s5, s4, 5
    s_and_b32 s6, s4, 31
    s_lshr_b32 s7, s6, 1
    s_mul_i32 s7, s7, 28
    s_and_b32 s34, s6, 1
    s_lshl_b32 s38, s34, 4
    s_add_u32 s7, s7, s38
    v_lshl_add_u32 v6, v3, 2, s7
    v_mul_u32_u24 v7, 896, v6
    v_lshl_add_u32 v7, v2, 1, v7
    s_lshl_b32 s38, s5, 6
    v_add_u32 v7, s38, v7
    """)
    gather(12, 7)
    a.e(f"""
    v_and_b32 v6, s34, v3
    v_cmp_eq_u32 vcc, 0, v6
    s_lshl_b32 s34, s4, 10
    s_add_u32 s34, s34, s35
    s_waitcnt vmcnt(0)
    {PACK}
    v_cndmask_b32 v10, 0, v10, vcc
    v_cndmask_b32 v11, 0, v11, vcc
    buffer_store_dwordx4 v[8:11], v5, s[8:11], s34 offen
    s_endpgm
    """)
    a.e("P_wb:")
    for t in range(8): a.e(f"s_mov_b32 s{40+t}, {(8*(t>>2)+(t&3))*2688}")
    a.srd(12, 28, 448 * 2688)
    a.e(f"""
    s_sub_u32 s4, s4, 1344
    s_mul_i32 s5, s4, 2341
    s_lshr_b32 s5, s5, 16
    s_mul_i32 s6, s5, 28
    s_sub_u32 s6, s4, s6
    s_mul_i32 s7, s5, 21846
    s_lshr_b32 s7, s7, 16
    s_mul_i32 s34, s7, 3
    s_sub_u32 s34, s5, s34
    s_mul_i32 s34, s34, 896
    s_mul_i32 s7, s7, 56
    s_add_u32 s34, s34, s7
    s_lshl_b32 s7, s6, 4
    v_lshl_add_u32 v6, v3, 2, s7
    v_mul_u32_u24 v7, 2688, v6
    v_lshl_add_u32 v7, v2, 1, v7
    v_add_u32 v7, s34, v7
    v_cmp_gt_u32 vcc, 28, v2
    s_and_saveexec_b64 s[36:37], vcc
    """)
    gather(12, 7)
    a.e(f"""
    s_mov_b64 exec, s[36:37]
    s_lshl_b32 s34, s4, 10
    s_add_u32 s34, s34, {L.WB}
    s_waitcnt vmcnt(0)
    {PACK}
    buffer_store_dwordx4 v[8:11], v5, s[8:11], s34 offen
    s_endpgm
    """)
    a.e(f"""
P_cs:
    s_sub_u32 s5, s2, 672
    v_and_b32 v2, 15, v0
    v_lshrrev_b32 v3, 4, v0
    v_mul_u32_u24 v3, 28, v3
    """)
    for t in range(28): a.e(f"v_mov_b32 v{16+t}, 0")
    a.e(f"""
    s_cmp_ge_u32 s5, 16
    s_cbranch_scc1 P_cs_b
    """)
    a.srd(12, 18, 448 * 896)
    a.e(f"""
    s_mul_i32 s34, s5, 56
    v_mul_u32_u24 v7, 896, v3
    v_lshl_add_u32 v7, v2, 2, v7
    v_add_u32 v7, s34, v7
    s_mov_b32 s38, 0
    v_cmp_gt_u32 vcc, 14, v2
    s_and_saveexec_b64 s[36:37], vcc
    """)
    for t in range(28):
        a.e(f"buffer_load_dword v{16+t}, v7, s[12:15], s38 offen offset:{(t%4)*896}")
        if t % 4 == 3: a.e("s_add_u32 s38, s38, 3584")
    a.e(f"""
    s_andn2_b64 exec, s[36:37], exec
    s_lshl_b32 s35, s5, 7
    s_add_u32 s35, s35, {L.CSA}
    s_cmp_ge_u32 s5, 14
    s_cbranch_scc1 P_cs_red
    s_cmp_ge_u32 s5, 7
    s_cbranch_scc1 P_cs_v
    s_mov_b32 s12, s20
    s_mov_b32 s13, s21
    s_lshl_b32 s34, s5, 3
    s_branch P_cs_kv
P_cs_v:
    s_mov_b32 s12, s22
    s_mov_b32 s13, s23
    s_sub_u32 s34, s5, 7
    s_lshl_b32 s34, s34, 3
P_cs_kv:
    s_mov_b32 s14, {448*56}
    s_mov_b32 s15, 0x00020000
    s_sub_u32 s34, s34, 56
    v_mul_u32_u24 v7, 56, v3
    v_lshl_add_u32 v7, v2, 2, v7
    v_add_u32 v7, s34, v7
    """)
    for t in range(28):
        a.e(f"buffer_load_dword v{16+t}, v7, s[12:15], 0 offen offset:{t*56}")
    a.e(f"""
    s_branch P_cs_red
P_cs_b:
    s_sub_u32 s5, s5, 16
    """)
    a.srd(12, 28, 448 * 2688)
    a.e(f"""
    s_mul_i32 s7, s5, 21846
    s_lshr_b32 s7, s7, 16
    s_mul_i32 s34, s7, 3
    s_sub_u32 s34, s5, s34
    s_mul_i32 s34, s34, 896
    s_mul_i32 s7, s7, 56
    s_add_u32 s34, s34, s7
    s_mov_b32 s7, 2688
    v_mul_lo_u32 v7, s7, v3
    v_lshl_add_u32 v7, v2, 2, v7
    v_add_u32 v7, s34, v7
    s_lshl_b32 s35, s5, 7
    s_add_u32 s35, s35, {L.CSB}
    s_mov_b32 s38, 0
    v_cmp_gt_u32 vcc, 14, v2
    s_and_saveexec_b64 s[36:37], vcc
    """)
    for t in range(28):
        a.e(f"buffer_load_dword v{16+t}, v7, s[12:15], s38 offen offset:{(t%2)*2688}")
        if t % 2 == 1: a.e("s_add_u32 s38, s38, 5376")
    a.e(f"""
P_cs_red:
    s_mov_b64 exec, s[36:37]
    v_mov_b32 v8, 0
    v_mov_b32 v9, 0
    s_waitcnt vmcnt(0)
    """)
    for t in range(28):
        a.e(f"""
        v_lshlrev_b32 v10, 16, v{16+t}
        v_and_b32 v11, 0xffff0000, v{16+t}
        v_add_f32 v8, v8, v10
        v_add_f32 v9, v9, v11
        """)
    a.e(f"""
    v_lshlrev_b32 v6, 3, v0
    ds_write_b64 v6, v[8:9]
    s_waitcnt lgkmcnt(0)
    s_barrier
    v_cmp_gt_u32 vcc, 32, v0
    s_and_saveexec_b64 s[36:37], vcc
    s_cbranch_execz P_done
    v_lshlrev_b32 v6, 2, v0
    """)
    for t in range(16): a.e(f"ds_read_b32 v{16+t}, v6 offset:{t*128}")
    a.e("s_waitcnt lgkmcnt(0)")
    for t in range(1, 16): a.e(f"v_add_f32 v16, v16, v{16+t}")
    a.e(f"""
    buffer_store_dword v16, v6, s[8:11], s35 offen
    s_endpgm
    """)
    a.e(f"""
P_x0:
    s_sub_u32 s5, s2, 736
    """)
    a.srd(12, 16, S * 896)
    a.e(f"""
    s_lshl_b32 s6, s5, 5
    v_add_u32 v6, s6, v2
    v_mul_u32_u24 v7, 896, v6
    v_lshl_add_u32 v7, v3, 3, v7
    s_mul_i32 s7, s3, 224
    """)
    for q in range(7):
        a.e(f"buffer_load_dwordx2 v[{16+4*q}:{17+4*q}], v7, s[12:15], s7 offen offset:{32*q}")
        a.e(f"buffer_load_dwordx2 v[{18+4*q}:{19+4*q}], v7, s[12:15], s7 offen offset:{32*q+16}")
    a.e(f"""
    s_mul_i32 s34, s5, {28*1024}
    s_mul_i32 s35, s3, {7*1024}
    s_add_u32 s34, s34, s35
    s_add_u32 s34, s34, {L.X[0]}
    s_add_u32 s35, s34, 4096
    s_mov_b32 s38, 0x3f803f80
    s_waitcnt vmcnt(0)
    """)
    for q in range(7):
        so = 's34' if q < 4 else 's35'
        a.e(f"buffer_store_dwordx4 v[{16+4*q}:{19+4*q}], v5, s[8:11], {so} offen offset:{(q%4)*1024}")
    for r in range(28):
        a.e(f"v_dot2_f32_bf16 v8, v{16+r}, s38, v8\nv_dot2_f32_bf16 v9, v{16+r}, v{16+r}, v9")
    a.e(f"""
    s_nop 3
    v_mov_b32 v10, v8
    v_mov_b32 v11, v9
    s_nop 1
    v_permlane32_swap_b32 v8, v10
    v_permlane32_swap_b32 v9, v11
    s_nop 1
    v_add_f32 v8, v8, v10
    v_add_f32 v9, v9, v11
    v_cmp_eq_u32 vcc, 0, v3
    v_lshlrev_b32 v6, 3, v2
    v_lshl_add_u32 v6, v3, 10, v6
    v_cndmask_b32 v8, 0, v8, vcc
    v_cndmask_b32 v9, 0, v9, vcc
    v_mov_b32 v10, 0
    v_mov_b32 v11, 0
    s_lshl_b32 s34, s5, 12
    s_lshl_b32 s35, s3, 8
    s_add_u32 s34, s34, s35
    s_add_u32 s34, s34, {L.ST[0]}
    buffer_store_dwordx2 v[8:9], v6, s[8:11], s34 offen
    buffer_store_dwordx2 v[10:11], v6, s[8:11], s34 offen offset:2048
    s_endpgm
    """)
    a.e(f"""
P_pads:
    s_sub_u32 s4, s4, 3200
    s_lshr_b32 s5, s4, 6
    s_and_b32 s6, s4, 63
    s_lshl_b32 s6, s6, 11
    s_mul_i32 s7, s5, {L.KA[1]-L.KA[0]}
    s_add_u32 s6, s6, s7
    s_add_u32 s34, s6, {L.KA[0]}
    s_add_u32 s35, s6, {L.VA[0]}
    v_mov_b32 v8, 0x3f803f80
    v_mov_b32 v9, 0x00003f80
    v_lshlrev_b32 v6, 4, v2
    s_mov_b32 exec_hi, 0
    buffer_store_dwordx2 v[8:9], v6, s[8:11], s34 offen offset:{1024+512+8}
    s_mov_b64 exec, 0xffff
    v_and_b32 v6, 3, v1
    v_cmp_eq_u32 vcc, 0, v6
    v_lshlrev_b32 v6, 4, v6
    v_bfe_u32 v7, v1, 2, 2
    v_lshl_add_u32 v6, v7, 9, v6
    v_cndmask_b32 v12, 0, v8, vcc
    v_cndmask_b32 v13, 0, v8, vcc
    v_cndmask_b32 v14, 0, v8, vcc
    v_cndmask_b32 v15, 0, v8, vcc
    buffer_store_dwordx4 v[12:15], v6, s[8:11], s35 offen offset:{28*16}
P_done:
    s_endpgm
    """)
```

```python
import sys
from asm import *
from prep import *
from phases import *
a = Asm()
gen_prep(a)
def kern(name, fn, vgpr, agpr=0, lds=0):
    a.begin(name, 256, vgpr=vgpr, agpr=agpr, lds=lds)
    d = a.lab('done')
    prologue(a, d)
    fn(d)
    a.e(f"{d}:\ns_endpgm")
nph = int(sys.argv[2]) if len(sys.argv) > 2 else 99
ph = []
for li in range(2):
    ph.append((f'qkva{li}_kernel', (lambda li: lambda d: qkv_a(a, li))(li), 200, 112, 0))
    ph.append((f'attna{li}_kernel', (lambda li: lambda d: attn_a(a, li))(li), 232, 0, 65536))
    ph.append((f'outa{li}_kernel', (lambda li: lambda d: out_proj(a, 'A', li, d))(li), 184, 128, 32768))
    ph.append((f'qkvb{li}_kernel', (lambda li: lambda d: qkv_b(a, li))(li), 256, 0, 86 * 1024))
    ph.append((f'attnb{li}_kernel', (lambda li: lambda d: attn_b(a, li))(li), 256, 0, 0))
    ph.append((f'outb{li}_kernel', (lambda li: lambda d: out_proj(a, 'B', li, d))(li), 184, 128, 32768))
for p in ph[:nph]: kern(*p)
open(sys.argv[1], 'w').write(a.text())
```

```python
from common import *
class Asm:
    def __init__(self):
        self.lines = []; self.kernels = []; self.launches = []; self.uid = 0
    def e(self, s):
        for ln in s.strip('\n').split('\n'):
            ln = ln.strip()
            if not ln: continue
            if ln.endswith(':') or ln.startswith('.'): self.lines.append(ln)
            else: self.lines.append('    ' + ln)
    INSTR = False
    def stamp(self, n):
        if self.INSTR: self.e(f"s_memrealtime s[{64+2*n}:{65+2*n}]")
    def cstamp(self, n):
        if self.INSTR: self.e(f"s_memtime s[{64+2*n}:{65+2*n}]")
    def stamp_out(self, n, wg=0):
        if not self.INSTR: return
        l = self.lab('so')
        self.e(f'''
        s_memrealtime s[{64+2*n}:{65+2*n}]
        s_load_dwordx2 s[62:63], s[0:1], 72
        s_lshr_b32 s61, s2, 6
        s_lshl_b32 s61, s61, 6
        s_add_u32 s61, s61, 5
        s_cmp_lg_u32 s2, s61
        s_cbranch_scc1 {l}
        s_cmp_lg_u32 s3, 0
        s_cbranch_scc1 {l}
        s_waitcnt lgkmcnt(0)
        s_lshr_b32 s61, s2, 6
        s_lshl_b32 s61, s61, 6
        v_mov_b32 v5, s61
        ''')
        for i in range(8):
            self.e(f"v_mov_b32 v4, s{64+2*i}\nglobal_store_dword v5, v4, s[62:63] offset:{4*i}")
        self.e(f"{l}:")
    def c(self, s): self.lines.append('    ; ' + s)
    def lab(self, base):
        self.uid += 1; return f"L_{base}_{self.uid}"
    def begin(self, name, grid, vgpr, agpr=0, lds=0, block=256, sgpr=96):
        self.e(f".globl {name}\n.p2align 8\n.type {name},@function\n{name}:")
        self.kernels.append((name, vgpr, agpr, sgpr))
        self.launches.append((name, grid, block, lds))
    def relaunch(self, name, grid, lds=0, block=256):
        self.launches.append((name, grid, block, lds))
    def srd(self, d, lo, nbytes):
        self.e(f"s_mov_b32 s{d}, s{lo}\ns_mov_b32 s{d+1}, s{lo+1}\ns_mov_b32 s{d+2}, {nbytes}\ns_mov_b32 s{d+3}, 0x00020000")
    def text(self, header=''):
        out = [header] if header else []
        for (n, g, b, l) in self.launches:
            out.append(f"; @launch kernel={n} grid=({g},1,1) block=({b},1,1) lds={l}")
        out.append('.amdgcn_target "amdgcn-amd-amdhsa--gfx950"\n.text')
        out += self.lines
        out.append('.section .rodata,"a"')
        for (n, v, a, sg) in self.kernels:
            acc = (v + 3) // 4 * 4
            nfv = acc + a if a else v
            out.append(f""".p2align 6
.amdhsa_kernel {n}
  .amdhsa_next_free_vgpr {nfv}
  .amdhsa_next_free_sgpr {sg}
  .amdhsa_accum_offset {acc}
  .amdhsa_group_segment_fixed_size 0
  .amdhsa_kernarg_size 88
  .amdhsa_user_sgpr_count 2
  .amdhsa_user_sgpr_kernarg_segment_ptr 1
  .amdhsa_system_sgpr_workgroup_id_x 1
.end_amdhsa_kernel""")
        return "\n".join(out) + "\n"
```

```python
from common import *
class Asm:
    def __init__(self):
        self.lines = []; self.kernels = []; self.launches = []; self.uid = 0
    def e(self, s):
        for ln in s.strip('\n').split('\n'):
            ln = ln.strip()
            if not ln: continue
            if ln.endswith(':') or ln.startswith('.'): self.lines.append(ln)
            else: self.lines.append('    ' + ln)
    INSTR = False
    def stamp(self, n):
        if self.INSTR: self.e(f"s_memrealtime s[{64+2*n}:{65+2*n}]")
    def cstamp(self, n):
        if self.INSTR: self.e(f"s_memtime s[{64+2*n}:{65+2*n}]")
    def stamp_out(self, n, wg=0):
        if not self.INSTR: return
        self.e(f'''
        s_memrealtime s[{64+2*n}:{65+2*n}]
        s_lshl_b32 s61, s33, 8
        s_add_u32 s61, s61, s2
        s_lshl_b32 s61, s61, 2
        s_add_u32 s61, s61, s3
        s_lshl_b32 s61, s61, 7
        s_add_u32 s61, s61, {L.DUMMY + (4 << 20)}
        v_mov_b32 v5, 0
        s_waitcnt lgkmcnt(0)
        s_mov_b64 exec, 1
        ''')
        for i in range(n + 1):
            self.e(f"v_mov_b32 v4, s{64+2*i}\nbuffer_store_dword v4, v5, s[8:11], s61 offen offset:{4*i}")
        self.e("s_mov_b64 exec, -1")
    def c(self, s): self.lines.append('    ; ' + s)
    def lab(self, base):
        self.uid += 1; return f"L_{base}_{self.uid}"
    def begin(self, name, grid, vgpr, agpr=0, lds=0, block=256, sgpr=96):
        self.e(f".globl {name}\n.p2align 8\n.type {name},@function\n{name}:")
        self.kernels.append((name, vgpr, agpr, sgpr))
        self.launches.append((name, grid, block, lds))
    def relaunch(self, name, grid, lds=0, block=256):
        self.launches.append((name, grid, block, lds))
    def srd(self, d, lo, nbytes):
        self.e(f"s_mov_b32 s{d}, s{lo}\ns_mov_b32 s{d+1}, s{lo+1}\ns_mov_b32 s{d+2}, {nbytes}\ns_mov_b32 s{d+3}, 0x00020000")
    def text(self, header=''):
        out = [header] if header else []
        for (n, g, b, l) in self.launches:
            out.append(f"; @launch kernel={n} grid=({g},1,1) block=({b},1,1) lds={l}")
        out.append('.amdgcn_target "amdgcn-amd-amdhsa--gfx950"\n.text')
        out += self.lines
        out.append('.section .rodata,"a"')
        for (n, v, a, sg) in self.kernels:
            acc = (v + 3) // 4 * 4
            nfv = acc + a if a else v
            out.append(f""".p2align 6
.amdhsa_kernel {n}
  .amdhsa_next_free_vgpr {nfv}
  .amdhsa_next_free_sgpr {sg}
  .amdhsa_accum_offset {acc}
  .amdhsa_group_segment_fixed_size 0
  .amdhsa_kernarg_size 88
  .amdhsa_user_sgpr_count 2
  .amdhsa_user_sgpr_kernarg_segment_ptr 1
  .amdhsa_system_sgpr_workgroup_id_x 1
.end_amdhsa_kernel""")
        return "\n".join(out) + "\n"
```

```python
S, D, H, DH = 2048, 448, 16, 28
NMT = 64
def al(x, a=4096): return (x + a - 1) // a * a
class L: pass
off = 0
def alloc(n):
    global off
    o = off; off = al(off + n); return o
L.WQA = alloc(16 * 28 * 1024)
L.WOA = alloc(14 * 32 * 1024)
L.WOB = alloc(14 * 32 * 1024)
L.WB  = alloc(48 * 28 * 1024)
L.CSA = alloc(16 * 32 * 4)
L.CSB = alloc(48 * 32 * 4)
L.ARENA0 = off
off = 0
L.XIN  = alloc(NMT * 28 * 1024)
L.STIN = alloc(NMT * 16 * 256)
L.QA   = alloc(256 * 8192)
L.OB   = alloc(NMT * 32 * 1024)
L.HOB  = alloc(NMT * 16 * 128)
L.P1END = off
L.KA   = alloc(64 * 2048)
L.VA   = alloc(64 * 2048)
L.KNA  = alloc(16 * 64 * 128)
L.P2END = off
L.OA   = alloc(NMT * 32 * 1024)
L.HOA  = alloc(256 * 128)
L.XM   = alloc(NMT * 28 * 1024)
L.STM  = alloc(NMT * 16 * 256)
L.KB   = alloc(16 * 64 * 2048)
L.VB   = alloc(16 * 64 * 2048)
L.KNB  = alloc(256 * 128)
L.ARENA = off
L.DUMMY = L.ARENA0 + 2 * L.ARENA
L.TOTAL = L.DUMMY + L.ARENA
def A(li, o): return L.ARENA0 + li * L.ARENA + o
if __name__ == '__main__':
    for k, v in vars(L).items():
        if not k.startswith('_'): print(k, v)
```

```python
from asm import *
import math, struct
QS = (28 ** -0.5) * math.log2(math.e)
def fbits(x): return '0x%08x' % struct.unpack('<I', struct.pack('<f', x))[0]
MF = 'v_mfma_f32_32x32x16_bf16'
def vr(b, n=4): return f"v[{b}:{b+n-1}]"
def ar(b, n=4): return f"a[{b}:{b+n-1}]"
THR = 2.0 ** -80
SPIN = 1 << 16
LWB = 0
LSCR = 84 * 1024
LSM = 148 * 1024
LDS_TOTAL = 152 * 1024
XRES = 240
AWQ, AWO = 0, 112

def check(a, regs, t, fail):
    regs = list(regs)
    if len(regs) == 1: src = regs[0]
    else:
        if len(regs) == 2: a.e(f"v_max_u32 v{t}, v{regs[0]}, v{regs[1]}"); rest = []
        else: a.e(f"v_max3_u32 v{t}, v{regs[0]}, v{regs[1]}, v{regs[2]}"); rest = regs[3:]
        while rest:
            if len(rest) == 1: a.e(f"v_max_u32 v{t}, v{t}, v{rest[0]}"); rest = []
            else: a.e(f"v_max3_u32 v{t}, v{t}, v{rest[0]}, v{rest[1]}"); rest = rest[2:]
        src = t
    a.e(f"""
    v_cmp_eq_u32 vcc, -1, v{src}
    s_nop 1
    s_cmp_lg_u64 vcc, 0
    s_cbranch_scc1 {fail}
    """)

def poll(a, loads, regs, t, sleep=1, name='poll'):
    l0, l1, l2 = a.lab(name), a.lab(name + '_r'), a.lab(name + '_ok')
    a.e(f"s_mov_b32 s35, 0\n{l0}:")
    loads()
    a.e("s_waitcnt vmcnt(0)")
    check(a, regs, t, l1)
    cold = f"""
{l1}:
    s_add_u32 s35, s35, 1
    s_cmp_ge_u32 s35, {SPIN}
    s_cbranch_scc1 {l2}
    s_sleep {sleep}
    s_branch {l0}
    """
    a.cold.append(cold)
    a.e(f"{l2}:")

def validated(a, loads_sc1, regs, t, name='val'):
    l1, l2 = a.lab(name + '_r'), a.lab(name + '_ok')
    check(a, regs, t, l1)
    a.e(f"{l2}:")
    sav = a.lines; a.lines = []
    a.e(f"{l1}:\ns_mov_b32 s35, 0")
    l3 = a.lab(name + '_l')
    a.e(f"{l3}:\ns_add_u32 s35, s35, 1\ns_cmp_ge_u32 s35, {SPIN}\ns_cbranch_scc1 {l2}")
    loads_sc1()
    a.e("s_waitcnt vmcnt(0)")
    check(a, regs, t, l3)
    a.e(f"s_branch {l2}")
    a.cold.append("\n".join(a.lines)); a.lines = sav

def clamp(a, regs):
    for r in regs: a.e(f"v_min_u32 v{r}, 0xfffffffe, v{r}")

def frag_loads(a, dst_fn, n, sreg, flags='', tmp=29):
    cur = sreg
    for k in range(n):
        if k and k % 4 == 0:
            a.e(f"s_add_u32 s{tmp}, s{sreg}, {k*1024}"); cur = tmp
        a.e(f"buffer_load_dwordx4 {dst_fn(k)}, v1, s[8:11], s{cur} offen offset:{(k%4)*1024} {flags}")

def row_max16(a, x):
    for m in ('quad_perm:[1,0,3,2]', 'quad_perm:[2,3,0,1]', 'row_half_mirror', 'row_mirror'):
        a.e(f"s_nop 1\nv_max_f32_dpp v{x}, v{x}, v{x} {m} row_mask:0xf bank_mask:0xf")

def stats_finish(a, st0, mu, rs, t):
    for q in range(1, 7):
        a.e(f"v_add_f32 v{st0}, v{st0}, v{st0+2*q}\nv_add_f32 v{st0+1}, v{st0+1}, v{st0+2*q+1}")
    a.e(f"""
    v_mov_b32 v{t}, v{st0}
    v_mov_b32 v{t+1}, v{st0+1}
    s_nop 1
    v_permlane32_swap_b32 v{st0}, v{t}
    v_permlane32_swap_b32 v{st0+1}, v{t+1}
    s_nop 1
    v_add_f32 v{st0}, v{st0}, v{t}
    v_add_f32 v{st0+1}, v{st0+1}, v{t+1}
    v_mul_f32 v{mu}, {fbits(-1.0/448)}, v{st0}
    v_mul_f32 v{t}, {fbits(1.0/448)}, v{st0+1}
    v_fma_f32 v{t}, -v{mu}, v{mu}, v{t}
    v_max_f32 v{t}, 0, v{t}
    v_add_f32 v{t}, {fbits(1e-5)}, v{t}
    v_rsq_f32 v{rs}, v{t}
    s_nop 0
    """)

def stats_poll(a, st0, off, smt, vaddr, t):
    a.e(f"""
    v_mul_u32_u24 v{vaddr}, {7*256}, v3
    v_lshl_add_u32 v{vaddr}, v2, 3, v{vaddr}
    s_lshl_b32 s20, s{smt}, 12
    s_add_u32 s20, s20, s30
    s_add_u32 s20, s20, {off}
    """)
    def ld():
        for q in range(7):
            a.e(f"buffer_load_dwordx2 v[{st0+2*q}:{st0+2*q+1}], v{vaddr}, s[8:11], s20 offen offset:{q*256} sc1")
    poll(a, ld, range(st0, st0 + 14), t, name='st')

def c_pieces(a, c, t, d0, d1):
    a.e(f"""
    v_and_b32 v{t}, 0xffff0000, v{c}
    v_sub_f32 v{t+1}, v{c}, v{t}
    v_and_b32 v{t+2}, 0xffff0000, v{t+1}
    v_sub_f32 v{t+1}, v{t+1}, v{t+2}
    v_lshrrev_b32 v{t}, 16, v{t}
    v_or_b32 v{t}, v{t}, v{t+2}
    v_lshrrev_b32 v{t+1}, 16, v{t+1}
    v_xor_b32 v{d0}, 0x80008000, v{t}
    v_xor_b32 v{d1}, 0x00008000, v{t+1}
    """)

def entry(a, done):
    a.e(f"""
    s_cmp_ge_u32 s2, 256
    s_cbranch_scc1 {done}
    """)
    a.stamp(0)
    a.e(f"""
    s_load_dwordx2 s[16:17], s[0:1], 80
    s_load_dwordx2 s[18:19], s[0:1], 64
    v_lshrrev_b32 v4, 6, v0
    v_and_b32 v1, 63, v0
    v_and_b32 v2, 31, v0
    v_readfirstlane_b32 s3, v4
    v_bfe_u32 v3, v0, 5, 1
    v_lshlrev_b32 v1, 4, v1
    s_and_b32 s4, s2, 7
    s_lshl_b32 s4, s4, 1
    s_lshr_b32 s5, s2, 7
    s_add_u32 s4, s4, s5
    s_lshr_b32 s5, s2, 3
    s_and_b32 s5, s5, 15
    s_lshl_b32 s6, s4, 2
    s_and_b32 s31, s5, 3
    s_add_u32 s31, s31, s6
    s_add_u32 s6, s6, s3
    s_lshl_b32 s7, s4, 4
    s_add_u32 s7, s7, s5
    s_and_b32 s32, s5, 12
    s_add_u32 s32, s32, s3
    s_min_u32 s36, s32, 13
    s_mov_b32 s30, {L.ARENA0}
    s_mov_b32 s33, 0
    s_waitcnt lgkmcnt(0)
    """)
    a.srd(8, 16, L.TOTAL)
    a.srd(12, 18, S * 896)
    a.srd(48, 16, L.TOTAL)
    a.c("first QKV_A: inputs come from the previous kernel, no polling; resident WQA fragments; residual tile of x0")
    XF, CS, STT, T = 16, 144, 160, 176
    a.e(f"""
    s_mul_i32 s21, s31, {28*1024}
    s_mul_i32 s22, s3, {7*1024}
    s_add_u32 s21, s21, s22
    s_add_u32 s21, s21, {A(0, L.XIN)}
    """)
    frag_loads(a, lambda k: vr(XF + 4 * k), 7, 21)
    a.e(f"""
    v_mul_u32_u24 v{T}, {7*256}, v3
    v_lshl_add_u32 v{T}, v2, 3, v{T}
    s_lshl_b32 s20, s31, 12
    s_add_u32 s20, s20, {A(0, L.STIN)}
    """)
    for q in range(7): a.e(f"buffer_load_dwordx2 v[{STT+2*q}:{STT+2*q+1}], v{T}, s[8:11], s20 offen offset:{q*256}")
    a.e(f"""
    s_mul_i32 s20, s32, {28*1024}
    s_add_u32 s20, s20, {L.WQA}
    """)
    frag_loads(a, lambda k: ar(AWQ + 4 * k), 28, 20)
    a.e(f"""
    s_lshl_b32 s20, s32, 7
    s_add_u32 s20, s20, {L.CSA}
    v_lshlrev_b32 v{T+1}, 4, v3
    """)
    for q in range(4): a.e(f"buffer_load_dwordx4 {vr(CS+4*q)}, v{T+1}, s[8:11], s20 offen offset:{q*32}")
    a.e(f"""
    s_mul_i32 s20, s31, {28*1024}
    s_lshl_b32 s23, s36, 11
    s_add_u32 s20, s20, s23
    s_add_u32 s20, s20, {A(0, L.XIN)}
    buffer_load_dwordx4 {vr(XRES)}, v1, s[8:11], s20 offen
    buffer_load_dwordx4 {vr(XRES+4)}, v1, s[8:11], s20 offen offset:1024
    s_branch M_qa_entry
    """)

def qkv_a(a):
    XF, ACC, CS, STT, MU, RS, T, PK, QP = 16, 128, 144, 160, 174, 175, 176, 184, 192
    a.c("==== QKV_A : m-tile s31, column group s32")
    a.e(f"""
    s_lshl_b32 s21, s32, 7
    s_add_u32 s21, s21, {L.CSA}
    v_lshlrev_b32 v{T+1}, 4, v3
    """)
    for q in range(4): a.e(f"buffer_load_dwordx4 {vr(CS+4*q)}, v{T+1}, s[8:11], s21 offen offset:{q*32}")
    stats_poll(a, STT, L.STIN, 31, T, T + 2)
    a.stamp(1)
    a.e(f"""
    s_mul_i32 s21, s31, {28*1024}
    s_mul_i32 s22, s3, {7*1024}
    s_add_u32 s21, s21, s22
    s_add_u32 s21, s21, s30
    s_add_u32 s21, s21, {L.XIN}
    """)
    frag_loads(a, lambda k: vr(XF + 4 * k), 7, 21)
    a.e("M_qa_entry:")
    a.c("prefetch WOA fragments (consumed after attention)")
    a.e(f"s_lshl_b32 s20, s36, 15\ns_add_u32 s20, s20, {L.WOA}")
    frag_loads(a, lambda k: ar(AWO + 4 * k), 32, 20)
    a.e(f"""
    s_add_u32 s22, s22, {LSCR}
    v_add_u32 v{T+3}, s22, v1
    s_barrier
    s_waitcnt vmcnt(32)
    """)
    stats_finish(a, STT, MU, RS, T)
    validated(a, lambda: frag_loads(a, lambda k: vr(XF + 4 * k), 7, 21, 'sc1'), range(XF, XF + 28), T, 'xa')
    for k in range(7): a.e(f"ds_write_b128 v{T+3}, {vr(XF+4*k)} offset:{k*1024}")
    a.e(f"""
    v_add_u32 v{T+3}, {LSCR}, v1
    v_cmp_eq_u32 vcc, 1, v3
    v_mul_f32 v{T}, {fbits(QS)}, v{RS}
    s_waitcnt lgkmcnt(0)
    s_barrier
    """)
    a.stamp(2)
    if a.INSTR: a.e("s_waitcnt lgkmcnt(0)")
    for k in range(28): a.e(f"ds_read_b128 {vr(XF+4*k)}, v{T+3} offset:{k*1024}")
    a.e(f"v_cndmask_b32 v{T+1}, v{T}, v{RS}, vcc")
    for k in range(28):
        a.e(f"s_waitcnt lgkmcnt({min(15, 27-k)})")
        a.e(f"{MF} {vr(ACC,16)}, {ar(AWQ+4*k)}, {vr(XF+4*k)}, {'0' if k == 0 else vr(ACC,16)}")
    a.e(f"""
    v_lshrrev_b32 v{T+4}, 3, v2
    v_lshlrev_b32 v{T+4}, 13, v{T+4}
    v_and_b32 v{T+5}, 7, v2
    v_lshl_add_u32 v{T+4}, v{T+5}, 4, v{T+4}
    v_lshl_add_u32 v{T+4}, v3, 9, v{T+4}
    s_lshl_b32 s20, s31, 15
    s_lshr_b32 s21, s32, 2
    s_lshl_b32 s21, s21, 11
    s_add_u32 s20, s20, s21
    s_lshl_b32 s21, s3, 7
    s_add_u32 s20, s20, s21
    s_add_u32 s20, s20, s30
    s_add_u32 s20, s20, {L.QA}
    s_lshl_b32 s24, s31, 7
    s_add_u32 s24, s24, s30
    s_add_u32 s24, s24, {L.KNA}
    s_lshl_b32 s21, s32, 2
    s_add_u32 s24, s24, s21
    """)
    for r in range(16): a.e(f"v_fma_f32 v{ACC+r}, v{MU}, v{CS+r}, v{ACC+r}")
    for r in range(16): a.e(f"v_mul_f32 v{ACC+r}, v{ACC+r}, v{T if r < 12 else T+1}")
    for q in range(8): a.e(f"v_cvt_pk_bf16_f32 v{PK+q}, v{ACC+2*q}, v{ACC+2*q+1}")
    clamp(a, range(PK, PK + 8))
    a.e(f"buffer_store_dwordx4 {vr(PK)}, v{T+4}, s[8:11], s20 offen sc1")
    a.e(f"""
    v_cndmask_b32 v{T+2}, v{PK+6}, 0, vcc
    v_cndmask_b32 v{T+3}, v{PK+7}, 0, vcc
    v_mov_b32 v{T}, 0
    v_mov_b32 v{T+1}, 0
    """)
    for q in range(6): a.e(f"v_dot2_f32_bf16 v{T+(q&1)}, v{PK+q}, v{PK+q}, v{T+(q&1)}")
    a.e(f"""
    v_dot2_f32_bf16 v{T}, v{T+2}, v{T+2}, v{T}
    v_dot2_f32_bf16 v{T+1}, v{T+3}, v{T+3}, v{T+1}
    v_mov_b32 v{QP}, v{PK+4}
    v_mov_b32 v{QP+1}, v{PK+5}
    v_cndmask_b32 v{QP+3}, v{PK+7}, 0, vcc
    s_nop 0
    v_add_f32 v{T}, v{T}, v{T+1}
    v_mov_b32 v{T+1}, v{T}
    s_nop 1
    v_permlane32_swap_b32 v{T}, v{T+1}
    s_nop 1
    v_add_f32 v{T}, v{T}, v{T+1}
    v_min_u32 v{T}, 0xfffffffe, v{T}
    v_cndmask_b32 v{QP+2}, v{PK+6}, v{T}, vcc
    buffer_store_dwordx4 {vr(QP)}, v{T+4}, s[8:11], s20 offen offset:1024 sc1
    """)
    lv, ld = a.lab('qa_v'), a.lab('qa_done')
    a.e(f"""
    s_cmp_ge_u32 s32, 14
    s_cbranch_scc1 {ld}
    s_cmp_ge_u32 s32, 7
    s_cbranch_scc1 {lv}
    v_mul_f32 v{T}, v{ACC+12}, v{ACC+12}
    v_fma_f32 v{T}, v{ACC+13}, v{ACC+13}, v{T}
    v_fma_f32 v{T}, v{ACC+14}, v{ACC+14}, v{T}
    v_fma_f32 v{T}, v{ACC+15}, v{ACC+15}, v{T}
    s_lshl_b32 s20, s31, 11
    s_lshr_b32 s21, s32, 2
    s_lshl_b32 s21, s21, 10
    s_add_u32 s20, s20, s21
    s_and_b32 s21, s32, 1
    s_lshl_b32 s21, s21, 9
    s_add_u32 s20, s20, s21
    s_and_b32 s21, s32, 2
    s_lshl_b32 s21, s21, 2
    s_add_u32 s20, s20, s21
    s_add_u32 s20, s20, s30
    s_add_u32 s20, s20, {L.KA}
    v_lshlrev_b32 v{T+2}, 4, v2
    s_mov_b32 exec_lo, 0
    buffer_store_dwordx2 v[{PK+6}:{PK+7}], v{T+2}, s[8:11], s20 offen sc1
    s_mov_b64 exec, -1
    """)
    row_max16(a, T)
    a.e(f"""
    s_nop 1
    v_readlane_b32 s22, v{T}, 32
    v_readlane_b32 s23, v{T}, 48
    v_lshlrev_b32 v{T+4}, 13, v2
    s_max_u32 s22, s22, s23
    s_min_u32 s22, s22, 0x7fc00000
    v_mov_b32 v{T+3}, s22
    s_mov_b64 exec, 0xffff
    buffer_store_dword v{T+3}, v{T+4}, s[8:11], s24 offen sc1
    s_mov_b64 exec, -1
    s_branch {ld}
{lv}:
    v_mov_b32_dpp v{T}, v{PK+6} quad_perm:[1,0,3,2] row_mask:0xf bank_mask:0xf
    v_mov_b32_dpp v{T+1}, v{PK+7} quad_perm:[1,0,3,2] row_mask:0xf bank_mask:0xf
    v_and_b32 v{T+2}, 1, v2
    v_cmp_eq_u32 vcc, 0, v{T+2}
    s_mov_b32 s22, 0x05040100
    s_mov_b32 s23, 0x07060302
    v_cndmask_b32 v{T+3}, v{T+1}, v{PK+6}, vcc
    v_cndmask_b32 v{T+4}, v{PK+7}, v{T}, vcc
    v_perm_b32 v{T}, v{T+4}, v{T+3}, s22
    v_perm_b32 v{T+1}, v{T+4}, v{T+3}, s23
    v_lshrrev_b32 v{T+3}, 4, v2
    v_lshlrev_b32 v{T+3}, 10, v{T+3}
    v_bfe_u32 v{T+4}, v2, 3, 1
    v_lshl_add_u32 v{T+3}, v{T+4}, 3, v{T+3}
    v_bfe_u32 v{T+4}, v2, 2, 1
    v_lshl_add_u32 v{T+3}, v{T+4}, 9, v{T+3}
    v_bfe_u32 v{T+4}, v2, 1, 1
    v_lshl_add_u32 v{T+3}, v{T+4}, 2, v{T+3}
    v_lshl_add_u32 v{T+3}, v{T+2}, 5, v{T+3}
    v_min_u32 v{T}, 0xfffffffe, v{T}
    v_min_u32 v{T+1}, 0xfffffffe, v{T+1}
    v_mov_b32 v{T+4}, 0
    v_lshlrev_b32 v{T+5}, 13, v2
    s_lshl_b32 s20, s31, 11
    s_sub_u32 s21, s32, 7
    s_lshl_b32 s21, s21, 6
    s_add_u32 s20, s20, s21
    s_add_u32 s20, s20, s30
    s_add_u32 s20, s20, {L.VA}
    s_mov_b32 exec_lo, 0
    buffer_store_dword v{T}, v{T+3}, s[8:11], s20 offen sc1
    buffer_store_dword v{T+1}, v{T+3}, s[8:11], s20 offen offset:16 sc1
    s_mov_b64 exec, 0xffff
    buffer_store_dword v{T+4}, v{T+5}, s[8:11], s24 offen sc1
    s_mov_b64 exec, -1
{ld}:
    """)

def attn_a(a):
    QF, S0, S1, P, O, KV, T, FS = 16, 48, 64, 80, 88, 152, 216, 232
    NB = 4
    SS = [S0, S1]
    a.c("==== attention A : rows 8*s7.., all heads; waves split the keys")
    a.e(f"""
    s_barrier
    s_lshl_b32 s21, s6, 11
    s_add_u32 s21, s21, s30
    s_add_u32 s21, s21, {L.KNA}
    v_lshrrev_b32 v{T+8}, 6, v1
    v_lshlrev_b32 v{T+8}, 7, v{T+8}
    v_and_b32 v{T+9}, 48, v1
    v_add_u32 v{T+8}, v{T+8}, v{T+9}
    s_lshl_b32 s26, s7, 13
    s_add_u32 s26, s26, s30
    s_add_u32 s26, s26, {L.QA}
    s_lshl_b32 s22, s3, 15
    s_add_u32 s22, s22, s30
    s_add_u32 s23, s22, {L.VA}
    s_add_u32 s22, s22, {L.KA}
    """)
    for r in range(64): a.e(f"v_mov_b32 v{O+r}, 0")
    for r in range(8): a.e(f"v_mov_b32 v{P+r}, 0")
    for r in range(8): a.e(f"v_mov_b32 v{KV+16*(NB-1)+8+r}, 0")
    for r in range(4): a.e(f"v_mov_b32 v{FS+r}, -1")
    lnw = a.lab('aa_nowb')
    a.e(f"""
    s_cmp_lg_u32 s33, 0
    s_cbranch_scc1 {lnw}
    s_mul_i32 s44, s5, {84*1024}
    s_mul_i32 s45, s3, {21*1024}
    s_add_u32 s44, s44, s45
    s_add_u32 s44, s44, {L.WB}
    """)
    for k in range(21):
        if k % 4 == 0:
            if k: a.e("s_add_u32 s44, s44, 4096\ns_add_u32 s45, s45, 4096")
            a.e("s_mov_b32 m0, s45\ns_nop 0")
        a.e(f"buffer_load_dwordx4 v1, s[8:11], s44 offen offset:{(k%4)*1024} lds")
    a.e(f"{lnw}:")
    poll(a, lambda: a.e(f"buffer_load_dwordx4 {vr(T)}, v{T+8}, s[8:11], s21 offen sc1"), range(T, T + 4), T + 4, sleep=2, name='kn')
    a.stamp(3)
    frag_loads(a, lambda k: vr(QF + 4 * k), 8, 26)
    def kv_load(b, fl='', adv=True, sk=22, sv=23):
        a.e(f"""
        buffer_load_dwordx4 {vr(KV+16*b)}, v1, s[8:11], s{sk} offen {fl}
        buffer_load_dwordx4 {vr(KV+16*b+4)}, v1, s[8:11], s{sk} offen offset:1024 {fl}
        buffer_load_dwordx4 {vr(KV+16*b+8)}, v1, s[8:11], s{sv} offen {fl}
        buffer_load_dwordx4 {vr(KV+16*b+12)}, v1, s[8:11], s{sv} offen offset:1024 {fl}
        """)
        if adv: a.e(f"s_add_u32 s{sk}, s{sk}, 2048\ns_add_u32 s{sv}, s{sv}, 2048")
    a.e("s_mov_b32 s37, s22\ns_mov_b32 s38, s23")
    for b in range(NB - 1): kv_load(b)
    a.c("per-wave stand-in shift c = 1.02*|q'|*Kmax(own keys): Cauchy-Schwarz upper bound of the row max over this wave's keys")
    a.e(f"""
    v_add_f32 v{T}, v{T}, v{T+1}
    v_add_f32 v{T+2}, v{T+2}, v{T+3}
    v_add_f32 v{T}, v{T}, v{T+2}
    s_nop 1
    v_add_f32_dpp v{T}, v{T}, v{T} quad_perm:[1,0,3,2] row_mask:0xf bank_mask:0xf
    s_nop 1
    v_add_f32_dpp v{T}, v{T}, v{T} quad_perm:[2,3,0,1] row_mask:0xf bank_mask:0xf
    s_nop 1
    v_max_f32_dpp v{T}, v{T}, v{T} row_half_mirror row_mask:0xf bank_mask:0xf
    s_nop 1
    v_max_f32_dpp v{T}, v{T}, v{T} row_mirror row_mask:0xf bank_mask:0xf
    s_nop 1
    v_readlane_b32 s24, v{T}, 0
    v_readlane_b32 s25, v{T}, 16
    v_readlane_b32 s27, v{T}, 32
    v_readlane_b32 s28, v{T}, 48
    s_max_u32 s24, s24, s25
    s_max_u32 s27, s27, s28
    s_max_u32 s24, s24, s27
    s_lshl_b32 s20, s3, 9
    s_add_u32 s20, s20, {LSM+1024}
    v_lshl_add_u32 v{T+8}, v2, 2, s20
    s_waitcnt vmcnt({4*(NB-1)})
    """)
    validated(a, lambda: frag_loads(a, lambda k: vr(QF + 4 * k), 8, 26, 'sc1'), range(QF, QF + 32), T, 'qa')
    a.e("s_mov_b32 exec_lo, 0")
    for t in range(4):
        q2 = QF + 8 * t + 6
        a.e(f"""
        v_mul_f32 v{T}, s24, v{q2}
        v_sqrt_f32 v{T}, v{T}
        s_nop 0
        v_mul_f32 v{T}, {fbits(1.02)}, v{T}
        ds_write_b32 v{T+8}, v{T} offset:{t*128}
        """)
        c_pieces(a, T, T + 1, q2, q2 + 1)
    a.e("s_mov_b64 exec, -1\ns_waitcnt vmcnt(0)")
    def kv_reload():
        a.e("s_mov_b32 s39, s37\ns_mov_b32 s40, s38")
        for b in range(NB - 1): kv_load(b, 'sc1', True, 39, 40)
    validated(a, kv_reload, range(KV, KV + 48), T, 'kv')
    a.e(f"""
    {MF} {vr(S0,16)}, {vr(KV)}, {vr(QF)}, 0
    {MF} {vr(S0,16)}, {vr(KV+4)}, {vr(QF+4)}, {vr(S0,16)}
    """)
    extras = []
    wv = "s41"
    a.e(f"""
    s_lshl_b32 s41, s5, 2
    s_add_u32 s41, s41, s3
    s_lshl_b32 s42, s4, 6
    s_add_u32 s42, s42, s41
    s_nop 5
    """)
    a.stamp(4)
    a.cstamp(6)
    def fill(base, sidx, per, nbytes):
        out = []
        first = f"s_mul_i32 s46, {sidx}, {per}\ns_add_u32 s46, s46, {base}\n"
        n = (nbytes + 1023) // 1024
        for k in range(n):
            pre = first if k == 0 else ""
            if k and k % 4 == 0: pre += "s_add_u32 s46, s46, 4096\n"
            rem = nbytes - k * 1024
            st = f"buffer_store_dwordx4 {vr(FS)}, v1, s[48:51], s46 offen offset:{(k%4)*1024} sc1"
            if rem < 1024:
                lanes = rem // 16
                m = (1 << lanes) - 1
                if lanes <= 32: st = f"s_mov_b32 exec_hi, 0\ns_mov_b32 exec_lo, 0x{m:x}\n{st}\ns_mov_b64 exec, -1"
                else: st = f"s_mov_b32 exec_hi, 0x{m>>32:x}\n{st}\ns_mov_b64 exec, -1"
            out.append(pre + st)
        return out
    extras += fill(A(0, L.OB), 's42', 2048, 2048)
    extras += fill(A(0, L.HOB), 's42', 128, 128)
    extras += fill(A(1, L.XIN), 's42', 1792, 1792)
    extras += fill(A(1, L.STIN), 's42', 256, 256)
    extras += fill(A(1, L.QA), 's42', 2048, 2048)
    extras += fill(A(1, L.OB), 's42', 2048, 2048)
    extras += fill(A(1, L.HOB), 's42', 128, 128)
    extras += fill(A(1, L.OA), 's42', 9216, 9216)
    assert 9216 * 1024 >= L.ARENA - L.OA
    E = (len(extras) + 14) // 15
    cnt = [min(E, max(0, len(extras) - E * i)) for i in range(16)]
    u = 0
    for kt in range(16):
        b = kt % NB
        for t in range(4):
            sb = SS[u & 1]; sn = SS[(u + 1) & 1]
            kb = KV + 16 * (b if t < 3 else (b + 1) % NB)
            qn = QF + 8 * ((t + 1) % 4)
            vp = KV + 16 * (b if t > 0 else (b - 1) % NB) + 12
            vc = KV + 16 * b + 8
            op = O + 16 * ((t - 1) % 4); oc = O + 16 * t
            last = (kt == 15 and t == 3)
            def ex(i0):
                for i in range(i0, i0 + 4): a.e(f"v_exp_f32 v{sb+i}, v{sb+i}")
            def cv(j0):
                for jx in (j0, j0 + 1): a.e(f"v_cvt_pk_bf16_f32 v{P+jx}, v{sb+2*jx}, v{sb+2*jx+1}")
            if u == 0: a.e("s_nop 7")
            ex(0)
            if t == 3 and 2 <= kt < 15:
                n = cnt[kt - 2] + cnt[kt - 1] + cnt[kt] + (4 if kt + 2 < 16 else 0) + (4 if kt + 3 < 16 else 0)
                a.e(f"s_waitcnt vmcnt({n})")
            if not last: a.e(f"{MF} {vr(sn,16)}, {vr(kb)}, {vr(qn)}, 0")
            cv(0); ex(4)
            if not last: a.e(f"{MF} {vr(sn,16)}, {vr(kb+4)}, {vr(qn+4)}, {vr(sn,16)}")
            cv(2); ex(8)
            a.e(f"{MF} {vr(op,16)}, {vr(vp)}, {vr(P+4)}, {vr(op,16)}")
            cv(4)
            if t == 0:
                if kt + 3 < 16: kv_load((b - 1) % NB)
                for x in extras[E * kt: E * kt + cnt[kt]]: a.e(x)
            ex(12)
            a.e(f"{MF} {vr(oc,16)}, {vr(vc)}, {vr(P)}, {vr(oc,16)}")
            cv(6)
            u += 1
    a.e(f"""
    s_lshl_b32 s20, s3, 14
    s_add_u32 s20, s20, {LSCR}
    {MF} {vr(O+48,16)}, {vr(KV+16*3+12)}, {vr(P+4)}, {vr(O+48,16)}
    v_add_u32 v{T}, s20, v1
    s_lshl_b32 s20, s3, 12
    s_add_u32 s20, s20, {LSCR}
    v_add_u32 v{T+1}, s20, v1
    s_lshl_b32 s20, s3, 7
    s_add_u32 s20, s20, {LSM+1024}
    v_lshl_add_u32 v{T+8}, v2, 2, s20
    """)
    a.stamp(5)
    a.cstamp(7)
    a.c("cross-wave reduction of the partial O^T through LDS, rescaling each wave's partial to a common shift")
    for t in range(4):
        for q in range(4): a.e(f"ds_write_b128 v{T}, {vr(O+16*t+4*q)} offset:{t*4096+q*1024}")
    a.e("s_waitcnt vmcnt(0) lgkmcnt(0)\ns_barrier")
    R = KV
    for w in range(4): a.e(f"ds_read_b32 v{T+2+w}, v{T+8} offset:{w*512}")
    for w in range(4):
        for q in range(4): a.e(f"ds_read_b128 {vr(R+16*w+4*q)}, v{T+1} offset:{w*16384+q*1024}")
    a.e(f"""
    s_waitcnt lgkmcnt(15)
    v_max3_f32 v{T+6}, v{T+2}, v{T+3}, v{T+4}
    v_max_f32 v{T+6}, v{T+6}, v{T+5}
    """)
    for w in range(4): a.e(f"v_sub_f32 v{T+2+w}, v{T+2+w}, v{T+6}")
    for w in range(4): a.e(f"v_exp_f32 v{T+2+w}, v{T+2+w}")
    a.e("s_waitcnt lgkmcnt(12)")
    for r in range(16): a.e(f"v_mul_f32 v{O+r}, v{R+r}, v{T+2}")
    for w in range(1, 4):
        a.e(f"s_waitcnt lgkmcnt({12-4*w})")
        for r in range(16): a.e(f"v_fma_f32 v{O+r}, v{R+16*w+r}, v{T+2+w}, v{O+r}")
    lnorm, lslow = a.lab('aa_norm'), a.lab('aa_slow')
    a.e(f"""
    v_mov_b32 v{T+2}, v{O+12}
    v_mov_b32 v{T+3}, v{O+12}
    v_add_f32 v{T+4}, v{O}, v{O+1}
    v_add_f32 v{T+5}, v{O+2}, v{O+3}
    v_permlane32_swap_b32 v{T+2}, v{T+3}
    """)
    for r in range(4, 16, 2): a.e(f"v_add_f32 v{T+4}, v{T+4}, v{O+r}\nv_add_f32 v{T+5}, v{T+5}, v{O+r+1}")
    a.e(f"""
    s_mov_b32 s20, {fbits(THR)}
    v_add_f32 v{T+4}, v{T+4}, v{T+5}
    v_cmp_gt_f32 vcc, s20, v{T+3}
    v_cmp_u_f32 s[24:25], v{T+4}, v{T+4}
    s_nop 1
    s_or_b64 vcc, vcc, s[24:25]
    s_cmp_lg_u64 vcc, 0
    s_cbranch_scc1 {lslow}
{lnorm}:
    v_rcp_f32 v{T+3}, v{T+3}
    v_lshrrev_b32 v{T+4}, 3, v2
    v_lshlrev_b32 v{T+4}, 11, v{T+4}
    v_and_b32 v{T+5}, 7, v2
    v_lshl_add_u32 v{T+4}, v{T+5}, 4, v{T+4}
    v_lshl_add_u32 v{T+4}, v3, 9, v{T+4}
    s_lshr_b32 s20, s7, 2
    s_lshl_b32 s20, s20, 15
    s_lshl_b32 s21, s3, 13
    s_add_u32 s20, s20, s21
    s_and_b32 s21, s7, 3
    s_lshl_b32 s21, s21, 7
    s_add_u32 s20, s20, s21
    s_add_u32 s20, s20, s30
    s_add_u32 s20, s20, {L.OA}
    s_lshl_b32 s21, s7, 7
    s_lshl_b32 s22, s3, 2
    s_add_u32 s21, s21, s22
    s_add_u32 s21, s21, s30
    s_add_u32 s21, s21, {L.HOA}
    v_mov_b32 v{T+5}, 0
    """)
    for r in range(16): a.e(f"v_mul_f32 v{O+r}, v{O+r}, v{T+3}")
    for q in range(8): a.e(f"v_cvt_pk_bf16_f32 v{P+q}, v{O+2*q}, v{O+2*q+1}")
    clamp(a, range(P, P + 8))
    a.e(f"""
    buffer_store_dwordx4 {vr(P)}, v{T+4}, s[8:11], s20 offen sc1
    buffer_store_dwordx4 {vr(P+4)}, v{T+4}, s[8:11], s20 offen offset:1024 sc1
    s_mov_b64 exec, 1
    buffer_store_dword v{T+5}, v{T+5}, s[8:11], s21 offen sc1
    s_mov_b64 exec, -1
    """)
    sav = a.lines; a.lines = []
    l1, l2, l1r, l2r = a.lab('aa_s1'), a.lab('aa_s2'), a.lab('aa_s1r'), a.lab('aa_s2r')
    a.e(f"{lslow}:")
    a.c("exact fallback: this wave redoes its 32 queries over all keys with the true row max (validated coherent loads)")
    a.e(f"""
    s_lshl_b32 s20, s3, 11
    s_add_u32 s20, s20, s26
    buffer_load_dwordx4 {vr(QF)}, v1, s[8:11], s20 offen sc1
    buffer_load_dwordx4 {vr(QF+4)}, v1, s[8:11], s20 offen offset:1024 sc1
    v_cmp_eq_u32 vcc, 1, v3
    v_mov_b32 v{T}, 0xff800000
    s_add_u32 s22, s30, {L.KA}
    s_mov_b32 s29, 0
    s_mov_b32 s35, 0
    s_waitcnt vmcnt(0)
    v_cndmask_b32 v{QF+6}, v{QF+6}, 0, vcc
    v_cndmask_b32 v{QF+7}, v{QF+7}, 0, vcc
{l1}:
    buffer_load_dwordx4 {vr(KV)}, v1, s[8:11], s22 offen sc1
    buffer_load_dwordx4 {vr(KV+4)}, v1, s[8:11], s22 offen offset:1024 sc1
    s_waitcnt vmcnt(0)
    s_add_u32 s35, s35, 1
    s_cmp_ge_u32 s35, {SPIN}
    s_cbranch_scc1 {l1r}
    """)
    check(a, range(KV, KV + 8), T + 1, l1)
    a.e(f"""
{l1r}:
    s_add_u32 s22, s22, 2048
    {MF} {vr(S0,16)}, {vr(KV)}, {vr(QF)}, 0
    {MF} {vr(S0,16)}, {vr(KV+4)}, {vr(QF+4)}, {vr(S0,16)}
    s_nop 15
    """)
    for r in range(0, 16, 2): a.e(f"v_max3_f32 v{T}, v{T}, v{S0+r}, v{S0+r+1}")
    a.e(f"""
    s_add_u32 s29, s29, 1
    s_cmp_lt_u32 s29, 64
    s_cbranch_scc1 {l1}
    v_mov_b32 v{T+1}, v{T}
    s_nop 1
    v_permlane32_swap_b32 v{T}, v{T+1}
    s_nop 1
    v_max_f32 v{T}, v{T}, v{T+1}
    s_mov_b32 exec_lo, 0
    """)
    c_pieces(a, T, T + 1, QF + 6, QF + 7)
    a.e(f"""
    s_mov_b64 exec, -1
    s_add_u32 s22, s30, {L.KA}
    s_add_u32 s23, s30, {L.VA}
    s_mov_b32 s29, 0
    """)
    for r in range(16): a.e(f"v_mov_b32 v{O+r}, 0")
    a.e(f"{l2}:")
    kv_load(0, 'sc1', False)
    a.e(f"""
    s_waitcnt vmcnt(0)
    s_add_u32 s35, s35, 1
    s_cmp_ge_u32 s35, {SPIN}
    s_cbranch_scc1 {l2r}
    """)
    check(a, range(KV, KV + 16), T + 1, l2)
    a.e(f"""
{l2r}:
    s_add_u32 s22, s22, 2048
    s_add_u32 s23, s23, 2048
    {MF} {vr(S0,16)}, {vr(KV)}, {vr(QF)}, 0
    {MF} {vr(S0,16)}, {vr(KV+4)}, {vr(QF+4)}, {vr(S0,16)}
    s_nop 15
    """)
    for r in range(16): a.e(f"v_exp_f32 v{S0+r}, v{S0+r}")
    a.e("s_nop 0")
    for q in range(8): a.e(f"v_cvt_pk_bf16_f32 v{P+q}, v{S0+2*q}, v{S0+2*q+1}")
    a.e(f"""
    s_nop 1
    {MF} {vr(O,16)}, {vr(KV+8)}, {vr(P)}, {vr(O,16)}
    {MF} {vr(O,16)}, {vr(KV+12)}, {vr(P+4)}, {vr(O,16)}
    s_add_u32 s29, s29, 1
    s_cmp_lt_u32 s29, 64
    s_cbranch_scc1 {l2}
    s_nop 15
    v_mov_b32 v{T+2}, v{O+12}
    v_mov_b32 v{T+3}, v{O+12}
    s_nop 1
    v_permlane32_swap_b32 v{T+2}, v{T+3}
    s_nop 1
    s_branch {lnorm}
    """)
    a.cold.append("\n".join(a.lines)); a.lines = sav

def out_proj(a, which, sbase):
    OF, ACC, PK, T = 16, 144, XRES, 176
    isA = which == 'A'
    a.c(f"==== out projection {which} : m-tile s31, column group s32")
    if isA:
        a.e(f"""
        s_lshl_b32 s21, s31, 9
        s_add_u32 s21, s21, s30
        s_add_u32 s21, s21, {L.HOA}
        v_lshrrev_b32 v{T+1}, 2, v2
        v_and_b32 v{T+1}, 3, v{T+1}
        v_lshlrev_b32 v{T+1}, 7, v{T+1}
        v_and_b32 v{T+2}, 3, v2
        v_lshl_add_u32 v{T+1}, v{T+2}, 2, v{T+1}
        """)
    else:
        a.e(f"""
        s_lshl_b32 s21, s31, 11
        s_add_u32 s21, s21, s30
        s_add_u32 s21, s21, {L.HOB}
        v_and_b32 v{T+1}, 15, v2
        v_lshlrev_b32 v{T+1}, 7, v{T+1}
        """)
    a.e(f"""
    s_lshl_b32 s20, s31, 15
    s_lshl_b32 s22, s3, 13
    s_add_u32 s20, s20, s22
    s_add_u32 s20, s20, s30
    s_add_u32 s20, s20, {L.OA if isA else L.OB}
    s_add_u32 s22, s22, {LSCR}
    v_add_u32 v{T}, s22, v1
    v_add_u32 v{T+3}, {LSCR}, v1
    """)
    poll(a, lambda: a.e(f"buffer_load_dword v{T+2}, v{T+1}, s[8:11], s21 offen sc1"), [T + 2], T + 4, name='ho')
    a.stamp(sbase)
    frag_loads(a, lambda k: vr(OF + 4 * k), 8, 20)
    a.e("s_barrier\ns_waitcnt vmcnt(0)")
    validated(a, lambda: frag_loads(a, lambda k: vr(OF + 4 * k), 8, 20, 'sc1'), range(OF, OF + 32), T + 4, 'of')
    for k in range(8): a.e(f"ds_write_b128 v{T}, {vr(OF+4*k)} offset:{k*1024}")
    lskip = a.lab('op_skip')
    a.e(f"""
    s_waitcnt lgkmcnt(0)
    s_barrier
    """)
    a.stamp(sbase + 1)
    if a.INSTR: a.e("s_waitcnt lgkmcnt(0)")
    a.e(f"""
    s_cmp_ge_u32 s32, 14
    s_cbranch_scc1 {lskip}
    """)
    for k in range(32): a.e(f"ds_read_b128 {vr(OF+4*k)}, v{T+3} offset:{k*1024}")
    XU = 160
    for q in range(8): a.e(f"v_lshlrev_b32 v{XU+2*q}, 16, v{XRES+q}\nv_and_b32 v{XU+2*q+1}, 0xffff0000, v{XRES+q}")
    a.e("s_nop 1")
    for k in range(32):
        a.e(f"s_waitcnt lgkmcnt({min(15, 31-k)})")
        a.e(f"{MF} {vr(ACC,16)}, {ar(AWO+4*k)}, {vr(OF+4*k)}, {vr(XU,16) if k == 0 else vr(ACC,16)}")
    nxt = 0 if isA else L.ARENA
    xo, so = (L.XM, L.STM) if isA else (L.XIN, L.STIN)
    a.e(f"""
    s_mul_i32 s20, s31, {28*1024}
    s_lshl_b32 s21, s32, 11
    s_add_u32 s20, s20, s21
    s_add_u32 s20, s20, s30
    s_add_u32 s20, s20, {nxt + xo}
    s_lshl_b32 s21, s31, 12
    s_lshl_b32 s22, s32, 8
    s_add_u32 s21, s21, s22
    s_add_u32 s21, s21, s30
    s_add_u32 s21, s21, {nxt + so}
    s_mov_b32 s22, 0x3f803f80
    v_mov_b32 v{T}, 0
    v_mov_b32 v{T+1}, 0
    v_lshlrev_b32 v{T+4}, 3, v2
    s_nop 1
    """)
    for q in range(8): a.e(f"v_cvt_pk_bf16_f32 v{PK+q}, v{ACC+2*q}, v{ACC+2*q+1}")
    lfin = a.lab('op_fin')
    if not isA:
        a.e(f"s_cmp_lg_u32 s33, 0\ns_cbranch_scc1 {lfin}")
    clamp(a, range(PK, PK + 8))
    a.e(f"""
    buffer_store_dwordx4 {vr(PK)}, v1, s[8:11], s20 offen sc1
    buffer_store_dwordx4 {vr(PK+4)}, v1, s[8:11], s20 offen offset:1024 sc1
    """)
    for q in range(8):
        a.e(f"v_dot2_f32_bf16 v{T}, v{PK+q}, s22, v{T}\nv_dot2_f32_bf16 v{T+1}, v{PK+q}, v{PK+q}, v{T+1}")
    a.e(f"""
    s_nop 3
    v_mov_b32 v{T+2}, v{T}
    v_mov_b32 v{T+3}, v{T+1}
    s_nop 1
    v_permlane32_swap_b32 v{T}, v{T+2}
    v_permlane32_swap_b32 v{T+1}, v{T+3}
    s_nop 1
    v_add_f32 v{T}, v{T}, v{T+2}
    v_add_f32 v{T+1}, v{T+1}, v{T+3}
    v_min_u32 v{T}, 0xfffffffe, v{T}
    v_min_u32 v{T+1}, 0xfffffffe, v{T+1}
    s_mov_b32 exec_hi, 0
    buffer_store_dwordx2 v[{T}:{T+1}], v{T+4}, s[8:11], s21 offen sc1
    s_mov_b64 exec, -1
    """)
    if not isA:
        sav = a.lines; a.lines = []
        a.e(f"""
{lfin}:
        s_lshl_b32 s21, s31, 5
        v_add_u32 v{T}, s21, v2
        v_mul_u32_u24 v{T}, 896, v{T}
        v_lshl_add_u32 v{T}, v3, 3, v{T}
        s_lshl_b32 s21, s32, 6
        """)
        for q in range(4): a.e(f"buffer_store_dwordx2 v[{PK+2*q}:{PK+2*q+1}], v{T}, s[12:15], s21 offen offset:{16*q}")
        a.e(f"s_branch {lskip}")
        a.cold.append("\n".join(a.lines)); a.lines = sav
    a.e(f"{lskip}:")

QB = 224
def qkv_b(a):
    XF, AQ, AK, AV, WR, CQ, CK, STT, MU, RS, T = 16, 128, 144, 160, 176, 192, 208, 4, 232, 233, 248
    NWR = 4
    STT = 176 - 0
    a.c("==== QKV_B : head s5, m-tile s6")
    a.e(f"""
    s_mul_i32 s21, s5, 384
    s_add_u32 s21, s21, {L.CSB}
    v_lshlrev_b32 v{T+1}, 4, v3
    v_lshlrev_b32 v{T+2}, 2, v2
    """)
    for q in range(4): a.e(f"buffer_load_dwordx4 {vr(CQ+4*q)}, v{T+1}, s[8:11], s21 offen offset:{q*32}")
    for q in range(4): a.e(f"buffer_load_dwordx4 {vr(CK+4*q)}, v{T+1}, s[8:11], s21 offen offset:{128+q*32}")
    a.e(f"buffer_load_dword v{T+3}, v{T+2}, s[8:11], s21 offen offset:256")
    ST2 = 128
    stats_poll(a, ST2, L.STM, 6, T, T + 1)
    a.stamp(10)
    a.e(f"""
    s_mul_i32 s21, s6, {28*1024}
    s_add_u32 s21, s21, s30
    s_add_u32 s21, s21, {L.XM}
    s_mov_b32 s35, 0
    """)
    frag_loads(a, lambda k: vr(XF + 4 * k), 28, 21)
    a.c("prefetch WOB fragments (consumed two phases later)")
    a.e(f"s_lshl_b32 s20, s36, 15\ns_add_u32 s20, s20, {L.WOB}")
    frag_loads(a, lambda k: ar(AWO + 4 * k), 32, 20)
    stats_finish(a, ST2, MU, RS, T + 5)
    a.e(f"""
    v_mul_f32 v{T+5}, v{MU}, v{RS}
    s_lshl_b32 s20, s3, 8
    s_add_u32 s20, s20, {LSM}
    v_lshl_add_u32 v{T+6}, v2, 2, s20
    v_lshl_add_u32 v{T+7}, v3, 4, s20
    ds_write_b32 v{T+6}, v{RS}
    ds_write_b32 v{T+6}, v{T+5} offset:128
    v_add_u32 v{T+4}, {56*1024}, v1
    """)
    lmm, lredo, lok = a.lab('qb_mm'), a.lab('qb_redo'), a.lab('qb_ok')
    a.e(f"{lmm}:")
    seq = [(k, p) for k in range(28) for p in range(3)]
    def rd(idx):
        k, p = seq[idx]; o = (p * 28 + k) * 1024
        if o >= 56 * 1024: a.e(f"ds_read_b128 {vr(WR+4*(idx%NWR))}, v{T+4} offset:{o-56*1024}")
        else: a.e(f"ds_read_b128 {vr(WR+4*(idx%NWR))}, v1 offset:{o}")
    for idx in range(NWR - 1): rd(idx)
    for idx, (k, p) in enumerate(seq):
        if idx + NWR - 1 < len(seq): rd(idx + NWR - 1)
        rem = min(NWR - 1, len(seq) - 1 - idx)
        if p == 0: a.e(f"s_waitcnt vmcnt({27-k+32}) lgkmcnt({rem})")
        else: a.e(f"s_waitcnt lgkmcnt({rem})")
        acc = [AQ, AK, AV][p]; w = vr(WR + 4 * (idx % NWR)); x = vr(XF + 4 * k)
        cc = '0' if k == 0 else vr(acc, 16)
        if p < 2: a.e(f"{MF} {vr(acc,16)}, {w}, {x}, {cc}")
        else: a.e(f"{MF} {vr(acc,16)}, {x}, {w}, {cc}")
    a.stamp(11)
    if a.INSTR: a.e("s_waitcnt lgkmcnt(0)")
    RSr, MRr = 176, 4
    a.c("a not-yet-arrived x word (sentinel = bf16 NaN pair) poisons the row: any NaN -> re-load coherently, validate, redo")
    a.e(f"""
    v_mul_f32 v{T+5}, {fbits(QS)}, v{RS}
    s_nop 7
    v_cmp_u_f32 vcc, v{AQ}, v{AQ}
    s_nop 1
    s_cmp_lg_u64 vcc, 0
    s_cbranch_scc1 {lredo}
{lok}:
    """)
    sav = a.lines; a.lines = []
    lr2 = a.lab('qb_r2')
    a.e(f"""
{lredo}:
    s_cmp_lg_u32 s35, 0
    s_cbranch_scc1 {lok}
{lr2}:
    s_add_u32 s35, s35, 1
    s_cmp_ge_u32 s35, {SPIN}
    s_cbranch_scc1 {lmm}
    """)
    frag_loads(a, lambda k: vr(XF + 4 * k), 28, 21, 'sc1')
    a.e("s_waitcnt vmcnt(0)")
    check(a, range(XF, XF + 112), T, lr2)
    a.e(f"s_branch {lmm}")
    a.cold.append("\n".join(a.lines)); a.lines = sav
    RSr, MRr = XF, XF + 16
    for q in range(4):
        a.e(f"ds_read_b128 {vr(RSr+4*q)}, v{T+7} offset:{q*32}\nds_read_b128 {vr(MRr+4*q)}, v{T+7} offset:{128+q*32}")
    PKK, PV = XF + 40, XF + 48
    for r in range(16): a.e(f"v_fma_f32 v{AK+r}, v{MU}, v{CK+r}, v{AK+r}")
    for r in range(16): a.e(f"v_mul_f32 v{AK+r}, v{AK+r}, v{RS}")
    for q in range(8): a.e(f"v_cvt_pk_bf16_f32 v{PKK+q}, v{AK+2*q}, v{AK+2*q+1}")
    a.e(f"""
    v_cmp_eq_u32 vcc, 1, v3
    v_cmp_eq_u32 s[24:25], 28, v2
    v_mov_b32 v{T+1}, 0
    v_mov_b32 v{T+4}, 0x3f803f80
    v_mov_b32 v{T+6}, 0x00003f80
    """)
    for q in range(8): a.e(f"v_dot2_f32_bf16 v{T+1}, v{PKK+q}, v{PKK+q}, v{T+1}")
    a.e(f"""
    s_lshl_b32 s20, s5, 17
    s_lshl_b32 s21, s6, 11
    s_add_u32 s20, s20, s21
    s_add_u32 s20, s20, s30
    s_add_u32 s21, s20, {L.KB}
    s_add_u32 s22, s20, {L.VB}
    s_lshl_b32 s20, s3, 12
    s_add_u32 s20, s20, {LSCR + 8*4096}
    v_cndmask_b32 v{PKK+6}, v{PKK+6}, v{T+4}, vcc
    v_cndmask_b32 v{PKK+7}, v{PKK+7}, v{T+6}, vcc
    v_add_u32 v{T+6}, s20, v1
    """)
    clamp(a, range(PKK, PKK + 8))
    a.e(f"""
    buffer_store_dwordx4 {vr(PKK)}, v1, s[8:11], s21 offen sc1
    buffer_store_dwordx4 {vr(PKK+4)}, v1, s[8:11], s21 offen offset:1024 sc1
    s_waitcnt lgkmcnt(0)
    """)
    for r in range(16): a.e(f"v_mul_f32 v{AV+r}, v{AV+r}, v{RSr+r}")
    for r in range(16): a.e(f"v_fma_f32 v{AV+r}, v{T+3}, v{MRr+r}, v{AV+r}")
    for q in range(8): a.e(f"v_cvt_pk_bf16_f32 v{PV+q}, v{AV+2*q}, v{AV+2*q+1}")
    for q in range(8): a.e(f"v_cndmask_b32 v{PV+q}, v{PV+q}, v{T+4}, s[24:25]")
    clamp(a, range(PV, PV + 8))
    a.e(f"""
    buffer_store_dwordx4 {vr(PV)}, v1, s[8:11], s22 offen sc1
    buffer_store_dwordx4 {vr(PV+4)}, v1, s[8:11], s22 offen offset:1024 sc1
    v_mov_b32 v{T+3}, v{T+1}
    s_barrier
    s_nop 0
    v_permlane32_swap_b32 v{T+1}, v{T+3}
    s_nop 1
    v_add_f32 v{T+1}, v{T+1}, v{T+3}
    """)
    row_max16(a, T + 1)
    a.e(f"""
    s_lshl_b32 s20, s5, 4
    s_add_u32 s20, s20, s4
    s_lshl_b32 s20, s20, 7
    s_lshl_b32 s21, s3, 2
    s_add_u32 s20, s20, s21
    s_add_u32 s20, s20, s30
    s_add_u32 s20, s20, {L.KNB}
    v_readlane_b32 s24, v{T+1}, 0
    v_readlane_b32 s25, v{T+1}, 16
    s_add_u32 s21, s21, {LSM + 3072}
    v_mov_b32 v{T+2}, 0
    v_mov_b32 v{T+3}, s21
    s_max_u32 s24, s24, s25
    s_min_u32 s24, s24, 0x7fc00000
    v_mov_b32 v{T}, s24
    s_mov_b64 exec, 1
    buffer_store_dword v{T}, v{T+2}, s[8:11], s20 offen sc1
    ds_write_b32 v{T+3}, v{T}
    s_mov_b64 exec, -1
    ds_write_b128 v{T+6}, {vr(PKK)}
    ds_write_b128 v{T+6}, {vr(PKK+4)} offset:1024
    ds_write_b128 v{T+6}, {vr(PV)} offset:2048
    ds_write_b128 v{T+6}, {vr(PV+4)} offset:3072
    """)
    for r in range(16): a.e(f"v_fma_f32 v{AQ+r}, v{MU}, v{CQ+r}, v{AQ+r}")
    for r in range(16): a.e(f"v_mul_f32 v{AQ+r}, v{AQ+r}, v{T+5}")
    for q in range(8): a.e(f"v_cvt_pk_bf16_f32 v{QB+q}, v{AQ+2*q}, v{AQ+2*q+1}")
    a.e(f"v_mov_b32 v{MU}, 0")
    for q in range(8): a.e(f"v_dot2_f32_bf16 v{MU}, v{QB+q}, v{QB+q}, v{MU}")
    a.e(f"""
    s_nop 3
    v_mov_b32 v{RS}, v{MU}
    s_nop 1
    v_permlane32_swap_b32 v{MU}, v{RS}
    s_nop 1
    v_add_f32 v{MU}, v{MU}, v{RS}
    """)

def attn_b(a):
    QF, QN = QB, 232
    S0, S1, P, O, MHI, MLO, NL, KV, T = 24, 40, 56, 64, 80, 96, 112, 144, 4
    NR = 3
    SS = [S0, S1]
    NEG = fbits(-1e30)
    a.c("==== attention B : head s5, query tile s6; LDS tile slot i = global tile 4g-8+i")
    a.e(f"""
    s_lshl_b32 s20, s5, 4
    s_add_u32 s20, s20, s4
    s_lshl_b32 s20, s20, 7
    s_add_u32 s20, s20, s30
    s_add_u32 s21, s20, {L.KNB - 256}
    v_lshrrev_b32 v{T}, 2, v2
    v_and_b32 v{T}, 1, v{T}
    v_and_b32 v{T+1}, 3, v2
    v_lshlrev_b32 v{T+2}, 7, v{T}
    v_lshl_add_u32 v{T+2}, v{T+1}, 2, v{T+2}
    v_add_u32 v{T+3}, s4, v{T}
    v_cmp_gt_u32 s[26:27], 2, v{T+3}
    v_mov_b32 v{T+4}, 256
    v_lshl_add_u32 v{T+4}, v{T+1}, 2, v{T+4}
    v_cndmask_b32 v{T+2}, v{T+2}, v{T+4}, s[26:27]
    """)
    a.c("mask tiles used as MFMA C operand")
    a.e(f"v_lshlrev_b32 v{T+5}, 2, v3\nv_sub_u32 v{T+5}, v2, v{T+5}\nv_mov_b32 v{T+6}, {NEG}")
    for r in range(16):
        ar_ = (r & 3) + 8 * (r >> 2)
        a.e(f"""
        v_cmp_le_i32 vcc, {ar_}, v{T+5}
        s_nop 1
        v_cndmask_b32 v{MHI+r}, v{T+6}, 0, vcc
        v_cndmask_b32 v{MLO+r}, 0, v{T+6}, vcc
        """)
    a.c("neighbour tiles: this wave fetches slots 2w,2w+1 (clamped at tile 0)")
    a.e(f"""
    s_lshl_b32 s22, s4, 2
    s_lshl_b32 s23, s3, 1
    s_add_u32 s22, s22, s23
    s_sub_i32 s22, s22, 8
    s_max_i32 s22, s22, 0
    s_lshl_b32 s22, s22, 11
    s_lshl_b32 s23, s5, 17
    s_add_u32 s22, s22, s23
    s_add_u32 s22, s22, s30
    s_add_u32 s23, s22, {L.VB}
    s_add_u32 s22, s22, {L.KB}
    s_lshl_b32 s20, s3, 13
    s_add_u32 s20, s20, {LSCR}
    v_add_u32 v{T+7}, s20, v1
    s_min_u32 s28, s6, 8
    """)
    poll(a, lambda: a.e(f"buffer_load_dword v{T+8}, v{T+2}, s[8:11], s21 offen sc1"), [T + 8], T + 9, name='kb')
    a.stamp(12)
    lnn = a.lab('ab_nn')
    a.e(f"""
    s_lshl_b32 s24, s4, 2
    s_lshl_b32 s25, s3, 1
    s_add_u32 s24, s24, s25
    s_cmp_lt_u32 s24, 8
    s_cbranch_scc1 {lnn}
    """)
    def nl(fl=''):
        a.e(f"""
        buffer_load_dwordx4 {vr(NL)}, v1, s[8:11], s22 offen {fl}
        buffer_load_dwordx4 {vr(NL+4)}, v1, s[8:11], s22 offen offset:1024 {fl}
        buffer_load_dwordx4 {vr(NL+8)}, v1, s[8:11], s23 offen {fl}
        buffer_load_dwordx4 {vr(NL+12)}, v1, s[8:11], s23 offen offset:1024 {fl}
        buffer_load_dwordx4 {vr(NL+16)}, v1, s[8:11], s22 offen offset:2048 {fl}
        buffer_load_dwordx4 {vr(NL+20)}, v1, s[8:11], s22 offen offset:3072 {fl}
        buffer_load_dwordx4 {vr(NL+24)}, v1, s[8:11], s23 offen offset:2048 {fl}
        buffer_load_dwordx4 {vr(NL+28)}, v1, s[8:11], s23 offen offset:3072 {fl}
        """)
    nl()
    a.e("s_waitcnt vmcnt(0)")
    validated(a, lambda: nl('sc1'), range(NL, NL + 32), T + 9, 'nb')
    for k in range(8): a.e(f"ds_write_b128 v{T+7}, {vr(NL+4*k)} offset:{k*1024}")
    a.e(f"""
{lnn}:
    v_mov_b32 v{T+9}, {LSM + 3072}
    s_lshl_b32 s20, s3, 12
    s_add_u32 s20, s20, {LSCR + 8*4096}
    v_add_u32 v{T+7}, s20, v1
    s_waitcnt lgkmcnt(0)
    s_barrier
    ds_read_b128 {vr(NL)}, v{T+9}
    """)
    a.e(f"v_subrev_u32 v{T+7}, {8*4096}, v{T+7}")
    def rdt(k):
        for q in range(4): a.e(f"ds_read_b128 {vr(KV+16*(k%NR)+4*q)}, v{T+7} offset:{(8-k)*4096+q*1024}")
    a.c("Kmax over the two neighbour blocks and the own block (superset of the window)")
    row_max16(a, T + 8)
    a.e(f"""
    s_waitcnt lgkmcnt(0)
    v_max3_f32 v{T+8}, v{T+8}, v{NL}, v{NL+1}
    v_max3_f32 v{T+8}, v{T+8}, v{NL+2}, v{NL+3}
    s_nop 0
    v_readfirstlane_b32 s24, v{T+8}
    s_mov_b32 exec_lo, 0
    s_nop 1
    v_mul_f32 v{T}, s24, v{QN}
    v_sqrt_f32 v{T}, v{T}
    s_nop 0
    v_mul_f32 v{T}, {fbits(1.02)}, v{T}
    """)
    c_pieces(a, T, T + 1, QF + 6, QF + 7)
    a.e("s_mov_b64 exec, -1\ns_mov_b32 s29, 0")
    lmain, lfin, lslow, lnorm = a.lab('ab_main'), a.lab('ab_fin'), a.lab('ab_slow'), a.lab('ab_norm')
    a.e(f"{lmain}:")
    rdt(0); rdt(1)
    for r in range(16): a.e(f"v_mov_b32 v{O+r}, 0")
    def cmask(k): return vr(MHI, 16) if k == 0 else (vr(MLO, 16) if k == 8 else '0')
    def kvb(k): return KV + 16 * (k % NR)
    a.e(f"""
    s_waitcnt lgkmcnt(4)
    {MF} {vr(S0,16)}, {vr(kvb(0))}, {vr(QF)}, {cmask(0)}
    {MF} {vr(S0,16)}, {vr(kvb(0)+4)}, {vr(QF+4)}, {vr(S0,16)}
    s_nop 7
    s_nop 3
    """)
    stubs = []
    for k in range(9):
        sb = SS[k & 1]; sn = SS[(k + 1) & 1]
        def ex(i0):
            for i in range(i0, i0 + 4): a.e(f"v_exp_f32 v{sb+i}, v{sb+i}")
        def cv(j0):
            for jx in (j0, j0 + 1): a.e(f"v_cvt_pk_bf16_f32 v{P+jx}, v{sb+2*jx}, v{sb+2*jx+1}")
        ex(0)
        if k < 8:
            a.e("s_waitcnt lgkmcnt(0)")
            a.e(f"{MF} {vr(sn,16)}, {vr(kvb(k+1))}, {vr(QF)}, {cmask(k+1)}")
        cv(0); ex(4)
        if k < 8: a.e(f"{MF} {vr(sn,16)}, {vr(kvb(k+1)+4)}, {vr(QF+4)}, {vr(sn,16)}")
        cv(2); ex(8)
        if k > 0: a.e(f"{MF} {vr(O,16)}, {vr(kvb(k-1)+12)}, {vr(P+4)}, {vr(O,16)}")
        cv(4)
        if k + 2 <= 8: rdt(k + 2)
        ex(12)
        a.e(f"{MF} {vr(O,16)}, {vr(kvb(k)+8)}, {vr(P)}, {vr(O,16)}")
        cv(6)
        if k < 8:
            st = a.lab('ab_x'); stubs.append((st, k))
            a.e(f"s_cmp_eq_u32 s28, {k}\ns_cbranch_scc1 {st}")
        else:
            a.e(f"s_nop 1\n{MF} {vr(O,16)}, {vr(kvb(k)+12)}, {vr(P+4)}, {vr(O,16)}")
    a.e(f"{lfin}:")
    a.stamp(13)
    a.e(f"""
    s_lshl_b32 s20, s6, 15
    s_lshl_b32 s21, s5, 11
    s_add_u32 s20, s20, s21
    s_add_u32 s20, s20, s30
    s_add_u32 s20, s20, {L.OB}
    s_lshl_b32 s21, s6, 11
    s_lshl_b32 s22, s5, 7
    s_add_u32 s21, s21, s22
    s_add_u32 s21, s21, s30
    s_add_u32 s21, s21, {L.HOB}
    s_mov_b32 s22, {fbits(THR)}
    v_mov_b32 v{T+4}, 0
    s_waitcnt lgkmcnt(0)
    v_mov_b32 v{T+2}, v{O+12}
    v_mov_b32 v{T+3}, v{O+12}
    s_nop 1
    v_permlane32_swap_b32 v{T+2}, v{T+3}
    s_nop 1
    v_cmp_gt_f32 vcc, s22, v{T+3}
    s_nop 1
    s_cmp_lg_u64 vcc, 0
    s_cbranch_scc1 {lslow}
{lnorm}:
    v_rcp_f32 v{T+3}, v{T+3}
    s_nop 0
    """)
    for r in range(16): a.e(f"v_mul_f32 v{O+r}, v{O+r}, v{T+3}")
    for q in range(8): a.e(f"v_cvt_pk_bf16_f32 v{P+q}, v{O+2*q}, v{O+2*q+1}")
    clamp(a, range(P, P + 8))
    a.e(f"""
    buffer_store_dwordx4 {vr(P)}, v1, s[8:11], s20 offen sc1
    buffer_store_dwordx4 {vr(P+4)}, v1, s[8:11], s20 offen offset:1024 sc1
    s_mov_b64 exec, 1
    buffer_store_dword v{T+4}, v{T+4}, s[8:11], s21 offen sc1
    s_mov_b64 exec, -1
    """)
    sav = a.lines; a.lines = []
    for st, k in stubs:
        a.e(f"{st}:\n{MF} {vr(O,16)}, {vr(kvb(k)+12)}, {vr(P+4)}, {vr(O,16)}\ns_branch {lfin}")
    lsm = a.lab('ab_sm')
    a.e(f"""
{lslow}:
    s_cmp_lg_u32 s29, 0
    s_cbranch_scc1 {lnorm}
    """)
    a.c("exact fallback: true (masked) row max, then rerun")
    a.e(f"""
    v_cmp_eq_u32 vcc, 1, v3
    v_mov_b32 v{T}, 0xff800000
    s_mov_b32 s29, 1
    v_cndmask_b32 v{QF+6}, v{QF+6}, 0, vcc
    v_cndmask_b32 v{QF+7}, v{QF+7}, 0, vcc
    """)
    for k in range(9):
        a.e(f"""
        ds_read_b128 {vr(KV)}, v{T+7} offset:{(8-k)*4096}
        ds_read_b128 {vr(KV+4)}, v{T+7} offset:{(8-k)*4096+1024}
        s_waitcnt lgkmcnt(0)
        {MF} {vr(S0,16)}, {vr(KV)}, {vr(QF)}, {cmask(k)}
        {MF} {vr(S0,16)}, {vr(KV+4)}, {vr(QF+4)}, {vr(S0,16)}
        s_nop 15
        """)
        for r in range(0, 16, 2): a.e(f"v_max3_f32 v{T}, v{T}, v{S0+r}, v{S0+r+1}")
        if k < 8: a.e(f"s_cmp_eq_u32 s28, {k}\ns_cbranch_scc1 {lsm}")
    a.e(f"""
{lsm}:
    v_mov_b32 v{T+1}, v{T}
    s_nop 1
    v_permlane32_swap_b32 v{T}, v{T+1}
    s_nop 1
    v_max_f32 v{T}, v{T}, v{T+1}
    s_mov_b32 exec_lo, 0
    """)
    c_pieces(a, T, T + 1, QF + 6, QF + 7)
    a.e(f"s_mov_b64 exec, -1\ns_branch {lmain}")
    a.cold.append("\n".join(a.lines)); a.lines = sav
```

```python
from asm import *
NFILL_QA = 64
P3 = L.ARENA - L.OA
NFILL_P3 = (P3 + 32767) // 32768
NFILL = NFILL_QA + NFILL_P3
NPREP = 832 + NFILL
def gen_prep(a):
    a.begin('prep_kernel', NPREP, vgpr=48, lds=2048, sgpr=64)
    a.e(f"""
    s_cmp_ge_u32 s2, {NPREP}
    s_cbranch_scc1 P_done
    s_load_dwordx16 s[16:31], s[0:1], 0
    s_load_dwordx2 s[32:33], s[0:1], 80
    v_and_b32 v1, 63, v0
    v_lshrrev_b32 v4, 6, v0
    v_and_b32 v2, 31, v0
    v_bfe_u32 v3, v0, 5, 1
    v_readfirstlane_b32 s3, v4
    v_lshlrev_b32 v5, 4, v1
    v_mov_b32 v8, 0
    v_mov_b32 v9, 0
    v_mov_b32 v16, 0
    v_mov_b32 v17, 0
    v_mov_b32 v18, 0
    v_mov_b32 v19, 0
    v_mov_b32 v20, 0
    v_mov_b32 v21, 0
    v_mov_b32 v22, 0
    v_mov_b32 v23, 0
    s_waitcnt lgkmcnt(0)
    """)
    a.srd(8, 32, L.TOTAL)
    a.e(f"""
    s_cmp_lt_u32 s2, {NFILL}
    s_cbranch_scc1 P_fill
    s_sub_u32 s2, s2, {NFILL}
    s_lshl_b32 s4, s2, 2
    s_add_u32 s4, s4, s3
    """)
    a.e("""
    s_cmp_ge_u32 s2, 800
    s_cbranch_scc1 P_pads
    s_cmp_ge_u32 s2, 736
    s_cbranch_scc1 P_x0
    s_cmp_ge_u32 s2, 672
    s_cbranch_scc1 P_cs
    s_cmp_ge_u32 s2, 336
    s_cbranch_scc1 P_wb
    """)
    for t in range(8): a.e(f"s_mov_b32 s{40+t}, {(8*(t>>2)+(t&3))*896}")
    a.e("""
    s_cmp_ge_u32 s2, 112
    s_cbranch_scc1 P_wo
    """)
    def gather(srd, voff, use_s=True, ld=56):
        for t in range(8):
            op = 'buffer_load_ushort'
            if use_s: a.e(f"{op} v{16+t}, v{voff}, s[{srd}:{srd+3}], s{40+t} offen")
            else: a.e(f"{op} v{16+t}, v{voff}, s[{srd}:{srd+3}], 0 offen offset:{(8*(t>>2)+(t&3))*ld}")
    PACK = "\n".join(f"v_lshl_or_b32 v{8+q}, v{17+2*q}, 16, v{16+2*q}" for q in range(4))
    a.c("WQA fragments: task=s4 -> j=s5, ks=s6")
    a.e("""
    s_mul_i32 s5, s4, 2341
    s_lshr_b32 s5, s5, 16
    s_mul_i32 s6, s5, 28
    s_sub_u32 s6, s4, s6
    """)
    a.srd(12, 18, 448 * 896)
    a.e(f"""
    s_lshl_b32 s7, s6, 4
    v_lshl_add_u32 v6, v3, 2, s7
    s_mul_i32 s34, s5, 56
    v_mul_u32_u24 v7, 896, v6
    v_lshl_add_u32 v7, v2, 1, v7
    v_add_u32 v7, s34, v7
    v_cmp_gt_u32 vcc, 28, v2
    s_and_saveexec_b64 s[36:37], vcc
    """)
    gather(12, 7)
    a.e(f"""
    s_andn2_b64 exec, s[36:37], exec
    s_cmp_ge_u32 s5, 14
    s_cbranch_scc1 P_wqa_st
    s_cmp_ge_u32 s5, 7
    s_cbranch_scc1 P_wqa_v
    s_mov_b32 s12, s20
    s_mov_b32 s13, s21
    s_lshl_b32 s34, s5, 3
    s_branch P_wqa_kv
P_wqa_v:
    s_mov_b32 s12, s22
    s_mov_b32 s13, s23
    s_sub_u32 s34, s5, 7
    s_lshl_b32 s34, s34, 3
P_wqa_kv:
    s_mov_b32 s14, {448*56}
    s_mov_b32 s15, 0x00020000
    s_sub_u32 s34, s34, 56
    v_mul_u32_u24 v7, 56, v6
    v_lshl_add_u32 v7, v2, 1, v7
    v_add_u32 v7, s34, v7
    """)
    gather(12, 7, use_s=False)
    a.e(f"""
P_wqa_st:
    s_mov_b64 exec, s[36:37]
    s_lshl_b32 s34, s4, 10
    s_add_u32 s34, s34, {L.WQA}
    s_waitcnt vmcnt(0)
    {PACK}
    buffer_store_dwordx4 v[8:11], v5, s[8:11], s34 offen
    s_endpgm
    """)
    a.e(f"""
P_wo:
    s_sub_u32 s4, s4, 448
    s_cmp_ge_u32 s2, 224
    s_cbranch_scc1 P_wob
    s_mov_b32 s12, s24
    s_mov_b32 s13, s25
    s_mov_b32 s35, {L.WOA}
    s_branch P_wo2
P_wob:
    s_sub_u32 s4, s4, 448
    s_mov_b32 s12, s30
    s_mov_b32 s13, s31
    s_mov_b32 s35, {L.WOB}
P_wo2:
    s_mov_b32 s14, {448*896}
    s_mov_b32 s15, 0x00020000
    s_lshr_b32 s5, s4, 5
    s_and_b32 s6, s4, 31
    s_lshr_b32 s7, s6, 1
    s_mul_i32 s7, s7, 28
    s_and_b32 s34, s6, 1
    s_lshl_b32 s38, s34, 4
    s_add_u32 s7, s7, s38
    v_lshl_add_u32 v6, v3, 2, s7
    v_mul_u32_u24 v7, 896, v6
    v_lshl_add_u32 v7, v2, 1, v7
    s_lshl_b32 s38, s5, 6
    v_add_u32 v7, s38, v7
    """)
    gather(12, 7)
    a.e(f"""
    v_and_b32 v6, s34, v3
    v_cmp_eq_u32 vcc, 0, v6
    s_lshl_b32 s34, s4, 10
    s_add_u32 s34, s34, s35
    s_waitcnt vmcnt(0)
    {PACK}
    v_cndmask_b32 v10, 0, v10, vcc
    v_cndmask_b32 v11, 0, v11, vcc
    buffer_store_dwordx4 v[8:11], v5, s[8:11], s34 offen
    s_endpgm
    """)
    a.e("P_wb:")
    for t in range(8): a.e(f"s_mov_b32 s{40+t}, {(8*(t>>2)+(t&3))*2688}")
    a.srd(12, 28, 448 * 2688)
    a.e(f"""
    s_sub_u32 s4, s4, 1344
    s_mul_i32 s5, s4, 2341
    s_lshr_b32 s5, s5, 16
    s_mul_i32 s6, s5, 28
    s_sub_u32 s6, s4, s6
    s_mul_i32 s7, s5, 21846
    s_lshr_b32 s7, s7, 16
    s_mul_i32 s34, s7, 3
    s_sub_u32 s34, s5, s34
    s_mul_i32 s34, s34, 896
    s_mul_i32 s7, s7, 56
    s_add_u32 s34, s34, s7
    s_lshl_b32 s7, s6, 4
    v_lshl_add_u32 v6, v3, 2, s7
    v_mul_u32_u24 v7, 2688, v6
    v_lshl_add_u32 v7, v2, 1, v7
    v_add_u32 v7, s34, v7
    v_cmp_gt_u32 vcc, 28, v2
    s_and_saveexec_b64 s[36:37], vcc
    """)
    gather(12, 7)
    a.e(f"""
    s_mov_b64 exec, s[36:37]
    s_lshl_b32 s34, s4, 10
    s_add_u32 s34, s34, {L.WB}
    s_waitcnt vmcnt(0)
    {PACK}
    buffer_store_dwordx4 v[8:11], v5, s[8:11], s34 offen
    s_endpgm
    """)
    a.e(f"""
P_cs:
    s_sub_u32 s5, s2, 672
    v_and_b32 v2, 15, v0
    v_lshrrev_b32 v3, 4, v0
    v_mul_u32_u24 v3, 28, v3
    """)
    for t in range(28): a.e(f"v_mov_b32 v{16+t}, 0")
    a.e(f"""
    s_cmp_ge_u32 s5, 16
    s_cbranch_scc1 P_cs_b
    """)
    a.srd(12, 18, 448 * 896)
    a.e(f"""
    s_mul_i32 s34, s5, 56
    v_mul_u32_u24 v7, 896, v3
    v_lshl_add_u32 v7, v2, 2, v7
    v_add_u32 v7, s34, v7
    s_mov_b32 s38, 0
    v_cmp_gt_u32 vcc, 14, v2
    s_and_saveexec_b64 s[36:37], vcc
    """)
    for t in range(28):
        a.e(f"buffer_load_dword v{16+t}, v7, s[12:15], s38 offen offset:{(t%4)*896}")
        if t % 4 == 3: a.e("s_add_u32 s38, s38, 3584")
    a.e(f"""
    s_andn2_b64 exec, s[36:37], exec
    s_lshl_b32 s35, s5, 7
    s_add_u32 s35, s35, {L.CSA}
    s_cmp_ge_u32 s5, 14
    s_cbranch_scc1 P_cs_red
    s_cmp_ge_u32 s5, 7
    s_cbranch_scc1 P_cs_v
    s_mov_b32 s12, s20
    s_mov_b32 s13, s21
    s_lshl_b32 s34, s5, 3
    s_branch P_cs_kv
P_cs_v:
    s_mov_b32 s12, s22
    s_mov_b32 s13, s23
    s_sub_u32 s34, s5, 7
    s_lshl_b32 s34, s34, 3
P_cs_kv:
    s_mov_b32 s14, {448*56}
    s_mov_b32 s15, 0x00020000
    s_sub_u32 s34, s34, 56
    v_mul_u32_u24 v7, 56, v3
    v_lshl_add_u32 v7, v2, 2, v7
    v_add_u32 v7, s34, v7
    """)
    for t in range(28):
        a.e(f"buffer_load_dword v{16+t}, v7, s[12:15], 0 offen offset:{t*56}")
    a.e(f"""
    s_branch P_cs_red
P_cs_b:
    s_sub_u32 s5, s5, 16
    """)
    a.srd(12, 28, 448 * 2688)
    a.e(f"""
    s_mul_i32 s7, s5, 21846
    s_lshr_b32 s7, s7, 16
    s_mul_i32 s34, s7, 3
    s_sub_u32 s34, s5, s34
    s_mul_i32 s34, s34, 896
    s_mul_i32 s7, s7, 56
    s_add_u32 s34, s34, s7
    s_mov_b32 s7, 2688
    v_mul_lo_u32 v7, s7, v3
    v_lshl_add_u32 v7, v2, 2, v7
    v_add_u32 v7, s34, v7
    s_lshl_b32 s35, s5, 7
    s_add_u32 s35, s35, {L.CSB}
    s_mov_b32 s38, 0
    v_cmp_gt_u32 vcc, 14, v2
    s_and_saveexec_b64 s[36:37], vcc
    """)
    for t in range(28):
        a.e(f"buffer_load_dword v{16+t}, v7, s[12:15], s38 offen offset:{(t%2)*2688}")
        if t % 2 == 1: a.e("s_add_u32 s38, s38, 5376")
    a.e(f"""
P_cs_red:
    s_mov_b64 exec, s[36:37]
    v_mov_b32 v8, 0
    v_mov_b32 v9, 0
    s_waitcnt vmcnt(0)
    """)
    for t in range(28):
        a.e(f"""
        v_lshlrev_b32 v10, 16, v{16+t}
        v_and_b32 v11, 0xffff0000, v{16+t}
        v_add_f32 v8, v8, v10
        v_add_f32 v9, v9, v11
        """)
    a.e(f"""
    v_lshlrev_b32 v6, 3, v0
    ds_write_b64 v6, v[8:9]
    s_waitcnt lgkmcnt(0)
    s_barrier
    v_cmp_gt_u32 vcc, 32, v0
    s_and_saveexec_b64 s[36:37], vcc
    s_cbranch_execz P_done
    v_lshlrev_b32 v6, 2, v0
    """)
    for t in range(16): a.e(f"ds_read_b32 v{16+t}, v6 offset:{t*128}")
    a.e("s_waitcnt lgkmcnt(0)")
    for t in range(1, 16): a.e(f"v_add_f32 v16, v16, v{16+t}")
    a.e(f"""
    buffer_store_dword v16, v6, s[8:11], s35 offen
    s_endpgm
    """)
    a.e(f"""
P_x0:
    s_sub_u32 s5, s2, 736
    """)
    a.srd(12, 16, S * 896)
    a.e(f"""
    s_lshl_b32 s6, s5, 5
    v_add_u32 v6, s6, v2
    v_mul_u32_u24 v7, 896, v6
    v_lshl_add_u32 v7, v3, 3, v7
    s_mul_i32 s7, s3, 224
    """)
    for q in range(7):
        a.e(f"buffer_load_dwordx2 v[{16+4*q}:{17+4*q}], v7, s[12:15], s7 offen offset:{32*q}")
        a.e(f"buffer_load_dwordx2 v[{18+4*q}:{19+4*q}], v7, s[12:15], s7 offen offset:{32*q+16}")
    a.e(f"""
    s_mul_i32 s34, s5, {28*1024}
    s_mul_i32 s35, s3, {7*1024}
    s_add_u32 s34, s34, s35
    s_add_u32 s34, s34, {A(0, L.XIN)}
    s_add_u32 s35, s34, 4096
    s_mov_b32 s38, 0x3f803f80
    s_waitcnt vmcnt(0)
    """)
    for q in range(7):
        so = 's34' if q < 4 else 's35'
        a.e(f"buffer_store_dwordx4 v[{16+4*q}:{19+4*q}], v5, s[8:11], {so} offen offset:{(q%4)*1024}")
    for r in range(28):
        a.e(f"v_dot2_f32_bf16 v8, v{16+r}, s38, v8\nv_dot2_f32_bf16 v9, v{16+r}, v{16+r}, v9")
    a.e(f"""
    s_nop 3
    v_mov_b32 v10, v8
    v_mov_b32 v11, v9
    s_nop 1
    v_permlane32_swap_b32 v8, v10
    v_permlane32_swap_b32 v9, v11
    s_nop 1
    v_add_f32 v8, v8, v10
    v_add_f32 v9, v9, v11
    v_cmp_eq_u32 vcc, 0, v3
    v_lshlrev_b32 v6, 3, v2
    v_lshl_add_u32 v6, v3, 10, v6
    v_cndmask_b32 v8, 0, v8, vcc
    v_cndmask_b32 v9, 0, v9, vcc
    v_mov_b32 v10, 0
    v_mov_b32 v11, 0
    s_lshl_b32 s34, s5, 12
    s_lshl_b32 s35, s3, 8
    s_add_u32 s34, s34, s35
    s_add_u32 s34, s34, {A(0, L.STIN)}
    buffer_store_dwordx2 v[8:9], v6, s[8:11], s34 offen
    buffer_store_dwordx2 v[10:11], v6, s[8:11], s34 offen offset:2048
    s_endpgm
    """)
    a.e(f"""
P_pads:
    s_sub_u32 s4, s4, 3200
    s_lshr_b32 s5, s4, 6
    s_and_b32 s6, s4, 63
    s_mul_i32 s7, s5, {L.ARENA}
    s_lshl_b32 s36, s6, 7
    s_add_u32 s36, s36, s7
    s_add_u32 s36, s36, {A(0, L.KNA)}
    s_lshl_b32 s6, s6, 11
    s_add_u32 s6, s6, s7
    s_add_u32 s34, s6, {A(0, L.KA)}
    s_add_u32 s35, s6, {A(0, L.VA)}
    v_mov_b32 v8, -1
    v_mov_b32 v9, -1
    v_mov_b32 v10, -1
    v_mov_b32 v11, -1
    v_cmp_eq_u32 vcc, 1, v3
    v_mov_b32 v16, 0x3f803f80
    v_mov_b32 v17, 0x00003f80
    v_mov_b32 v12, -1
    v_mov_b32 v13, -1
    v_cndmask_b32 v14, v8, v16, vcc
    v_cndmask_b32 v15, v8, v17, vcc
    buffer_store_dwordx4 v[8:11], v5, s[8:11], s34 offen
    buffer_store_dwordx4 v[12:15], v5, s[8:11], s34 offen offset:1024
    v_cmp_eq_u32 vcc, 28, v2
    v_cmp_lt_u32 s[38:39], 28, v2
    s_nop 1
    v_cndmask_b32 v18, v8, v16, vcc
    s_nop 0
    v_cndmask_b32 v18, v18, 0, s[38:39]
    v_mov_b32 v19, v18
    v_mov_b32 v20, v18
    v_mov_b32 v21, v18
    buffer_store_dwordx4 v[18:21], v5, s[8:11], s35 offen
    buffer_store_dwordx4 v[18:21], v5, s[8:11], s35 offen offset:1024
    v_and_b32 v6, 3, v1
    v_cmp_gt_u32 vcc, 3, v6
    v_lshlrev_b32 v6, 4, v6
    v_lshrrev_b32 v7, 2, v1
    v_lshl_add_u32 v6, v7, 13, v6
    v_cndmask_b32 v14, 0, v8, vcc
    v_cndmask_b32 v15, 0, v8, vcc
    buffer_store_dwordx4 v[12:15], v6, s[8:11], s36 offen
    s_endpgm
P_fill:
    v_mov_b32 v8, -1
    v_mov_b32 v9, -1
    v_mov_b32 v10, -1
    v_mov_b32 v11, -1
    v_lshlrev_b32 v6, 4, v0
    s_lshl_b32 s34, s2, 15
    s_add_u32 s35, s34, {A(0, L.OA) - NFILL_QA * 32768}
    s_add_u32 s34, s34, {A(0, L.QA)}
    s_cmp_lt_u32 s2, {NFILL_QA}
    s_cselect_b32 s34, s34, s35
    s_mov_b32 s10, {A(0, L.ARENA)}
    """)
    for k in range(8):
        a.e(f"buffer_store_dwordx4 v[8:11], v6, s[8:11], s34 offen sc1\ns_add_u32 s34, s34, 4096")
    a.e("""
P_done:
    s_endpgm
    """)
```

```python
import sys, os
from asm import *
from prep import *
from phases import *
a = Asm()
a.cold = []
if os.environ.get('INSTR'): Asm.INSTR = True
gen_prep(a)
a.begin('main_kernel', 256, vgpr=256, agpr=240, lds=LDS_TOTAL, sgpr=100)
entry(a, 'M_done')
a.e("M_pair:")
qkv_a(a)
attn_a(a)
out_proj(a, 'A', 8)
qkv_b(a)
attn_b(a)
out_proj(a, 'B', 14)
if Asm.INSTR:
    a.stamp_out(16)
a.e(f"""
    s_cmp_lg_u32 s33, 0
    s_cbranch_scc1 M_done
    s_mov_b32 s33, 1
    s_add_u32 s30, s30, {L.ARENA}
    s_mov_b32 s50, 0
    s_branch M_pair
""")
for c in a.cold: a.e(c)
a.e("M_done:\ns_endpgm")
open(sys.argv[1], 'w').write(a.text())
```

```python
from common import *
class Asm:
    def __init__(self):
        self.lines = []; self.kernels = []; self.launches = []; self.uid = 0
    def e(self, s):
        for ln in s.strip('\n').split('\n'):
            ln = ln.strip()
            if not ln: continue
            if ln.endswith(':') or ln.startswith('.'): self.lines.append(ln)
            else: self.lines.append('    ' + ln)
    INSTR = False
    SEL = None
    def stamp(self, n):
        if not self.INSTR: return
        if isinstance(n, str):
            if n not in self.SEL: return
            n = self.SEL.index(n)
        self.e(f"s_memrealtime s[{64+2*n}:{65+2*n}]")
    def cstamp(self, n):
        if self.INSTR: self.e(f"s_memtime s[{64+2*(n+10)}:{65+2*(n+10)}]")
    def stamp_out(self, n, wg=0):
        if not self.INSTR: return
        self.e(f'''
        s_memrealtime s[{64+2*15}:{65+2*15}]
        s_lshl_b32 s61, s33, 8
        s_add_u32 s61, s61, s2
        s_lshl_b32 s61, s61, 2
        s_add_u32 s61, s61, s3
        s_lshl_b32 s61, s61, 7
        s_add_u32 s61, s61, {L.DUMMY + (4 << 20)}
        v_mov_b32 v5, 0
        s_waitcnt lgkmcnt(0)
        s_mov_b64 exec, 1
        ''')
        for i in range(18):
            self.e(f"v_mov_b32 v4, s{64+2*i}\nbuffer_store_dword v4, v5, s[8:11], s61 offen offset:{4*i}")
        self.e("s_mov_b64 exec, -1")
    def c(self, s): self.lines.append('    ; ' + s)
    def lab(self, base):
        self.uid += 1; return f"L_{base}_{self.uid}"
    def begin(self, name, grid, vgpr, agpr=0, lds=0, block=256, sgpr=96):
        self.e(f".globl {name}\n.p2align 8\n.type {name},@function\n{name}:")
        self.kernels.append((name, vgpr, agpr, sgpr))
        self.launches.append((name, grid, block, lds))
    def relaunch(self, name, grid, lds=0, block=256):
        self.launches.append((name, grid, block, lds))
    def srd(self, d, lo, nbytes):
        self.e(f"s_mov_b32 s{d}, s{lo}\ns_mov_b32 s{d+1}, s{lo+1}\ns_mov_b32 s{d+2}, {nbytes}\ns_mov_b32 s{d+3}, 0x00020000")
    def text(self, header=''):
        out = [header] if header else []
        for (n, g, b, l) in self.launches:
            out.append(f"; @launch kernel={n} grid=({g},1,1) block=({b},1,1) lds={l}")
        out.append('.amdgcn_target "amdgcn-amd-amdhsa--gfx950"\n.text')
        out += self.lines
        out.append('.section .rodata,"a"')
        for (n, v, a, sg) in self.kernels:
            acc = (v + 3) // 4 * 4
            nfv = acc + a if a else v
            out.append(f""".p2align 6
.amdhsa_kernel {n}
  .amdhsa_next_free_vgpr {nfv}
  .amdhsa_next_free_sgpr {sg}
  .amdhsa_accum_offset {acc}
  .amdhsa_group_segment_fixed_size 0
  .amdhsa_kernarg_size 88
  .amdhsa_user_sgpr_count 2
  .amdhsa_user_sgpr_kernarg_segment_ptr 1
  .amdhsa_system_sgpr_workgroup_id_x 1
.end_amdhsa_kernel""")
        return "\n".join(out) + "\n"
```

```python
S, D, H, DH = 2048, 448, 16, 28
NMT = 64
def al(x, a=4096): return (x + a - 1) // a * a
class L: pass
off = 0
def alloc(n):
    global off
    o = off; off = al(off + n); return o
L.WQA = alloc(16 * 28 * 1024)
L.WOA = alloc(14 * 32 * 1024)
L.WOB = alloc(14 * 32 * 1024)
L.WB  = alloc(48 * 28 * 1024)
L.CSA = alloc(16 * 32 * 4)
L.CSB = alloc(48 * 32 * 4)
L.ARENA0 = off
off = 0
L.STIN = alloc(NMT * 16 * 256)
L.STM  = alloc(NMT * 16 * 256)
L.HOA  = alloc(256 * 128)
L.HOB  = alloc(NMT * 16 * 128)
L.KNB  = alloc(256 * 128)
L.KA   = alloc(64 * 2048)
L.VA   = alloc(64 * 2048)
L.KNA  = alloc(16 * 64 * 128)
L.HEND = off
L.QA   = alloc(256 * 8192)
L.XIN  = alloc(NMT * 28 * 1024)
L.OA   = alloc(NMT * 32 * 1024)
L.XM   = alloc(NMT * 28 * 1024)
L.KB   = alloc(16 * 64 * 2048)
L.VB   = alloc(16 * 64 * 2048)
L.OB   = alloc(NMT * 32 * 1024)
L.ARENA = off
L.DUMMY = L.ARENA0 + 2 * L.ARENA
L.TOTAL = L.DUMMY + L.ARENA
def A(li, o): return L.ARENA0 + li * L.ARENA + o
if __name__ == '__main__':
    for k, v in vars(L).items():
        if not k.startswith('_'): print(k, v)
```

```python
from asm import *
import math, struct
QS = (28 ** -0.5) * math.log2(math.e)
def fbits(x): return '0x%08x' % struct.unpack('<I', struct.pack('<f', x))[0]
MF = 'v_mfma_f32_32x32x16_bf16'
def vr(b, n=4): return f"v[{b}:{b+n-1}]"
def ar(b, n=4): return f"a[{b}:{b+n-1}]"
THR = 2.0 ** -80
SPIN = 1 << 16
LWB = 0
LSCR = 84 * 1024
LSM = 148 * 1024
LKV = 152 * 1024
LDS_TOTAL = 153 * 1024
XRES = 240
AWQ, AWO = 0, 112
VQA, VOA = 236, 237
import os
WOA_MODE = os.environ.get('WOA_MODE', 'peel')
WOB_MODE = os.environ.get('WOB_MODE', 'units')

def check(a, regs, t, fail):
    regs = list(regs)
    if len(regs) == 1: src = regs[0]
    else:
        if len(regs) == 2: a.e(f"v_max_u32 v{t}, v{regs[0]}, v{regs[1]}"); rest = []
        else: a.e(f"v_max3_u32 v{t}, v{regs[0]}, v{regs[1]}, v{regs[2]}"); rest = regs[3:]
        while rest:
            if len(rest) == 1: a.e(f"v_max_u32 v{t}, v{t}, v{rest[0]}"); rest = []
            else: a.e(f"v_max3_u32 v{t}, v{t}, v{rest[0]}, v{rest[1]}"); rest = rest[2:]
        src = t
    a.e(f"""
    v_cmp_eq_u32 vcc, -1, v{src}
    s_nop 1
    s_cmp_lg_u64 vcc, 0
    s_cbranch_scc1 {fail}
    """)

def poll(a, loads, regs, t, sleep=1, name='poll', extra=None, nextra=0):
    l0, l1, l2 = a.lab(name), a.lab(name + '_r'), a.lab(name + '_ok')
    if extra is None:
        a.e(f"s_mov_b32 s35, 0\n{l0}:")
        loads()
        a.e("s_waitcnt vmcnt(0)")
        check(a, regs, t, l1)
        cold = f"""
{l1}:
        s_add_u32 s35, s35, 1
        s_cmp_ge_u32 s35, {SPIN}
        s_cbranch_scc1 {l2}
        s_sleep {sleep}
        s_branch {l0}
        """
        a.cold.append(cold)
    else:
        a.e("s_mov_b32 s35, 0")
        loads()
        extra()
        a.e(f"s_waitcnt vmcnt({nextra})")
        check(a, regs, t, l1)
        sav = a.lines; a.lines = []
        a.e(f"""
{l1}:
        s_add_u32 s35, s35, 1
        s_cmp_ge_u32 s35, {SPIN}
        s_cbranch_scc1 {l2}
        """)
        loads()
        a.e("s_waitcnt vmcnt(0)")
        l3 = a.lab(name + '_s')
        check(a, regs, t, l3)
        a.e(f"s_branch {l2}\n{l3}:\ns_sleep {sleep}\ns_branch {l1}")
        a.cold.append("\n".join(a.lines)); a.lines = sav
    a.e(f"{l2}:")

def wo_loads(a, base, k0, n):
    a.e(f"s_lshl_b32 s55, s36, 15\ns_add_u32 s55, s55, {base + k0*1024}")
    frag_loads(a, lambda k: ar(AWO + 4 * (k0 + k)), n, 55)

def validated(a, loads_sc1, regs, t, name='val'):
    l1, l2 = a.lab(name + '_r'), a.lab(name + '_ok')
    check(a, regs, t, l1)
    a.e(f"{l2}:")
    sav = a.lines; a.lines = []
    a.e(f"{l1}:\ns_mov_b32 s35, 0")
    l3 = a.lab(name + '_l')
    a.e(f"{l3}:\ns_add_u32 s35, s35, 1\ns_cmp_ge_u32 s35, {SPIN}\ns_cbranch_scc1 {l2}")
    loads_sc1()
    a.e("s_waitcnt vmcnt(0)")
    check(a, regs, t, l3)
    a.e(f"s_branch {l2}")
    a.cold.append("\n".join(a.lines)); a.lines = sav

def clamp(a, regs):
    for r in regs: a.e(f"v_min_u32 v{r}, s54, v{r}")

def frag_loads(a, dst_fn, n, sreg, flags='', tmp=29):
    cur = sreg
    for k in range(n):
        if k and k % 4 == 0:
            a.e(f"s_add_u32 s{tmp}, s{sreg}, {k*1024}"); cur = tmp
        a.e(f"buffer_load_dwordx4 {dst_fn(k)}, v1, s[8:11], s{cur} offen offset:{(k%4)*1024} {flags}")

def row_max16(a, x):
    for m in ('quad_perm:[1,0,3,2]', 'quad_perm:[2,3,0,1]', 'row_half_mirror', 'row_mirror'):
        a.e(f"s_nop 1\nv_max_f32_dpp v{x}, v{x}, v{x} {m} row_mask:0xf bank_mask:0xf")

def stats_finish(a, st0, mu, rs, t):
    for q in range(1, 7):
        a.e(f"v_add_f32 v{st0}, v{st0}, v{st0+2*q}\nv_add_f32 v{st0+1}, v{st0+1}, v{st0+2*q+1}")
    a.e(f"""
    v_mov_b32 v{t}, v{st0}
    v_mov_b32 v{t+1}, v{st0+1}
    s_nop 1
    v_permlane32_swap_b32 v{st0}, v{t}
    v_permlane32_swap_b32 v{st0+1}, v{t+1}
    s_nop 1
    v_add_f32 v{st0}, v{st0}, v{t}
    v_add_f32 v{st0+1}, v{st0+1}, v{t+1}
    v_mul_f32 v{mu}, {fbits(-1.0/448)}, v{st0}
    v_mul_f32 v{t}, {fbits(1.0/448)}, v{st0+1}
    v_fma_f32 v{t}, -v{mu}, v{mu}, v{t}
    v_max_f32 v{t}, 0, v{t}
    v_add_f32 v{t}, {fbits(1e-5)}, v{t}
    v_rsq_f32 v{rs}, v{t}
    s_nop 0
    """)

def stats_poll(a, st0, off, smt, vaddr, t, extra=None, nextra=0):
    a.e(f"""
    v_mul_u32_u24 v{vaddr}, {7*256}, v3
    v_lshl_add_u32 v{vaddr}, v2, 3, v{vaddr}
    s_lshl_b32 s20, s{smt}, 12
    s_add_u32 s20, s20, s30
    s_add_u32 s20, s20, {off}
    """)
    def ld():
        for q in range(7):
            a.e(f"buffer_load_dwordx2 v[{st0+2*q}:{st0+2*q+1}], v{vaddr}, s[8:11], s20 offen offset:{q*256} sc1")
    poll(a, ld, range(st0, st0 + 14), t, name='st', extra=extra, nextra=nextra)

def c_pieces(a, c, t, d0, d1):
    a.e(f"""
    v_and_b32 v{t}, 0xffff0000, v{c}
    v_sub_f32 v{t+1}, v{c}, v{t}
    v_and_b32 v{t+2}, 0xffff0000, v{t+1}
    v_sub_f32 v{t+1}, v{t+1}, v{t+2}
    v_lshrrev_b32 v{t}, 16, v{t}
    v_or_b32 v{t}, v{t}, v{t+2}
    v_lshrrev_b32 v{t+1}, 16, v{t+1}
    v_xor_b32 v{d0}, 0x80008000, v{t}
    v_xor_b32 v{d1}, 0x00008000, v{t+1}
    """)

def pk_fma_s(a, d, s_, x, c, n=16, neg=False):
    assert s_ % 2 == 0 and d % 2 == 0 and x % 2 == 0 and c % 2 == 0
    for r in range(0, n, 2):
        a.e(f"v_pk_fma_f32 v[{d+r}:{d+r+1}], v[{s_}:{s_+1}], v[{x+r}:{x+r+1}], v[{c+r}:{c+r+1}] op_sel_hi:[0,1,1]")
def pk_mul_s(a, d, s_, x, n=16):
    assert s_ % 2 == 0 and d % 2 == 0 and x % 2 == 0
    for r in range(0, n, 2):
        a.e(f"v_pk_mul_f32 v[{d+r}:{d+r+1}], v[{s_}:{s_+1}], v[{x+r}:{x+r+1}] op_sel_hi:[0,1]")
def pk_mul_hi(a, d, s_, x, n=16):
    assert s_ % 2 == 1
    for r in range(0, n, 2):
        a.e(f"v_pk_mul_f32 v[{d+r}:{d+r+1}], v[{s_-1}:{s_}], v[{x+r}:{x+r+1}] op_sel:[1,0] op_sel_hi:[1,1]")

def entry(a, done):
    a.e(f"""
    s_cmp_ge_u32 s2, 256
    s_cbranch_scc1 {done}
    """)
    a.stamp('entry')
    a.e(f"""
    s_load_dwordx2 s[16:17], s[0:1], 80
    s_load_dwordx2 s[18:19], s[0:1], 64
    v_lshrrev_b32 v4, 6, v0
    v_and_b32 v1, 63, v0
    v_and_b32 v2, 31, v0
    v_readfirstlane_b32 s3, v4
    v_bfe_u32 v3, v0, 5, 1
    v_lshlrev_b32 v1, 4, v1
    s_and_b32 s4, s2, 7
    s_lshl_b32 s4, s4, 1
    s_lshr_b32 s5, s2, 7
    s_add_u32 s4, s4, s5
    s_lshr_b32 s5, s2, 3
    s_and_b32 s5, s5, 15
    s_lshl_b32 s6, s4, 2
    s_and_b32 s31, s5, 3
    s_add_u32 s31, s31, s6
    s_add_u32 s6, s6, s3
    s_lshl_b32 s7, s4, 4
    s_add_u32 s7, s7, s5
    s_and_b32 s32, s5, 12
    s_add_u32 s32, s32, s3
    s_min_u32 s36, s32, 13
    s_mov_b32 s30, {L.ARENA0}
    s_mov_b32 s33, 0
    s_mov_b32 s54, 0xfffffffe
    s_waitcnt lgkmcnt(0)
    """)
    a.srd(8, 16, L.TOTAL)
    a.srd(12, 18, S * 896)
    a.e(f"""
    v_lshrrev_b32 v4, 3, v2
    v_and_b32 v5, 7, v2
    v_lshlrev_b32 v5, 4, v5
    v_lshl_add_u32 v5, v3, 9, v5
    v_lshl_add_u32 v{VQA}, v4, 13, v5
    v_lshl_add_u32 v{VOA}, v4, 11, v5
    """)
    a.c("first QKV_A: inputs come from the previous kernel, no polling; resident WQA fragments; residual tile of x0")
    XF, CS, STT, T = 16, 144, 160, 176
    a.e(f"""
    s_mul_i32 s21, s31, {28*1024}
    s_mul_i32 s22, s3, {7*1024}
    s_add_u32 s21, s21, s22
    s_add_u32 s27, s21, {A(0, L.XIN)}
    s_add_u32 s22, s22, {LSCR}
    """)
    a.e("s_mov_b32 m0, s22\ns_nop 0\nbuffer_load_dwordx4 v1, s[8:11], s27 offen offset:0 lds\nbuffer_load_dwordx4 v1, s[8:11], s27 offen offset:1024 lds\nbuffer_load_dwordx4 v1, s[8:11], s27 offen offset:2048 lds\nbuffer_load_dwordx4 v1, s[8:11], s27 offen offset:3072 lds\ns_add_u32 s29, s27, 4096\ns_add_u32 s25, s22, 4096\ns_mov_b32 m0, s25\ns_nop 0\nbuffer_load_dwordx4 v1, s[8:11], s29 offen offset:0 lds\nbuffer_load_dwordx4 v1, s[8:11], s29 offen offset:1024 lds\nbuffer_load_dwordx4 v1, s[8:11], s29 offen offset:2048 lds")
    a.e(f"""
    v_mul_u32_u24 v{T}, {7*256}, v3
    v_lshl_add_u32 v{T}, v2, 3, v{T}
    s_lshl_b32 s20, s31, 12
    s_add_u32 s20, s20, {A(0, L.STIN)}
    """)
    for q in range(7): a.e(f"buffer_load_dwordx2 v[{STT+2*q}:{STT+2*q+1}], v{T}, s[8:11], s20 offen offset:{q*256}")
    a.e(f"""
    s_mul_i32 s20, s32, {28*1024}
    s_add_u32 s20, s20, {L.WQA}
    """)
    frag_loads(a, lambda k: ar(AWQ + 4 * k), 28, 20)
    a.e(f"""
    s_lshl_b32 s20, s32, 7
    s_add_u32 s20, s20, {L.CSA}
    v_lshlrev_b32 v{T+1}, 4, v3
    """)
    for q in range(4): a.e(f"buffer_load_dwordx4 {vr(CS+4*q)}, v{T+1}, s[8:11], s20 offen offset:{q*32}")
    a.e(f"""
    s_mul_i32 s20, s31, {28*1024}
    s_lshl_b32 s23, s36, 11
    s_add_u32 s20, s20, s23
    s_add_u32 s20, s20, {A(0, L.XIN)}
    buffer_load_dwordx4 {vr(XRES)}, v1, s[8:11], s20 offen
    buffer_load_dwordx4 {vr(XRES+4)}, v1, s[8:11], s20 offen offset:1024
    s_waitcnt vmcnt(34)
    s_branch M_qa_entry
    """)

def qkv_a(a):
    XF, ACC, CS, STT, MU, RS, T, PK, QP = 16, 128, 144, 160, 174, 175, 176, 184, 192
    a.c("==== QKV_A : m-tile s31, column group s32")
    a.e("s_barrier")
    a.e(f"""
    s_lshl_b32 s21, s32, 7
    s_add_u32 s21, s21, {L.CSA}
    v_lshlrev_b32 v{T+1}, 4, v3
    """)
    for q in range(4): a.e(f"buffer_load_dwordx4 {vr(CS+4*q)}, v{T+1}, s[8:11], s21 offen offset:{q*32}")
    if WOA_MODE == 'poll': stats_poll(a, STT, L.STIN, 31, T, T + 2, lambda: wo_loads(a, L.WOA, 0, 16), 16)
    else: stats_poll(a, STT, L.STIN, 31, T, T + 2)
    a.stamp('qa_st')
    a.e(f"""
    s_mul_i32 s21, s31, {28*1024}
    s_mul_i32 s22, s3, {7*1024}
    s_add_u32 s21, s21, s22
    s_add_u32 s21, s21, s30
    s_add_u32 s27, s21, {L.XIN}
    s_add_u32 s22, s22, {LSCR}
    """)
    a.e("s_mov_b32 m0, s22\ns_nop 0\nbuffer_load_dwordx4 v1, s[8:11], s27 offen offset:0 lds\nbuffer_load_dwordx4 v1, s[8:11], s27 offen offset:1024 lds\nbuffer_load_dwordx4 v1, s[8:11], s27 offen offset:2048 lds\nbuffer_load_dwordx4 v1, s[8:11], s27 offen offset:3072 lds\ns_add_u32 s29, s27, 4096\ns_add_u32 s25, s22, 4096\ns_mov_b32 m0, s25\ns_nop 0\nbuffer_load_dwordx4 v1, s[8:11], s29 offen offset:0 lds\nbuffer_load_dwordx4 v1, s[8:11], s29 offen offset:1024 lds\nbuffer_load_dwordx4 v1, s[8:11], s29 offen offset:2048 lds")
    a.e("M_qa_entry:")
    stats_finish(a, STT, MU, RS, T)
    lmm, lredo, lok = a.lab('qa_mm'), a.lab('qa_redo'), a.lab('qa_ok')
    a.e(f"""
    v_add_u32 v{T+5}, s22, v1
    v_add_u32 v{T+3}, {LSCR}, v1
    v_mul_f32 v{T}, {fbits(QS)}, v{RS}
    s_mov_b32 s53, 0
    s_waitcnt vmcnt(0)
    s_barrier
{lmm}:
    v_cmp_eq_u32 vcc, 1, v3
    """)
    a.stamp('qa_pan')
    if a.INSTR: a.e("s_waitcnt lgkmcnt(0)")
    for k in range(28): a.e(f"ds_read_b128 {vr(XF+4*k)}, v{T+3} offset:{k*1024}")
    sav = a.lines; a.lines = []
    a.e(f"{lredo}:\ns_cmp_lg_u32 s53, 0\ns_cbranch_scc1 {lok}\ns_mov_b32 s53, 1\ns_barrier")
    poll(a, lambda: frag_loads(a, lambda k: vr(XF + 4 * k), 7, 27, 'sc1'), range(XF, XF + 28), T + 4, name='xar')
    for k in range(7): a.e(f"ds_write_b128 v{T+5}, {vr(XF+4*k)} offset:{k*1024}")
    a.e(f"s_waitcnt lgkmcnt(0)\ns_barrier\ns_branch {lmm}")
    a.cold.append("\n".join(a.lines)); a.lines = sav
    a.e(f"v_cndmask_b32 v{T+1}, v{T}, v{RS}, vcc")
    for k in range(28):
        a.e(f"s_waitcnt lgkmcnt({min(15, 27-k)})")
        a.e(f"{MF} {vr(ACC,16)}, {ar(AWQ+4*k)}, {vr(XF+4*k)}, {'0' if k == 0 else vr(ACC,16)}")
    U = 200
    a.c("K / V quad first (all-to-all critical path): staged through LDS so that whole fragments are stored by one wave")
    a.e(f"""
    s_and_b32 s21, s3, 1
    s_lshl_b32 s21, s21, 9
    s_lshr_b32 s22, s3, 1
    s_lshl_b32 s22, s22, 3
    s_add_u32 s21, s21, s22
    s_add_u32 s21, s21, {LKV}
    v_lshl_add_u32 v{U}, v2, 4, s21
    v_lshrrev_b32 v{U+1}, 4, v2
    v_lshlrev_b32 v{U+1}, 9, v{U+1}
    v_bfe_u32 v{U+2}, v2, 2, 1
    v_lshl_add_u32 v{U+1}, v{U+2}, 8, v{U+1}
    v_bfe_u32 v{U+2}, v2, 3, 1
    v_lshl_add_u32 v{U+1}, v{U+2}, 3, v{U+1}
    v_and_b32 v{U+2}, 3, v2
    v_lshl_add_u32 v{U+1}, v{U+2}, 1, v{U+1}
    s_lshl_b32 s21, s3, 6
    s_add_u32 s21, s21, {LKV}
    v_add_u32 v{U+1}, s21, v{U+1}
    v_cmp_u_f32 s[24:25], v{ACC}, v{ACC}
    s_nop 1
    s_cmp_lg_u64 s[24:25], 0
    s_cbranch_scc1 {lredo}
{lok}:
    """)
    for r in range(12, 16): a.e(f"v_fmac_f32 v{ACC+r}, v{MU}, v{CS+r}")
    for r in range(12, 16): a.e(f"v_mul_f32 v{ACC+r}, v{ACC+r}, v{T+1}")
    for q in (6, 7): a.e(f"v_cvt_pk_bf16_f32 v{PK+q}, v{ACC+2*q}, v{ACC+2*q+1}")
    lv, lb, lq, lnc = a.lab('qa_v'), a.lab('qa_bar'), a.lab('qa_q'), a.lab('qa_nc')
    a.e(f"""
    v_mov_b32 v{U+4}, v{PK+6}
    v_mov_b32 v{U+5}, v{PK+7}
    s_and_b32 s21, s32, 7
    s_cmp_lg_u32 s21, 7
    s_cbranch_scc1 {lnc}
    s_movk_i32 s23, 0x3f80
    s_cmp_eq_u32 s32, 7
    s_cselect_b32 s21, 0x3f803f80, s23
    s_cselect_b32 s22, s23, 0
    v_mov_b32 v{U+4}, s21
    v_mov_b32 v{U+5}, s22
{lnc}:
    s_mov_b32 exec_lo, 0
    s_cmp_ge_u32 s32, 8
    s_cbranch_scc1 {lv}
    ds_write_b64 v{U}, v[{U+4}:{U+5}]
    s_branch {lb}
{lv}:
    ds_write_b16 v{U+1}, v{U+4}
    ds_write_b16_d16_hi v{U+1}, v{U+4} offset:16
    ds_write_b16 v{U+1}, v{U+5} offset:32
    ds_write_b16_d16_hi v{U+1}, v{U+5} offset:48
{lb}:
    s_mov_b64 exec, -1
    v_add_u32 v{U}, {LKV}, v1
    s_waitcnt lgkmcnt(0)
    s_barrier
    s_cmp_lg_u32 s3, 0
    s_cbranch_scc1 {lq}
    ds_read_b128 {vr(U+4)}, v{U}
    s_lshr_b32 s22, s32, 2
    s_lshl_b32 s24, s31, 7
    s_add_u32 s24, s24, s30
    s_add_u32 s24, s24, {L.KNA}
    s_lshl_b32 s21, s22, 2
    s_add_u32 s24, s24, s21
    s_lshl_b32 s20, s31, 11
    s_add_u32 s20, s20, s30
    s_lshl_b32 s21, s22, 10
    s_add_u32 s23, s20, s21
    s_add_u32 s23, s23, {L.KA}
    s_lshl_b32 s21, s22, 8
    s_add_u32 s20, s20, s21
    s_add_u32 s20, s20, {L.VA - 512}
    s_cmp_lt_u32 s22, 2
    s_cselect_b32 s20, s23, s20
    s_cselect_b64 s[26:27], -1, 0
    v_lshrrev_b32 v{U+1}, 4, v0
    v_lshlrev_b32 v{U+1}, 9, v{U+1}
    v_and_b32 v{U+2}, 15, v0
    v_lshl_add_u32 v{U+1}, v{U+2}, 4, v{U+1}
    v_cndmask_b32 v{U+1}, v{U+1}, v1, s[26:27]
    v_mov_b32 v{U+2}, 0
    v_lshlrev_b32 v{U}, 13, v2
    s_waitcnt lgkmcnt(0)
    """)
    clamp(a, range(U + 4, U + 8))
    a.e(f"buffer_store_dwordx4 {vr(U+4)}, v{U+1}, s[8:11], s20 offen sc1")
    for q in range(4): a.e(f"v_dot2_f32_bf16 v{U+2}, v{U+4+q}, v{U+4+q}, v{U+2}")
    a.e(f"""
    s_nop 2
    v_mov_b32 v{U+3}, v{U+2}
    s_nop 1
    v_permlane32_swap_b32 v{U+2}, v{U+3}
    s_nop 1
    v_add_f32 v{U+2}, v{U+2}, v{U+3}
    """)
    row_max16(a, U + 2)
    a.e(f"""
    s_nop 1
    v_readlane_b32 s22, v{U+2}, 0
    v_readlane_b32 s23, v{U+2}, 16
    s_max_u32 s22, s22, s23
    s_min_u32 s22, s22, 0x7fc00000
    s_and_b32 s22, s22, s26
    v_mov_b32 v{U+1}, s22
    s_mov_b64 exec, 0xffff
    buffer_store_dword v{U+1}, v{U}, s[8:11], s24 offen sc1
    s_mov_b64 exec, -1
{lq}:
    """)
    clamp(a, (PK + 6, PK + 7))
    a.c("Q part")
    pk_fma_s(a, ACC, MU, CS, ACC, 12)
    pk_mul_s(a, ACC, T, ACC, 12)
    for q in range(6): a.e(f"v_cvt_pk_bf16_f32 v{PK+q}, v{ACC+2*q}, v{ACC+2*q+1}")
    clamp(a, range(PK, PK + 6))
    a.e(f"""
    s_lshl_b32 s20, s31, 15
    s_lshr_b32 s21, s32, 2
    s_lshl_b32 s21, s21, 11
    s_add_u32 s20, s20, s21
    s_lshl_b32 s21, s3, 7
    s_add_u32 s20, s20, s21
    s_add_u32 s47, s20, {L.QA}
    s_add_u32 s20, s47, s30
    buffer_store_dwordx4 {vr(PK)}, v{VQA}, s[8:11], s20 offen sc1
    v_cndmask_b32 v{T+2}, v{PK+6}, 0, vcc
    v_cndmask_b32 v{T+3}, v{PK+7}, 0, vcc
    v_mov_b32 v{T}, 0
    v_mov_b32 v{T+1}, 0
    """)
    for q in range(6): a.e(f"v_dot2_f32_bf16 v{T+(q&1)}, v{PK+q}, v{PK+q}, v{T+(q&1)}")
    a.e(f"""
    v_dot2_f32_bf16 v{T}, v{T+2}, v{T+2}, v{T}
    v_dot2_f32_bf16 v{T+1}, v{T+3}, v{T+3}, v{T+1}
    v_mov_b32 v{QP}, v{PK+4}
    v_mov_b32 v{QP+1}, v{PK+5}
    v_mov_b32 v{QP+3}, v{T+3}
    s_nop 0
    v_add_f32 v{T}, v{T}, v{T+1}
    v_mov_b32 v{T+1}, v{T}
    s_nop 1
    v_permlane32_swap_b32 v{T}, v{T+1}
    s_nop 1
    v_add_f32 v{T}, v{T}, v{T+1}
    v_min_u32 v{T}, s54, v{T}
    v_cndmask_b32 v{QP+2}, v{PK+6}, v{T}, vcc
    buffer_store_dwordx4 {vr(QP)}, v{VQA}, s[8:11], s20 offen offset:1024 sc1
    """)
    a.stamp('qa_pub')
    if a.INSTR and os.environ.get('ACK'):
        a.e("s_waitcnt vmcnt(0)")
    a.stamp('qa_ack')

def attn_a(a):
    QF, S0, S1, P, O, KV, T, FS = 16, 48, 64, 80, 88, 152, 216, 232
    NB = 4
    SS = [S0, S1]
    a.c("==== attention A : rows 8*s7.., all heads; waves split the keys; q slot s = tile (wave+s)&3, slot 0 is finalised by this wave")
    a.e(f"""
    s_barrier
    s_lshl_b32 s21, s6, 11
    s_add_u32 s21, s21, s30
    s_add_u32 s21, s21, {L.KNA}
    v_and_b32 v{T+8}, 15, v2
    v_lshlrev_b32 v{T+8}, 7, v{T+8}
    s_lshl_b32 s20, s7, 13
    s_add_u32 s20, s20, s30
    s_add_u32 s20, s20, {L.QA}
    s_lshl_b32 s26, s3, 11
    s_add_u32 s27, s26, 2048
    s_and_b32 s27, s27, 0x1fff
    s_add_u32 s28, s26, 4096
    s_and_b32 s28, s28, 0x1fff
    s_add_u32 s53, s26, 6144
    s_and_b32 s53, s53, 0x1fff
    s_lshr_b32 s57, s27, 2
    s_lshr_b32 s58, s28, 2
    s_lshr_b32 s59, s53, 2
    s_add_u32 s26, s26, s20
    s_add_u32 s27, s27, s20
    s_add_u32 s28, s28, s20
    s_add_u32 s53, s53, s20
    s_lshl_b32 s22, s3, 15
    s_add_u32 s22, s22, s30
    s_add_u32 s23, s22, {L.VA}
    s_add_u32 s22, s22, {L.KA}
    """)
    for r in range(64): a.e(f"v_mov_b32 v{O+r}, 0")
    for r in range(8): a.e(f"v_mov_b32 v{P+r}, 0")
    for r in range(4): a.e(f"v_mov_b32 v{KV+16*(NB-1)+12+r}, 0")
    for r in range(4): a.e(f"v_mov_b32 v{FS+r}, -1")
    if WOA_MODE == 'poll':
        lw = a.lab('aa_w0')
        a.e(f"s_cmp_lg_u32 s33, 0\ns_cbranch_scc1 {lw}")
        wo_loads(a, L.WOA, 0, 16)
        a.e(f"{lw}:")
    else:
        a.e(f"s_lshl_b32 s55, s36, 15\ns_add_u32 s55, s55, {L.WOA}")
    a.c("Q' fragments (validated below)")
    def q_load(fl=''):
        a.e(f"""
        buffer_load_dwordx4 {vr(QF)}, v1, s[8:11], s26 offen {fl}
        buffer_load_dwordx4 {vr(QF+4)}, v1, s[8:11], s26 offen offset:1024 {fl}
        buffer_load_dwordx4 {vr(QF+8)}, v1, s[8:11], s27 offen {fl}
        buffer_load_dwordx4 {vr(QF+12)}, v1, s[8:11], s27 offen offset:1024 {fl}
        buffer_load_dwordx4 {vr(QF+16)}, v1, s[8:11], s28 offen {fl}
        buffer_load_dwordx4 {vr(QF+20)}, v1, s[8:11], s28 offen offset:1024 {fl}
        buffer_load_dwordx4 {vr(QF+24)}, v1, s[8:11], s53 offen {fl}
        buffer_load_dwordx4 {vr(QF+28)}, v1, s[8:11], s53 offen offset:1024 {fl}
        """)
    q_load()
    a.c("sentinel fills (issued inside the loop) of the payload regions this workgroup itself writes later: own arena, x / Q' of the next")
    VF = FS + 6
    a.e(f"""
    s_lshl_b32 s41, s5, 17
    s_lshl_b32 s42, s6, 11
    s_add_u32 s41, s41, s42
    s_add_u32 s41, s41, s30
    s_add_u32 s42, s41, {L.VB}
    s_add_u32 s41, s41, {L.KB}
    s_lshl_b32 s43, s6, 15
    s_lshl_b32 s44, s5, 11
    s_add_u32 s43, s43, s44
    s_add_u32 s43, s43, s30
    s_add_u32 s43, s43, {L.OB}
    s_mul_i32 s44, s31, {28*1024}
    s_lshl_b32 s45, s36, 11
    s_add_u32 s44, s44, s45
    s_add_u32 s44, s44, s30
    s_add_u32 s52, s44, {L.ARENA + L.XIN}
    s_add_u32 s44, s44, {L.XM}
    s_lshr_b32 s45, s7, 2
    s_lshl_b32 s45, s45, 15
    s_and_b32 s46, s7, 3
    s_lshl_b32 s46, s46, 7
    s_add_u32 s45, s45, s46
    s_add_u32 s45, s45, s30
    s_add_u32 s45, s45, {L.OA}
    s_lshl_b32 s46, s3, 13
    s_add_u32 s45, s45, s46
    s_mov_b32 s56, s45
    s_add_u32 s46, s47, s30
    s_add_u32 s46, s46, {L.ARENA}
    v_mov_b32 v{VF}, v{VOA}
    v_mov_b32 v{VF+1}, v{VQA}
    s_mov_b32 s37, s22
    s_mov_b32 s38, s23
    s_lshl_b32 s20, s3, 9
    s_add_u32 s20, s20, {LSM+1024}
    v_lshl_add_u32 v{T+9}, v2, 2, s20
    v_lshlrev_b32 v{T+10}, 2, v2
    v_add_u32 v{T+10}, {LSM+1024}, v{T+10}
    v_add_u32 v{T+11}, s58, v{T+10}
    v_add_u32 v{T+12}, s59, v{T+10}
    v_add_u32 v{T+10}, s57, v{T+10}
    """)
    def kn_extra():
        wo_loads(a, L.WOA, 16, 16)
    poll(a, lambda: a.e(f"buffer_load_dwordx4 {vr(T)}, v{T+8}, s[8:11], s21 offen sc1"), range(T, T + 4), T + 4, sleep=2, name='kn', extra=(kn_extra if WOA_MODE == 'poll' else None), nextra=16)
    a.stamp('aa_kn')
    def kv_load(b, fl='', adv=True, sk=22, sv=23):
        a.e(f"""
        buffer_load_dwordx4 {vr(KV+16*b)}, v1, s[8:11], s{sk} offen {fl}
        buffer_load_dwordx4 {vr(KV+16*b+4)}, v1, s[8:11], s{sk} offen offset:1024 {fl}
        buffer_load_dwordx4 {vr(KV+16*b+8)}, v1, s[8:11], s{sv} offen {fl}
        buffer_load_dwordx4 {vr(KV+16*b+12)}, v1, s[8:11], s{sv} offen offset:1024 {fl}
        """)
        if adv: a.e(f"s_add_u32 s{sk}, s{sk}, 2048\ns_add_u32 s{sv}, s{sv}, 2048")
    for b in range(3): kv_load(b)
    a.c("per-wave stand-in shift c = 1.02*|q'|*Kmax(own keys): Cauchy-Schwarz upper bound of the row max over this wave's keys")
    a.e(f"""
    v_add_f32 v{T}, v{T}, v{T+1}
    v_add_f32 v{T+2}, v{T+2}, v{T+3}
    v_add_f32 v{T}, v{T}, v{T+2}
    """)
    row_max16(a, T)
    a.e(f"""
    s_nop 1
    v_readfirstlane_b32 s24, v{T}
    """)
    validated(a, lambda: q_load('sc1'), range(QF, QF + 32), T, 'qa')
    a.e("s_mov_b32 exec_lo, 0")
    for t in range(4):
        q2 = QF + 8 * t + 6
        a.e(f"""
        v_mul_f32 v{T}, s24, v{q2}
        v_sqrt_f32 v{T}, v{T}
        s_nop 0
        v_mul_f32 v{T}, {fbits(1.02)}, v{T}
        ds_write_b32 v{T+9+t}, v{T} offset:{t*128}
        """)
        c_pieces(a, T, T + 1, q2, q2 + 1)
    a.e("s_mov_b64 exec, -1")
    a.e("s_waitcnt vmcnt(0)")
    def kv_reload():
        a.e("s_mov_b32 s39, s37\ns_mov_b32 s40, s38")
        for b in range(3): kv_load(b, 'sc1', True, 39, 40)
    validated(a, kv_reload, range(KV, KV + 48), T, 'kv')
    a.e(f"""
    {MF} {vr(S0,16)}, {vr(KV)}, {vr(QF)}, 0
    {MF} {vr(S0,16)}, {vr(KV+4)}, {vr(QF+4)}, {vr(S0,16)}
    s_mov_b32 s29, 0
    s_nop 7
    s_nop 2
    """)
    a.stamp('aa_go')
    a.cstamp(6)
    slots = {0: ('s41', 'v1', 0), 1: ('s41', 'v1', 1024), 2: ('s45', f'v{VF}', 0), 3: ('s45', f'v{VF}', 1024)}
    lp = a.lab('aa_loop')
    def body(peel):
        u = 0
        for b in range(NB):
            for t in range(4):
                sb = SS[u & 1]; sn = SS[(u + 1) & 1]
                kb = KV + 16 * (b if t < 3 else (b + 1) % NB)
                qn = QF + 8 * ((t + 1) % 4)
                vp = KV + 16 * (b if t > 0 else (b - 1) % NB) + 12
                vc = KV + 16 * b + 8
                op = O + 16 * ((t - 1) % 4); oc = O + 16 * t
                def ex(i0):
                    for i in range(i0, i0 + 4): a.e(f"v_exp_f32 v{sb+i}, v{sb+i}")
                def cv(j0):
                    for jx in (j0, j0 + 1): a.e(f"v_cvt_pk_bf16_f32 v{P+jx}, v{sb+2*jx}, v{sb+2*jx+1}")
                def woa(k):
                    if not peel: return
                    if k and k % 4 == 0: a.e("s_add_u32 s55, s55, 4096")
                    a.e(f"buffer_load_dwordx4 {ar(AWO+4*k)}, v1, s[8:11], s55 offen offset:{(k%4)*1024}")
                ex(0)
                if t == 3 and not (peel and b < 2):
                    n = 11 + ((8 - 1) + 8 + 6 if peel else 0)
                    a.e(f"s_waitcnt vmcnt({n})")
                a.e(f"{MF} {vr(sn,16)}, {vr(kb)}, {vr(qn)}, 0")
                cv(0); woa(2 * u); ex(4)
                a.e(f"{MF} {vr(sn,16)}, {vr(kb+4)}, {vr(qn+4)}, {vr(sn,16)}")
                cv(2); ex(8)
                a.e(f"{MF} {vr(op,16)}, {vr(vp)}, {vr(P+4)}, {vr(op,16)}")
                cv(4)
                if t == 0: kv_load((b - 1) % NB)
                elif t == 2:
                    sr, vo, of = slots[b]
                    a.e(f"buffer_store_dwordx4 {vr(FS)}, {vo}, s[8:11], {sr} offen offset:{of} sc1")
                ex(12)
                a.e(f"{MF} {vr(oc,16)}, {vr(vc)}, {vr(P)}, {vr(oc,16)}")
                cv(6); woa(2 * u + 1)
                u += 1
        a.e(f"""
        s_mov_b32 s41, s42
        s_mov_b32 s42, s43
        s_mov_b32 s43, s44
        s_mov_b32 s45, s46
        s_mov_b32 s46, s52
        v_mov_b32 v{VF}, v{VF+1}
        v_mov_b32 v{VF+1}, v1
        s_add_u32 s29, s29, 1
        """)
    if WOA_MODE == 'peel':
        a.c("first four key tiles: also prefetch the WOA fragments (consumed after attention)")
        body(True)
    a.e(f".p2align 6\n{lp}:")
    body(False)
    a.e(f"""
    s_cmp_lt_u32 s29, 4
    s_cbranch_scc1 {lp}
    s_mul_i32 s57, s57, 24
    s_mul_i32 s58, s58, 24
    {MF} {vr(O+48,16)}, {vr(KV+16*(NB-1)+12)}, {vr(P+4)}, {vr(O+48,16)}
    s_mul_i32 s59, s59, 24
    v_add_u32 v{T+3}, {LSCR}, v1
    v_add_u32 v{T}, s57, v{T+3}
    v_add_u32 v{T+1}, s58, v{T+3}
    v_add_u32 v{T+2}, s59, v{T+3}
    s_mul_i32 s20, s3, 12288
    v_add_u32 v{T+3}, s20, v{T+3}
    s_lshl_b32 s21, s7, 7
    s_lshl_b32 s22, s3, 2
    s_add_u32 s21, s21, s22
    s_add_u32 s21, s21, s30
    s_add_u32 s21, s21, {L.HOA}
    s_mov_b32 s20, {fbits(THR)}
    """)
    a.stamp('aa_end')
    a.cstamp(7)
    a.c("send the three foreign q tiles to their owners through LDS; rescale all partials to a common shift")
    for t in range(1, 4):
        for q in range(4): a.e(f"ds_write_b128 v{T+t-1}, {vr(O+16*t+4*q)} offset:{(t-1)*4096+q*1024}")
    a.e("s_waitcnt vmcnt(0) lgkmcnt(0)\ns_barrier")
    a.stamp('aa_bar')
    if a.INSTR: a.e("s_waitcnt lgkmcnt(0)")
    R = KV
    F = S0
    for w in range(4): a.e(f"ds_read_b32 v{F+w}, v{T+9} offset:{w*128}")
    for w in range(3):
        for q in range(4): a.e(f"ds_read_b128 {vr(R+16*w+4*q)}, v{T+3} offset:{w*4096+q*1024}")
    a.e(f"""
    v_mov_b32 v{T+5}, 0
    s_waitcnt lgkmcnt(12)
    v_max3_f32 v{T+6}, v{F}, v{F+1}, v{F+2}
    v_max_f32 v{T+6}, v{T+6}, v{F+3}
    """)
    for w in range(4): a.e(f"v_sub_f32 v{F+w}, v{F+w}, v{T+6}")
    for w in range(4): a.e(f"v_exp_f32 v{F+w}, v{F+w}")
    for r in range(16): a.e(f"v_mul_f32 v{O+r}, v{F}, v{O+r}")
    for w in range(3):
        a.e(f"s_waitcnt lgkmcnt({8-4*w})")
        for r in range(16): a.e(f"v_fmac_f32 v{O+r}, v{F+1+w}, v{R+16*w+r}")
    lnorm, lslow = a.lab('aa_norm'), a.lab('aa_slow')
    a.e(f"""
    v_mov_b32 v{T+2}, v{O+12}
    v_mov_b32 v{T+3}, v{O+12}
    v_pk_add_f32 v[{T+6}:{T+7}], v[{O}:{O+1}], v[{O+2}:{O+3}]
    v_pk_add_f32 v[{T+10}:{T+11}], v[{O+4}:{O+5}], v[{O+6}:{O+7}]
    v_permlane32_swap_b32 v{T+2}, v{T+3}
    v_pk_add_f32 v[{T+6}:{T+7}], v[{T+6}:{T+7}], v[{O+8}:{O+9}]
    v_pk_add_f32 v[{T+10}:{T+11}], v[{T+10}:{T+11}], v[{O+10}:{O+11}]
    v_pk_add_f32 v[{T+6}:{T+7}], v[{T+6}:{T+7}], v[{O+12}:{O+13}]
    v_pk_add_f32 v[{T+10}:{T+11}], v[{T+10}:{T+11}], v[{O+14}:{O+15}]
    v_pk_add_f32 v[{T+6}:{T+7}], v[{T+6}:{T+7}], v[{T+10}:{T+11}]
    v_cmp_gt_f32 vcc, s20, v{T+3}
    v_cmp_u_f32 s[24:25], v{T+6}, v{T+7}
    v_rcp_f32 v{T+2}, v{T+3}
    s_or_b64 vcc, vcc, s[24:25]
    s_cmp_lg_u64 vcc, 0
    s_cbranch_scc1 {lslow}
{lnorm}:
    """)
    for r in range(16): a.e(f"v_mul_f32 v{O+r}, v{T+2}, v{O+r}")
    for q in range(8): a.e(f"v_cvt_pk_bf16_f32 v{P+q}, v{O+2*q}, v{O+2*q+1}")
    clamp(a, range(P, P + 8))
    a.e(f"""
    buffer_store_dwordx4 {vr(P)}, v{VOA}, s[8:11], s56 offen sc1
    buffer_store_dwordx4 {vr(P+4)}, v{VOA}, s[8:11], s56 offen offset:1024 sc1
    s_mov_b64 exec, 1
    buffer_store_dword v{T+5}, v{T+5}, s[8:11], s21 offen sc1
    s_mov_b64 exec, -1
    """)
    a.stamp('aa_pub')
    sav = a.lines; a.lines = []
    l1, l2, l1r, l2r = a.lab('aa_s1'), a.lab('aa_s2'), a.lab('aa_s1r'), a.lab('aa_s2r')
    a.e(f"{lslow}:")
    a.c("exact fallback: this wave redoes its 32 queries over all keys with the true row max (validated coherent loads)")
    a.e(f"""
    buffer_load_dwordx4 {vr(QF)}, v1, s[8:11], s26 offen sc1
    buffer_load_dwordx4 {vr(QF+4)}, v1, s[8:11], s26 offen offset:1024 sc1
    v_cmp_eq_u32 vcc, 1, v3
    v_mov_b32 v{T}, 0xff800000
    s_add_u32 s22, s30, {L.KA}
    s_mov_b32 s29, 0
    s_mov_b32 s35, 0
    s_waitcnt vmcnt(0)
    v_cndmask_b32 v{QF+6}, v{QF+6}, 0, vcc
    v_cndmask_b32 v{QF+7}, v{QF+7}, 0, vcc
{l1}:
    buffer_load_dwordx4 {vr(KV)}, v1, s[8:11], s22 offen sc1
    buffer_load_dwordx4 {vr(KV+4)}, v1, s[8:11], s22 offen offset:1024 sc1
    s_waitcnt vmcnt(0)
    s_add_u32 s35, s35, 1
    s_cmp_ge_u32 s35, {SPIN}
    s_cbranch_scc1 {l1r}
    """)
    check(a, range(KV, KV + 8), T + 1, l1)
    a.e(f"""
{l1r}:
    s_add_u32 s22, s22, 2048
    {MF} {vr(S0,16)}, {vr(KV)}, {vr(QF)}, 0
    {MF} {vr(S0,16)}, {vr(KV+4)}, {vr(QF+4)}, {vr(S0,16)}
    s_nop 15
    """)
    for r in range(0, 16, 2): a.e(f"v_max3_f32 v{T}, v{T}, v{S0+r}, v{S0+r+1}")
    a.e(f"""
    s_add_u32 s29, s29, 1
    s_cmp_lt_u32 s29, 64
    s_cbranch_scc1 {l1}
    v_mov_b32 v{T+1}, v{T}
    s_nop 1
    v_permlane32_swap_b32 v{T}, v{T+1}
    s_nop 1
    v_max_f32 v{T}, v{T}, v{T+1}
    s_mov_b32 exec_lo, 0
    """)
    c_pieces(a, T, T + 1, QF + 6, QF + 7)
    a.e(f"""
    s_mov_b64 exec, -1
    s_add_u32 s22, s30, {L.KA}
    s_add_u32 s23, s30, {L.VA}
    s_mov_b32 s29, 0
    """)
    for r in range(16): a.e(f"v_mov_b32 v{O+r}, 0")
    a.e(f"{l2}:")
    kv_load(0, 'sc1', False)
    a.e(f"""
    s_waitcnt vmcnt(0)
    s_add_u32 s35, s35, 1
    s_cmp_ge_u32 s35, {SPIN}
    s_cbranch_scc1 {l2r}
    """)
    check(a, range(KV, KV + 16), T + 1, l2)
    a.e(f"""
{l2r}:
    s_add_u32 s22, s22, 2048
    s_add_u32 s23, s23, 2048
    {MF} {vr(S0,16)}, {vr(KV)}, {vr(QF)}, 0
    {MF} {vr(S0,16)}, {vr(KV+4)}, {vr(QF+4)}, {vr(S0,16)}
    s_nop 15
    """)
    for r in range(16): a.e(f"v_exp_f32 v{S0+r}, v{S0+r}")
    a.e("s_nop 0")
    for q in range(8): a.e(f"v_cvt_pk_bf16_f32 v{P+q}, v{S0+2*q}, v{S0+2*q+1}")
    a.e(f"""
    s_nop 1
    {MF} {vr(O,16)}, {vr(KV+8)}, {vr(P)}, {vr(O,16)}
    {MF} {vr(O,16)}, {vr(KV+12)}, {vr(P+4)}, {vr(O,16)}
    s_add_u32 s29, s29, 1
    s_cmp_lt_u32 s29, 64
    s_cbranch_scc1 {l2}
    s_nop 15
    v_mov_b32 v{T+2}, v{O+12}
    v_mov_b32 v{T+3}, v{O+12}
    s_nop 1
    v_permlane32_swap_b32 v{T+2}, v{T+3}
    s_nop 1
    v_rcp_f32 v{T+2}, v{T+3}
    s_nop 0
    s_branch {lnorm}
    """)
    a.cold.append("\n".join(a.lines)); a.lines = sav

def out_proj(a, which, sbase):
    OF, ACC, PK, T = 16, 144, XRES, 176
    isA = which == 'A'
    a.c(f"==== out projection {which} : m-tile s31, column group s32")
    a.e("s_barrier")
    if isA:
        a.e(f"""
        s_lshl_b32 s21, s31, 9
        s_add_u32 s21, s21, s30
        s_add_u32 s21, s21, {L.HOA}
        v_lshrrev_b32 v{T+1}, 2, v2
        v_and_b32 v{T+1}, 3, v{T+1}
        v_lshlrev_b32 v{T+1}, 7, v{T+1}
        v_and_b32 v{T+2}, 3, v2
        v_lshl_add_u32 v{T+1}, v{T+2}, 2, v{T+1}
        """)
    else:
        a.e(f"""
        s_lshl_b32 s21, s31, 11
        s_add_u32 s21, s21, s30
        s_add_u32 s21, s21, {L.HOB}
        v_and_b32 v{T+1}, 15, v2
        v_lshlrev_b32 v{T+1}, 7, v{T+1}
        """)
    a.e(f"""
    s_lshl_b32 s20, s31, 15
    s_lshl_b32 s22, s3, 13
    s_add_u32 s20, s20, s22
    s_add_u32 s20, s20, s30
    s_add_u32 s20, s20, {L.OA if isA else L.OB}
    s_mov_b32 s27, s20
    s_add_u32 s22, s22, {LSCR}
    v_add_u32 v{T}, s22, v1
    v_add_u32 v{T+3}, {LSCR}, v1
    """)
    if isA:
        a.c("first pass only: QKV_B weights of this head into LDS (resident afterwards)")
        lnw = a.lab('aa_nowb')
        a.e(f"""
        s_cmp_lg_u32 s33, 0
        s_cbranch_scc1 {lnw}
        s_mul_i32 s44, s5, {84*1024}
        s_mul_i32 s45, s3, {21*1024}
        s_add_u32 s44, s44, s45
        s_add_u32 s44, s44, {L.WB}
        """)
        for k in range(21):
            if k % 4 == 0:
                if k: a.e("s_add_u32 s44, s44, 4096\ns_add_u32 s45, s45, 4096")
                a.e("s_mov_b32 m0, s45\ns_nop 0")
            a.e(f"buffer_load_dwordx4 v1, s[8:11], s44 offen offset:{(k%4)*1024} lds")
        a.e(f"{lnw}:")

    poll(a, lambda: a.e(f"buffer_load_dword v{T+2}, v{T+1}, s[8:11], s21 offen sc1"), [T + 2], T + 4, name='ho')
    a.stamp(sbase + '_hint')
    a.e("s_mov_b32 m0, s22\ns_nop 0\nbuffer_load_dwordx4 v1, s[8:11], s20 offen offset:0 lds\nbuffer_load_dwordx4 v1, s[8:11], s20 offen offset:1024 lds\nbuffer_load_dwordx4 v1, s[8:11], s20 offen offset:2048 lds\nbuffer_load_dwordx4 v1, s[8:11], s20 offen offset:3072 lds\ns_add_u32 s29, s20, 4096\ns_add_u32 s25, s22, 4096\ns_mov_b32 m0, s25\ns_nop 0\nbuffer_load_dwordx4 v1, s[8:11], s29 offen offset:0 lds\nbuffer_load_dwordx4 v1, s[8:11], s29 offen offset:1024 lds\nbuffer_load_dwordx4 v1, s[8:11], s29 offen offset:2048 lds\nbuffer_load_dwordx4 v1, s[8:11], s29 offen offset:3072 lds")
    XU = 160
    for q in range(8): a.e(f"v_lshlrev_b32 v{XU+2*q}, 16, v{XRES+q}\nv_and_b32 v{XU+2*q+1}, 0xffff0000, v{XRES+q}")
    lskip, lmm, lredo, lok = a.lab('op_skip'), a.lab('op_mm'), a.lab('op_redo'), a.lab('op_ok')
    a.e(f"""
    s_mov_b32 s53, 0
    s_waitcnt vmcnt(0)
    s_barrier
{lmm}:
    """)
    a.stamp(sbase + '_pan')
    if a.INSTR: a.e("s_waitcnt lgkmcnt(0)")
    for k in range(32): a.e(f"ds_read_b128 {vr(OF+4*k)}, v{T+3} offset:{k*1024}")
    for k in range(32):
        a.e(f"s_waitcnt lgkmcnt({min(15, 31-k)})")
        a.e(f"{MF} {vr(ACC,16)}, {ar(AWO+4*k)}, {vr(OF+4*k)}, {vr(XU,16) if k == 0 else vr(ACC,16)}")
    sav = a.lines; a.lines = []
    a.c("a word that had not arrived (sentinel = NaN pair) poisons its row in every wave alike: reload coherently, validate, redo once")
    a.e(f"{lredo}:\ns_cmp_lg_u32 s53, 0\ns_cbranch_scc1 {lok}\ns_mov_b32 s53, 1\ns_barrier")
    poll(a, lambda: frag_loads(a, lambda k: vr(OF + 4 * k), 8, 27, 'sc1'), range(OF, OF + 32), T + 4, name='ofr')
    for k in range(8): a.e(f"ds_write_b128 v{T}, {vr(OF+4*k)} offset:{k*1024}")
    a.e(f"s_waitcnt lgkmcnt(0)\ns_barrier\ns_branch {lmm}")
    a.cold.append("\n".join(a.lines)); a.lines = sav
    a.stamp(sbase + '_mm')
    nxt = 0 if isA else L.ARENA
    xo, so = (L.XM, L.STM) if isA else (L.XIN, L.STIN)
    a.e(f"""
    s_mul_i32 s20, s31, {28*1024}
    s_lshl_b32 s21, s32, 11
    s_add_u32 s20, s20, s21
    s_add_u32 s20, s20, s30
    s_add_u32 s20, s20, {nxt + xo}
    s_lshl_b32 s21, s31, 12
    s_lshl_b32 s22, s32, 8
    s_add_u32 s21, s21, s22
    s_add_u32 s21, s21, s30
    s_add_u32 s21, s21, {nxt + so}
    s_mov_b32 s22, 0x3f803f80
    v_lshlrev_b32 v{T+6}, 3, v2
    s_nop 1
    v_cmp_u_f32 vcc, v{ACC}, v{ACC}
    s_nop 1
    s_cmp_lg_u64 vcc, 0
    s_cbranch_scc1 {lredo}
{lok}:
    s_cmp_ge_u32 s32, 14
    s_cbranch_scc1 {lskip}
    v_mov_b32 v{T}, 0
    v_mov_b32 v{T+1}, 0
    """)
    for q in range(8): a.e(f"v_cvt_pk_bf16_f32 v{PK+q}, v{ACC+2*q}, v{ACC+2*q+1}")
    lfin = a.lab('op_fin')
    if not isA:
        a.e(f"s_cmp_lg_u32 s33, 0\ns_cbranch_scc1 {lfin}")
    clamp(a, range(PK, PK + 8))
    a.e(f"""
    buffer_store_dwordx4 {vr(PK)}, v1, s[8:11], s20 offen sc1
    buffer_store_dwordx4 {vr(PK+4)}, v1, s[8:11], s20 offen offset:1024 sc1
    """)
    for q in range(8):
        a.e(f"v_dot2_f32_bf16 v{T}, v{PK+q}, s22, v{T}\nv_dot2_f32_bf16 v{T+1}, v{PK+q}, v{PK+q}, v{T+1}")
    a.e(f"""
    s_nop 3
    v_mov_b32 v{T+2}, v{T}
    v_mov_b32 v{T+3}, v{T+1}
    s_nop 1
    v_permlane32_swap_b32 v{T}, v{T+2}
    v_permlane32_swap_b32 v{T+1}, v{T+3}
    s_nop 1
    v_add_f32 v{T}, v{T}, v{T+2}
    v_add_f32 v{T+1}, v{T+1}, v{T+3}
    v_min_u32 v{T}, s54, v{T}
    v_min_u32 v{T+1}, s54, v{T+1}
    s_mov_b32 exec_hi, 0
    buffer_store_dwordx2 v[{T}:{T+1}], v{T+6}, s[8:11], s21 offen sc1
    s_mov_b64 exec, -1
    """)
    if not isA:
        sav = a.lines; a.lines = []
        a.e(f"""
{lfin}:
        s_lshl_b32 s21, s31, 5
        v_add_u32 v{T}, s21, v2
        v_mul_u32_u24 v{T}, 896, v{T}
        v_lshl_add_u32 v{T}, v3, 3, v{T}
        s_lshl_b32 s21, s32, 6
        """)
        for q in range(4): a.e(f"buffer_store_dwordx2 v[{PK+2*q}:{PK+2*q+1}], v{T}, s[12:15], s21 offen offset:{16*q}")
        a.e(f"s_branch {lskip}")
        a.cold.append("\n".join(a.lines)); a.lines = sav
    a.e(f"{lskip}:")
    a.stamp(sbase + '_pub')

QB = 224
def qkv_b(a):
    XF, AQ, AK, AV, WR, CQ, CK, STT, MU, RS, T = 16, 128, 144, 160, 176, 192, 208, 4, 232, 233, 248
    NWR = 4
    STT = 176 - 0
    a.c("==== QKV_B : head s5, m-tile s6")
    a.e(f"""
    s_mul_i32 s21, s5, 384
    s_add_u32 s21, s21, {L.CSB}
    v_lshlrev_b32 v{T+1}, 4, v3
    v_lshlrev_b32 v{T+2}, 2, v2
    """)
    for q in range(4): a.e(f"buffer_load_dwordx4 {vr(CQ+4*q)}, v{T+1}, s[8:11], s21 offen offset:{q*32}")
    for q in range(4): a.e(f"buffer_load_dwordx4 {vr(CK+4*q)}, v{T+1}, s[8:11], s21 offen offset:{128+q*32}")
    a.e(f"buffer_load_dword v{T+3}, v{T+2}, s[8:11], s21 offen offset:256")
    ST2 = 128
    if WOB_MODE == 'poll': stats_poll(a, ST2, L.STM, 6, T, T + 1, lambda: wo_loads(a, L.WOB, 0, 16), 16)
    else: stats_poll(a, ST2, L.STM, 6, T, T + 1)
    a.stamp('qb_st')
    a.e(f"""
    s_mul_i32 s21, s6, {28*1024}
    s_add_u32 s21, s21, s30
    s_add_u32 s21, s21, {L.XM}
    s_mov_b32 s35, 0
    """)
    frag_loads(a, lambda k: vr(XF + 4 * k), 28, 21)
    stats_finish(a, ST2, MU, RS, T + 5)
    a.e(f"""
    v_mul_f32 v{T+5}, v{MU}, v{RS}
    s_lshl_b32 s20, s3, 8
    s_add_u32 s20, s20, {LSM}
    v_lshl_add_u32 v{T+6}, v2, 2, s20
    v_lshl_add_u32 v{T+7}, v3, 4, s20
    ds_write_b32 v{T+6}, v{RS}
    ds_write_b32 v{T+6}, v{T+5} offset:128
    v_add_u32 v{T+4}, {56*1024}, v1
    """)
    lmm, lredo, lok = a.lab('qb_mm'), a.lab('qb_redo'), a.lab('qb_ok')
    a.e(f"{lmm}:")
    def chain(seq, first):
        def rd(idx):
            k, p = seq[idx]; o = (p * 28 + k) * 1024
            if o >= 56 * 1024: a.e(f"ds_read_b128 {vr(WR+4*(idx%NWR))}, v{T+4} offset:{o-56*1024}")
            else: a.e(f"ds_read_b128 {vr(WR+4*(idx%NWR))}, v1 offset:{o}")
        for idx in range(NWR - 1): rd(idx)
        for idx, (k, p) in enumerate(seq):
            if idx + NWR - 1 < len(seq): rd(idx + NWR - 1)
            rem = min(NWR - 1, len(seq) - 1 - idx)
            if first and p == 1: a.e(f"s_waitcnt vmcnt({27-k}) lgkmcnt({rem})")
            else: a.e(f"s_waitcnt lgkmcnt({rem})")
            acc = [AQ, AK, AV][p]; w = vr(WR + 4 * (idx % NWR)); x = vr(XF + 4 * k)
            cc = '0' if k == 0 else vr(acc, 16)
            if p < 2: a.e(f"{MF} {vr(acc,16)}, {w}, {x}, {cc}")
            else: a.e(f"{MF} {vr(acc,16)}, {x}, {w}, {cc}")
    a.c("K and V chains first (published to the neighbours); WOB fragments are prefetched in between")
    chain([(k, p) for k in range(28) for p in (1, 2)], True)
    a.stamp('qb_mm')
    if a.INSTR: a.e("s_waitcnt lgkmcnt(0)")
    a.e('s_nop 3')
    RSr, MRr, PKK, PV = AQ, WR, AK, AV
    for q in range(4):
        a.e(f"ds_read_b128 {vr(RSr+4*q)}, v{T+7} offset:{q*32}\nds_read_b128 {vr(MRr+4*q)}, v{T+7} offset:{128+q*32}")
    a.c("a not-yet-arrived x word (sentinel = bf16 NaN pair) poisons the row: any NaN -> re-load coherently, validate, redo")
    a.e(f"""
    v_cmp_u_f32 vcc, v{AK}, v{AK}
    v_mul_f32 v{T+5}, {fbits(QS)}, v{RS}
    v_cmp_eq_u32 s[24:25], 28, v2
    s_cmp_lg_u64 vcc, 0
    s_cbranch_scc1 {lredo}
{lok}:
    """)
    sav = a.lines; a.lines = []
    lr2 = a.lab('qb_r2')
    a.e(f"""
{lredo}:
    s_cmp_lg_u32 s35, 0
    s_cbranch_scc1 {lok}
    s_waitcnt lgkmcnt(0)
{lr2}:
    s_add_u32 s35, s35, 1
    s_cmp_ge_u32 s35, {SPIN}
    s_cbranch_scc1 {lmm}
    """)
    frag_loads(a, lambda k: vr(XF + 4 * k), 28, 21, 'sc1')
    a.e("s_waitcnt vmcnt(0)")
    check(a, range(XF, XF + 112), T, lr2)
    a.e(f"s_branch {lmm}")
    a.cold.append("\n".join(a.lines)); a.lines = sav
    pk_fma_s(a, AK, MU, CK, AK)
    pk_mul_hi(a, AK, RS, AK)
    for q in range(8): a.e(f"v_cvt_pk_bf16_f32 v{PKK+q}, v{AK+2*q}, v{AK+2*q+1}")
    a.e(f"""
    v_cmp_eq_u32 vcc, 1, v3
    v_mov_b32 v{T+1}, 0
    v_mov_b32 v{T}, 0x3f803f80
    v_mov_b32 v{T+6}, 0x00003f80
    """)
    for q in range(8): a.e(f"v_dot2_f32_bf16 v{T+1}, v{PKK+q}, v{PKK+q}, v{T+1}")
    a.e(f"""
    s_lshl_b32 s20, s5, 17
    s_lshl_b32 s21, s6, 11
    s_add_u32 s20, s20, s21
    s_add_u32 s20, s20, s30
    s_add_u32 s21, s20, {L.KB}
    s_add_u32 s22, s20, {L.VB}
    s_lshl_b32 s20, s3, 12
    s_add_u32 s20, s20, {LSCR + 8*4096}
    v_cndmask_b32 v{PKK+6}, v{PKK+6}, v{T}, vcc
    v_cndmask_b32 v{PKK+7}, v{PKK+7}, v{T+6}, vcc
    v_add_u32 v{T+6}, s20, v1
    v_mov_b32 v{T+2}, v{T+1}
    """)
    clamp(a, range(PKK, PKK + 8))
    a.e(f"""
    buffer_store_dwordx4 {vr(PKK)}, v1, s[8:11], s21 offen sc1
    buffer_store_dwordx4 {vr(PKK+4)}, v1, s[8:11], s21 offen offset:1024 sc1
    v_permlane32_swap_b32 v{T+1}, v{T+2}
    s_waitcnt lgkmcnt(0)
    """)
    for r in range(0, 16, 2): a.e(f"v_pk_mul_f32 v[{AV+r}:{AV+r+1}], v[{AV+r}:{AV+r+1}], v[{RSr+r}:{RSr+r+1}]")
    a.e(f"v_add_f32 v{T+1}, v{T+1}, v{T+2}")
    for r in range(0, 16, 2): a.e(f"v_pk_fma_f32 v[{AV+r}:{AV+r+1}], v[{T+2}:{T+3}], v[{MRr+r}:{MRr+r+1}], v[{AV+r}:{AV+r+1}] op_sel:[1,0,0] op_sel_hi:[1,1,1]")
    a.e(f"v_max_f32_dpp v{T+1}, v{T+1}, v{T+1} quad_perm:[1,0,3,2] row_mask:0xf bank_mask:0xf")
    for q in range(8): a.e(f"v_cvt_pk_bf16_f32 v{PV+q}, v{AV+2*q}, v{AV+2*q+1}")
    a.e(f"v_max_f32_dpp v{T+1}, v{T+1}, v{T+1} quad_perm:[2,3,0,1] row_mask:0xf bank_mask:0xf")
    for q in range(8): a.e(f"v_cndmask_b32 v{PV+q}, v{PV+q}, v{T}, s[24:25]")
    a.e(f"v_max_f32_dpp v{T+1}, v{T+1}, v{T+1} row_half_mirror row_mask:0xf bank_mask:0xf")
    clamp(a, range(PV, PV + 8))
    a.e(f"""
    v_max_f32_dpp v{T+1}, v{T+1}, v{T+1} row_mirror row_mask:0xf bank_mask:0xf
    buffer_store_dwordx4 {vr(PV)}, v1, s[8:11], s22 offen sc1
    buffer_store_dwordx4 {vr(PV+4)}, v1, s[8:11], s22 offen offset:1024 sc1
    s_lshl_b32 s20, s5, 4
    s_add_u32 s20, s20, s4
    s_lshl_b32 s20, s20, 7
    s_lshl_b32 s21, s3, 2
    s_add_u32 s20, s20, s21
    s_add_u32 s20, s20, s30
    s_add_u32 s20, s20, {L.KNB}
    v_readlane_b32 s24, v{T+1}, 0
    v_readlane_b32 s25, v{T+1}, 16
    s_add_u32 s21, s21, {LSM + 3072}
    v_mov_b32 v{T+2}, 0
    v_mov_b32 v{T+3}, s21
    s_max_u32 s24, s24, s25
    s_min_u32 s24, s24, 0x7fc00000
    v_mov_b32 v{T}, s24
    s_mov_b64 exec, 1
    buffer_store_dword v{T}, v{T+2}, s[8:11], s20 offen sc1
    s_mov_b64 exec, -1
    s_barrier
    s_mov_b64 exec, 1
    ds_write_b32 v{T+3}, v{T}
    s_mov_b64 exec, -1
    ds_write_b128 v{T+6}, {vr(PKK)}
    ds_write_b128 v{T+6}, {vr(PKK+4)} offset:1024
    ds_write_b128 v{T+6}, {vr(PV)} offset:2048
    ds_write_b128 v{T+6}, {vr(PV+4)} offset:3072
    """)
    a.stamp('qb_pub')
    if a.INSTR: a.e("s_waitcnt lgkmcnt(0)")
    a.c("Q chain while the K/V hand-off is in flight")
    chain([(k, 0) for k in range(28)], False)
    a.e(f"v_mov_b32 v{T}, 0\ns_nop 7\ns_nop 2")
    pk_fma_s(a, AQ, MU, CQ, AQ)
    pk_mul_hi(a, AQ, T + 5, AQ)
    for q in range(8): a.e(f"v_cvt_pk_bf16_f32 v{QB+q}, v{AQ+2*q}, v{AQ+2*q+1}")
    for q in range(8): a.e(f"v_dot2_f32_bf16 v{T}, v{QB+q}, v{QB+q}, v{T}")
    a.e(f"""
    s_nop 3
    v_mov_b32 v{RS}, v{T}
    s_nop 1
    v_permlane32_swap_b32 v{T}, v{RS}
    s_nop 1
    v_add_f32 v{MU}, v{T}, v{RS}
    """)

def attn_b(a):
    QF, QN = QB, 232
    S0, S1, P, O, MHI, MLO, NL, KV, T = 24, 40, 56, 64, 80, 96, 112, 144, 4
    NR = 3
    SS = [S0, S1]
    NEG = fbits(-1e30)
    a.c("==== attention B : head s5, query tile s6; LDS tile slot i = global tile 4g-8+i")
    a.e(f"""
    s_lshl_b32 s20, s5, 4
    s_add_u32 s20, s20, s4
    s_lshl_b32 s20, s20, 7
    s_add_u32 s20, s20, s30
    s_add_u32 s21, s20, {L.KNB - 256}
    v_lshrrev_b32 v{T}, 2, v2
    v_and_b32 v{T}, 1, v{T}
    v_and_b32 v{T+1}, 3, v2
    v_lshlrev_b32 v{T+2}, 7, v{T}
    v_lshl_add_u32 v{T+2}, v{T+1}, 2, v{T+2}
    v_add_u32 v{T+3}, s4, v{T}
    v_cmp_gt_u32 s[26:27], 2, v{T+3}
    v_mov_b32 v{T+4}, 256
    v_lshl_add_u32 v{T+4}, v{T+1}, 2, v{T+4}
    v_cndmask_b32 v{T+2}, v{T+2}, v{T+4}, s[26:27]
    """)
    def gen_masks():
        a.c("mask tiles used as MFMA C operand")
        a.e(f"v_lshlrev_b32 v{T+5}, 2, v3\nv_sub_u32 v{T+5}, v2, v{T+5}\nv_cvt_f32_i32 v{T+5}, v{T+5}\nv_add_f32 v{T+5}, 0.5, v{T+5}\nv_mul_f32 v{T+5}, {fbits(2e30)}, v{T+5}")
        for r in range(16):
            ar_ = (r & 3) + 8 * (r >> 2)
            a.e(f"v_subrev_f32 v{MLO+r}, {fbits(2e30 * ar_)}, v{T+5}")
        for r in range(16):
            a.e(f"v_min_f32 v{MHI+r}, 0, v{MLO+r}\nv_min_f32_e64 v{MLO+r}, 0, -v{MLO+r}")
    a.c("neighbour tiles: this wave fetches slots 2w,2w+1 (clamped at tile 0)")
    a.e(f"""
    s_lshl_b32 s22, s4, 2
    s_lshl_b32 s23, s3, 1
    s_add_u32 s22, s22, s23
    s_sub_i32 s22, s22, 8
    s_max_i32 s22, s22, 0
    s_lshl_b32 s22, s22, 11
    s_lshl_b32 s23, s5, 17
    s_add_u32 s22, s22, s23
    s_add_u32 s22, s22, s30
    s_add_u32 s23, s22, {L.VB}
    s_add_u32 s22, s22, {L.KB}
    s_lshl_b32 s20, s3, 13
    s_add_u32 s20, s20, {LSCR}
    v_add_u32 v{T+7}, s20, v1
    s_min_u32 s28, s6, 8
    """)
    a.stamp('ab_pre')
    poll(a, lambda: a.e(f"buffer_load_dword v{T+8}, v{T+2}, s[8:11], s21 offen sc1"), [T + 8], T + 9, name='kb')
    a.stamp('ab_kn')
    lnn, lnm = a.lab('ab_nn'), a.lab('ab_nm')
    a.e(f"""
    s_lshl_b32 s24, s4, 2
    s_lshl_b32 s25, s3, 1
    s_add_u32 s24, s24, s25
    s_cmp_lt_u32 s24, 8
    s_cbranch_scc1 {lnm}
    """)
    def nl(fl=''):
        a.e(f"""
        buffer_load_dwordx4 {vr(NL)}, v1, s[8:11], s22 offen {fl}
        buffer_load_dwordx4 {vr(NL+4)}, v1, s[8:11], s22 offen offset:1024 {fl}
        buffer_load_dwordx4 {vr(NL+8)}, v1, s[8:11], s23 offen {fl}
        buffer_load_dwordx4 {vr(NL+12)}, v1, s[8:11], s23 offen offset:1024 {fl}
        buffer_load_dwordx4 {vr(NL+16)}, v1, s[8:11], s22 offen offset:2048 {fl}
        buffer_load_dwordx4 {vr(NL+20)}, v1, s[8:11], s22 offen offset:3072 {fl}
        buffer_load_dwordx4 {vr(NL+24)}, v1, s[8:11], s23 offen offset:2048 {fl}
        buffer_load_dwordx4 {vr(NL+28)}, v1, s[8:11], s23 offen offset:3072 {fl}
        """)
    nl()
    if WOB_MODE == 'poll': wo_loads(a, L.WOB, 16, 16)
    gen_masks()
    sav = a.lines; a.lines = []
    a.e(f"{lnm}:")
    if WOB_MODE == 'poll': wo_loads(a, L.WOB, 16, 16)
    gen_masks()
    a.e(f"s_branch {lnn}")
    a.cold.append("\n".join(a.lines)); a.lines = sav
    a.e("s_waitcnt vmcnt(16)" if WOB_MODE == 'poll' else "s_waitcnt vmcnt(0)")
    validated(a, lambda: nl('sc1'), range(NL, NL + 32), T + 9, 'nb')
    for k in range(8): a.e(f"ds_write_b128 v{T+7}, {vr(NL+4*k)} offset:{k*1024}")
    a.e(f"""
{lnn}:
    v_mov_b32 v{T+9}, {LSM + 3072}
    s_lshl_b32 s20, s3, 12
    s_add_u32 s20, s20, {LSCR + 8*4096}
    v_add_u32 v{T+7}, s20, v1
    s_waitcnt lgkmcnt(0)
    s_barrier
    ds_read_b128 {vr(NL)}, v{T+9}
    """)
    a.e(f"v_subrev_u32 v{T+7}, {8*4096}, v{T+7}")
    def rdt(k):
        for q in range(4): a.e(f"ds_read_b128 {vr(KV+16*(k%NR)+4*q)}, v{T+7} offset:{(8-k)*4096+q*1024}")
    a.c("Kmax over the two neighbour blocks and the own block (superset of the window)")
    row_max16(a, T + 8)
    a.e(f"""
    s_waitcnt lgkmcnt(0)
    v_max3_f32 v{T+8}, v{T+8}, v{NL}, v{NL+1}
    v_max3_f32 v{T+8}, v{T+8}, v{NL+2}, v{NL+3}
    s_nop 0
    v_readfirstlane_b32 s24, v{T+8}
    s_mov_b32 exec_lo, 0
    s_nop 1
    v_mul_f32 v{T}, s24, v{QN}
    v_sqrt_f32 v{T}, v{T}
    s_nop 0
    v_mul_f32 v{T}, {fbits(1.02)}, v{T}
    """)
    c_pieces(a, T, T + 1, QF + 6, QF + 7)
    a.e("s_mov_b64 exec, -1\ns_mov_b32 s29, 0")
    a.stamp('ab_go')
    if a.INSTR: a.e("s_waitcnt lgkmcnt(0)")
    lmain, lfin, lslow, lnorm = a.lab('ab_main'), a.lab('ab_fin'), a.lab('ab_slow'), a.lab('ab_norm')
    a.e(f"{lmain}:\ns_lshl_b32 s44, s36, 15\ns_add_u32 s44, s44, {L.WOB}")
    def wob(g, i):
        if g >= 8 or WOB_MODE != 'units': return
        if i == 0: a.e(f"s_add_u32 s43, s44, {g*4096}")
        a.e(f"buffer_load_dwordx4 {ar(AWO+16*g+4*i)}, v1, s[8:11], s43 offen offset:{i*1024}")
    rdt(0); rdt(1)
    for r in range(16): a.e(f"v_mov_b32 v{O+r}, 0")
    def cmask(k): return vr(MHI, 16) if k == 0 else (vr(MLO, 16) if k == 8 else '0')
    def kvb(k): return KV + 16 * (k % NR)
    a.e(f"""
    s_waitcnt lgkmcnt(4)
    {MF} {vr(S0,16)}, {vr(kvb(0))}, {vr(QF)}, {cmask(0)}
    {MF} {vr(S0,16)}, {vr(kvb(0)+4)}, {vr(QF+4)}, {vr(S0,16)}
    s_nop 7
    s_nop 3
    """)
    stubs = []
    for k in range(9):
        sb = SS[k & 1]; sn = SS[(k + 1) & 1]
        def ex(i0):
            for i in range(i0, i0 + 4): a.e(f"v_exp_f32 v{sb+i}, v{sb+i}")
        def cv(j0):
            for jx in (j0, j0 + 1): a.e(f"v_cvt_pk_bf16_f32 v{P+jx}, v{sb+2*jx}, v{sb+2*jx+1}")
        ex(0)
        if k < 8:
            a.e("s_waitcnt lgkmcnt(0)")
            a.e(f"{MF} {vr(sn,16)}, {vr(kvb(k+1))}, {vr(QF)}, {cmask(k+1)}")
        cv(0); wob(k, 0); ex(4)
        if k < 8: a.e(f"{MF} {vr(sn,16)}, {vr(kvb(k+1)+4)}, {vr(QF+4)}, {vr(sn,16)}")
        cv(2); wob(k, 1); ex(8)
        if k > 0: a.e(f"{MF} {vr(O,16)}, {vr(kvb(k-1)+12)}, {vr(P+4)}, {vr(O,16)}")
        cv(4)
        if k + 2 <= 8: rdt(k + 2)
        wob(k, 2)
        ex(12)
        a.e(f"{MF} {vr(O,16)}, {vr(kvb(k)+8)}, {vr(P)}, {vr(O,16)}")
        wob(k, 3)
        cv(6)
        if k < 8:
            st = a.lab('ab_x'); stubs.append((st, k))
            a.e(f"s_cmp_eq_u32 s28, {k}\ns_cbranch_scc1 {st}")
        else:
            a.e(f"s_nop 1\n{MF} {vr(O,16)}, {vr(kvb(k)+12)}, {vr(P+4)}, {vr(O,16)}")
    a.e(f"{lfin}:")
    a.stamp('ab_end')
    a.e(f"""
    s_lshl_b32 s20, s6, 15
    s_lshl_b32 s21, s5, 11
    s_add_u32 s20, s20, s21
    s_add_u32 s20, s20, s30
    s_add_u32 s20, s20, {L.OB}
    s_lshl_b32 s21, s6, 11
    s_lshl_b32 s22, s5, 7
    s_add_u32 s21, s21, s22
    s_add_u32 s21, s21, s30
    s_add_u32 s21, s21, {L.HOB}
    s_mov_b32 s22, {fbits(THR)}
    v_mov_b32 v{T+4}, 0
    s_waitcnt lgkmcnt(0)
    v_mov_b32 v{T+2}, v{O+12}
    v_mov_b32 v{T+3}, v{O+12}
    s_nop 1
    v_permlane32_swap_b32 v{T+2}, v{T+3}
    s_nop 1
    v_cmp_gt_f32 vcc, s22, v{T+3}
    s_nop 1
    s_cmp_lg_u64 vcc, 0
    s_cbranch_scc1 {lslow}
{lnorm}:
    v_rcp_f32 v{T+3}, v{T+3}
    s_nop 0
    """)
    pk_mul_hi(a, O, T + 3, O)
    for q in range(8): a.e(f"v_cvt_pk_bf16_f32 v{P+q}, v{O+2*q}, v{O+2*q+1}")
    clamp(a, range(P, P + 8))
    a.e(f"""
    buffer_store_dwordx4 {vr(P)}, v1, s[8:11], s20 offen sc1
    buffer_store_dwordx4 {vr(P+4)}, v1, s[8:11], s20 offen offset:1024 sc1
    s_mov_b64 exec, 1
    buffer_store_dword v{T+4}, v{T+4}, s[8:11], s21 offen sc1
    s_mov_b64 exec, -1
    """)
    a.stamp('ab_pub')
    sav = a.lines; a.lines = []
    cu = [a.lab('ab_cu') for _ in range(9)]
    for st, k in stubs:
        a.e(f"{st}:\n{MF} {vr(O,16)}, {vr(kvb(k)+12)}, {vr(P+4)}, {vr(O,16)}\ns_branch {cu[k+1]}")
    for g in range(1, 9):
        a.e(f"{cu[g]}:")
        for i in range(4): wob(g, i)
    a.e(f"s_branch {lfin}")
    lsm = a.lab('ab_sm')
    a.e(f"""
{lslow}:
    s_cmp_lg_u32 s29, 0
    s_cbranch_scc1 {lnorm}
    """)
    a.c("exact fallback: true (masked) row max, then rerun")
    a.e(f"""
    v_cmp_eq_u32 vcc, 1, v3
    v_mov_b32 v{T}, 0xff800000
    s_mov_b32 s29, 1
    v_cndmask_b32 v{QF+6}, v{QF+6}, 0, vcc
    v_cndmask_b32 v{QF+7}, v{QF+7}, 0, vcc
    """)
    for k in range(9):
        a.e(f"""
        ds_read_b128 {vr(KV)}, v{T+7} offset:{(8-k)*4096}
        ds_read_b128 {vr(KV+4)}, v{T+7} offset:{(8-k)*4096+1024}
        s_waitcnt lgkmcnt(0)
        {MF} {vr(S0,16)}, {vr(KV)}, {vr(QF)}, {cmask(k)}
        {MF} {vr(S0,16)}, {vr(KV+4)}, {vr(QF+4)}, {vr(S0,16)}
        s_nop 15
        """)
        for r in range(0, 16, 2): a.e(f"v_max3_f32 v{T}, v{T}, v{S0+r}, v{S0+r+1}")
        if k < 8: a.e(f"s_cmp_eq_u32 s28, {k}\ns_cbranch_scc1 {lsm}")
    a.e(f"""
{lsm}:
    v_mov_b32 v{T+1}, v{T}
    s_nop 1
    v_permlane32_swap_b32 v{T}, v{T+1}
    s_nop 1
    v_max_f32 v{T}, v{T}, v{T+1}
    s_mov_b32 exec_lo, 0
    """)
    c_pieces(a, T, T + 1, QF + 6, QF + 7)
    a.e(f"s_mov_b64 exec, -1\ns_branch {lmain}")
    a.cold.append("\n".join(a.lines)); a.lines = sav
```

```python
from asm import *
F0 = (A(0, L.STM), A(0, L.QA) + 256 * 8192)
F1 = (A(1, L.STIN), A(1, L.HEND))
assert L.HEND == L.QA
NF0 = (F0[1] - F0[0] + 16383) // 16384
NF1 = (F1[1] - F1[0] + 16383) // 16384
NFILL = NF0 + NF1
NPREP = 800 + NFILL
import os
SC = os.environ.get('PREP_SC', '')
def gen_prep(a):
    a.begin('prep_kernel', NPREP, vgpr=48, lds=2048, sgpr=64)
    a.e(f"""
    s_cmp_ge_u32 s2, {NPREP}
    s_cbranch_scc1 P_done
    s_load_dwordx16 s[16:31], s[0:1], 0
    s_load_dwordx2 s[32:33], s[0:1], 80
    v_and_b32 v1, 63, v0
    v_lshrrev_b32 v4, 6, v0
    v_and_b32 v2, 31, v0
    v_bfe_u32 v3, v0, 5, 1
    v_readfirstlane_b32 s3, v4
    v_lshlrev_b32 v5, 4, v1
    v_mov_b32 v8, 0
    v_mov_b32 v9, 0
    v_mov_b32 v16, 0
    v_mov_b32 v17, 0
    v_mov_b32 v18, 0
    v_mov_b32 v19, 0
    v_mov_b32 v20, 0
    v_mov_b32 v21, 0
    v_mov_b32 v22, 0
    v_mov_b32 v23, 0
    s_waitcnt lgkmcnt(0)
    """)
    a.srd(8, 32, L.TOTAL)
    a.e(f"""
    s_cmp_lt_u32 s2, {NFILL}
    s_cbranch_scc1 P_fill
    s_sub_u32 s2, s2, {NFILL}
    s_lshl_b32 s4, s2, 2
    s_add_u32 s4, s4, s3
    """)
    a.e("""
    s_cmp_ge_u32 s2, 736
    s_cbranch_scc1 P_x0
    s_cmp_ge_u32 s2, 672
    s_cbranch_scc1 P_cs
    s_cmp_ge_u32 s2, 336
    s_cbranch_scc1 P_wb
    """)
    for t in range(8): a.e(f"s_mov_b32 s{40+t}, {(8*(t>>2)+(t&3))*896}")
    a.e("""
    s_cmp_ge_u32 s2, 112
    s_cbranch_scc1 P_wo
    """)
    def gather(srd, voff, use_s=True, ld=56):
        for t in range(8):
            op = 'buffer_load_ushort'
            if use_s: a.e(f"{op} v{16+t}, v{voff}, s[{srd}:{srd+3}], s{40+t} offen")
            else: a.e(f"{op} v{16+t}, v{voff}, s[{srd}:{srd+3}], 0 offen offset:{(8*(t>>2)+(t&3))*ld}")
    PACK = "\n".join(f"v_lshl_or_b32 v{8+q}, v{17+2*q}, 16, v{16+2*q}" for q in range(4))
    a.c("WQA fragments: task=s4 -> j=s5, ks=s6")
    a.e("""
    s_mul_i32 s5, s4, 2341
    s_lshr_b32 s5, s5, 16
    s_mul_i32 s6, s5, 28
    s_sub_u32 s6, s4, s6
    """)
    a.srd(12, 18, 448 * 896)
    a.e(f"""
    s_lshl_b32 s7, s6, 4
    v_lshl_add_u32 v6, v3, 2, s7
    s_mul_i32 s34, s5, 56
    v_mul_u32_u24 v7, 896, v6
    v_lshl_add_u32 v7, v2, 1, v7
    v_add_u32 v7, s34, v7
    v_cmp_gt_u32 vcc, 28, v2
    s_and_saveexec_b64 s[36:37], vcc
    """)
    gather(12, 7)
    a.e(f"""
    s_andn2_b64 exec, s[36:37], exec
    s_and_b32 s34, s5, 7
    s_cmp_eq_u32 s34, 7
    s_cbranch_scc1 P_wqa_st
    s_cmp_ge_u32 s5, 8
    s_cbranch_scc1 P_wqa_v
    s_mov_b32 s12, s20
    s_mov_b32 s13, s21
    s_lshl_b32 s34, s5, 3
    s_branch P_wqa_kv
P_wqa_v:
    s_mov_b32 s12, s22
    s_mov_b32 s13, s23
    s_sub_u32 s34, s5, 8
    s_lshl_b32 s34, s34, 3
P_wqa_kv:
    s_mov_b32 s14, {448*56}
    s_mov_b32 s15, 0x00020000
    s_sub_u32 s34, s34, 56
    v_mul_u32_u24 v7, 56, v6
    v_lshl_add_u32 v7, v2, 1, v7
    v_add_u32 v7, s34, v7
    """)
    gather(12, 7, use_s=False)
    a.e(f"""
P_wqa_st:
    s_mov_b64 exec, s[36:37]
    s_lshl_b32 s34, s4, 10
    s_add_u32 s34, s34, {L.WQA}
    s_waitcnt vmcnt(0)
    {PACK}
    buffer_store_dwordx4 v[8:11], v5, s[8:11], s34 offen {SC}
    s_endpgm
    """)
    a.e(f"""
P_wo:
    s_sub_u32 s4, s4, 448
    s_cmp_ge_u32 s2, 224
    s_cbranch_scc1 P_wob
    s_mov_b32 s12, s24
    s_mov_b32 s13, s25
    s_mov_b32 s35, {L.WOA}
    s_branch P_wo2
P_wob:
    s_sub_u32 s4, s4, 448
    s_mov_b32 s12, s30
    s_mov_b32 s13, s31
    s_mov_b32 s35, {L.WOB}
P_wo2:
    s_mov_b32 s14, {448*896}
    s_mov_b32 s15, 0x00020000
    s_lshr_b32 s5, s4, 5
    s_and_b32 s6, s4, 31
    s_lshr_b32 s7, s6, 1
    s_mul_i32 s7, s7, 28
    s_and_b32 s34, s6, 1
    s_lshl_b32 s38, s34, 4
    s_add_u32 s7, s7, s38
    v_lshl_add_u32 v6, v3, 2, s7
    v_mul_u32_u24 v7, 896, v6
    v_lshl_add_u32 v7, v2, 1, v7
    s_lshl_b32 s38, s5, 6
    v_add_u32 v7, s38, v7
    """)
    gather(12, 7)
    a.e(f"""
    v_and_b32 v6, s34, v3
    v_cmp_eq_u32 vcc, 0, v6
    s_lshl_b32 s34, s4, 10
    s_add_u32 s34, s34, s35
    s_waitcnt vmcnt(0)
    {PACK}
    v_cndmask_b32 v10, 0, v10, vcc
    v_cndmask_b32 v11, 0, v11, vcc
    buffer_store_dwordx4 v[8:11], v5, s[8:11], s34 offen {SC}
    s_endpgm
    """)
    a.e("P_wb:")
    for t in range(8): a.e(f"s_mov_b32 s{40+t}, {(8*(t>>2)+(t&3))*2688}")
    a.srd(12, 28, 448 * 2688)
    a.e(f"""
    s_sub_u32 s4, s4, 1344
    s_mul_i32 s5, s4, 2341
    s_lshr_b32 s5, s5, 16
    s_mul_i32 s6, s5, 28
    s_sub_u32 s6, s4, s6
    s_mul_i32 s7, s5, 21846
    s_lshr_b32 s7, s7, 16
    s_mul_i32 s34, s7, 3
    s_sub_u32 s34, s5, s34
    s_mul_i32 s34, s34, 896
    s_mul_i32 s7, s7, 56
    s_add_u32 s34, s34, s7
    s_lshl_b32 s7, s6, 4
    v_lshl_add_u32 v6, v3, 2, s7
    v_mul_u32_u24 v7, 2688, v6
    v_lshl_add_u32 v7, v2, 1, v7
    v_add_u32 v7, s34, v7
    v_cmp_gt_u32 vcc, 28, v2
    s_and_saveexec_b64 s[36:37], vcc
    """)
    gather(12, 7)
    a.e(f"""
    s_mov_b64 exec, s[36:37]
    s_lshl_b32 s34, s4, 10
    s_add_u32 s34, s34, {L.WB}
    s_waitcnt vmcnt(0)
    {PACK}
    buffer_store_dwordx4 v[8:11], v5, s[8:11], s34 offen {SC}
    s_endpgm
    """)
    a.e(f"""
P_cs:
    s_sub_u32 s5, s2, 672
    v_and_b32 v2, 15, v0
    v_lshrrev_b32 v3, 4, v0
    v_mul_u32_u24 v3, 28, v3
    """)
    for t in range(28): a.e(f"v_mov_b32 v{16+t}, 0")
    a.e(f"""
    s_cmp_ge_u32 s5, 16
    s_cbranch_scc1 P_cs_b
    """)
    a.srd(12, 18, 448 * 896)
    a.e(f"""
    s_mul_i32 s34, s5, 56
    v_mul_u32_u24 v7, 896, v3
    v_lshl_add_u32 v7, v2, 2, v7
    v_add_u32 v7, s34, v7
    s_mov_b32 s38, 0
    v_cmp_gt_u32 vcc, 14, v2
    s_and_saveexec_b64 s[36:37], vcc
    """)
    for t in range(28):
        a.e(f"buffer_load_dword v{16+t}, v7, s[12:15], s38 offen offset:{(t%4)*896}")
        if t % 4 == 3: a.e("s_add_u32 s38, s38, 3584")
    a.e(f"""
    s_andn2_b64 exec, s[36:37], exec
    s_lshl_b32 s35, s5, 7
    s_add_u32 s35, s35, {L.CSA}
    s_and_b32 s34, s5, 7
    s_cmp_eq_u32 s34, 7
    s_cbranch_scc1 P_cs_red
    s_cmp_ge_u32 s5, 8
    s_cbranch_scc1 P_cs_v
    s_mov_b32 s12, s20
    s_mov_b32 s13, s21
    s_lshl_b32 s34, s5, 3
    s_branch P_cs_kv
P_cs_v:
    s_mov_b32 s12, s22
    s_mov_b32 s13, s23
    s_sub_u32 s34, s5, 8
    s_lshl_b32 s34, s34, 3
P_cs_kv:
    s_mov_b32 s14, {448*56}
    s_mov_b32 s15, 0x00020000
    s_sub_u32 s34, s34, 56
    v_mul_u32_u24 v7, 56, v3
    v_lshl_add_u32 v7, v2, 2, v7
    v_add_u32 v7, s34, v7
    """)
    for t in range(28):
        a.e(f"buffer_load_dword v{16+t}, v7, s[12:15], 0 offen offset:{t*56}")
    a.e(f"""
    s_branch P_cs_red
P_cs_b:
    s_sub_u32 s5, s5, 16
    """)
    a.srd(12, 28, 448 * 2688)
    a.e(f"""
    s_mul_i32 s7, s5, 21846
    s_lshr_b32 s7, s7, 16
    s_mul_i32 s34, s7, 3
    s_sub_u32 s34, s5, s34
    s_mul_i32 s34, s34, 896
    s_mul_i32 s7, s7, 56
    s_add_u32 s34, s34, s7
    s_mov_b32 s7, 2688
    v_mul_lo_u32 v7, s7, v3
    v_lshl_add_u32 v7, v2, 2, v7
    v_add_u32 v7, s34, v7
    s_lshl_b32 s35, s5, 7
    s_add_u32 s35, s35, {L.CSB}
    s_mov_b32 s38, 0
    v_cmp_gt_u32 vcc, 14, v2
    s_and_saveexec_b64 s[36:37], vcc
    """)
    for t in range(28):
        a.e(f"buffer_load_dword v{16+t}, v7, s[12:15], s38 offen offset:{(t%2)*2688}")
        if t % 2 == 1: a.e("s_add_u32 s38, s38, 5376")
    a.e(f"""
P_cs_red:
    s_mov_b64 exec, s[36:37]
    v_mov_b32 v8, 0
    v_mov_b32 v9, 0
    s_waitcnt vmcnt(0)
    """)
    for t in range(28):
        a.e(f"""
        v_lshlrev_b32 v10, 16, v{16+t}
        v_and_b32 v11, 0xffff0000, v{16+t}
        v_add_f32 v8, v8, v10
        v_add_f32 v9, v9, v11
        """)
    a.e(f"""
    v_lshlrev_b32 v6, 3, v0
    ds_write_b64 v6, v[8:9]
    s_waitcnt lgkmcnt(0)
    s_barrier
    v_cmp_gt_u32 vcc, 32, v0
    s_and_saveexec_b64 s[36:37], vcc
    s_cbranch_execz P_done
    v_lshlrev_b32 v6, 2, v0
    """)
    for t in range(16): a.e(f"ds_read_b32 v{16+t}, v6 offset:{t*128}")
    a.e("s_waitcnt lgkmcnt(0)")
    for t in range(1, 16): a.e(f"v_add_f32 v16, v16, v{16+t}")
    a.e(f"""
    buffer_store_dword v16, v6, s[8:11], s35 offen {SC}
    s_endpgm
    """)
    a.e(f"""
P_x0:
    s_sub_u32 s5, s2, 736
    """)
    a.srd(12, 16, S * 896)
    a.e(f"""
    s_lshl_b32 s6, s5, 5
    v_add_u32 v6, s6, v2
    v_mul_u32_u24 v7, 896, v6
    v_lshl_add_u32 v7, v3, 3, v7
    s_mul_i32 s7, s3, 224
    """)
    for q in range(7):
        a.e(f"buffer_load_dwordx2 v[{16+4*q}:{17+4*q}], v7, s[12:15], s7 offen offset:{32*q}")
        a.e(f"buffer_load_dwordx2 v[{18+4*q}:{19+4*q}], v7, s[12:15], s7 offen offset:{32*q+16}")
    a.e(f"""
    s_mul_i32 s34, s5, {28*1024}
    s_mul_i32 s35, s3, {7*1024}
    s_add_u32 s34, s34, s35
    s_add_u32 s34, s34, {A(0, L.XIN)}
    s_add_u32 s35, s34, 4096
    s_mov_b32 s38, 0x3f803f80
    s_waitcnt vmcnt(0)
    """)
    for q in range(7):
        so = 's34' if q < 4 else 's35'
        a.e(f"buffer_store_dwordx4 v[{16+4*q}:{19+4*q}], v5, s[8:11], {so} offen offset:{(q%4)*1024} {SC}")
    for r in range(28):
        a.e(f"v_dot2_f32_bf16 v8, v{16+r}, s38, v8\nv_dot2_f32_bf16 v9, v{16+r}, v{16+r}, v9")
    a.e(f"""
    s_nop 3
    v_mov_b32 v10, v8
    v_mov_b32 v11, v9
    s_nop 1
    v_permlane32_swap_b32 v8, v10
    v_permlane32_swap_b32 v9, v11
    s_nop 1
    v_add_f32 v8, v8, v10
    v_add_f32 v9, v9, v11
    v_cmp_eq_u32 vcc, 0, v3
    v_lshlrev_b32 v6, 3, v2
    v_lshl_add_u32 v6, v3, 10, v6
    v_cndmask_b32 v8, 0, v8, vcc
    v_cndmask_b32 v9, 0, v9, vcc
    v_mov_b32 v10, 0
    v_mov_b32 v11, 0
    s_lshl_b32 s34, s5, 12
    s_lshl_b32 s35, s3, 8
    s_add_u32 s34, s34, s35
    s_add_u32 s34, s34, {A(0, L.STIN)}
    buffer_store_dwordx2 v[8:9], v6, s[8:11], s34 offen {SC}
    buffer_store_dwordx2 v[10:11], v6, s[8:11], s34 offen offset:2048 {SC}
    s_endpgm
    """)
    a.e(f"""
P_fill:
    v_mov_b32 v8, -1
    v_mov_b32 v9, -1
    v_mov_b32 v10, -1
    v_mov_b32 v11, -1
    v_lshlrev_b32 v6, 4, v0
    s_lshl_b32 s34, s2, 14
    s_add_u32 s35, s34, {F1[0] - NF0 * 16384}
    s_add_u32 s34, s34, {F0[0]}
    s_cmp_lt_u32 s2, {NF0}
    s_cselect_b32 s34, s34, s35
    s_mov_b32 s35, {F1[1]}
    s_cselect_b32 s10, {F0[1]}, s35
    """)
    for k in range(4):
        a.e(f"buffer_store_dwordx4 v[8:11], v6, s[8:11], s34 offen {SC}\ns_add_u32 s34, s34, 4096")
    a.e("""
P_done:
    s_endpgm
    """)
```

```python
import sys, os
from asm import *
from prep import *
from phases import *
HEADER = """; interleave_layers (MQA full attention / sliding-window attention, 2x each) for gfx950 -- generated by own scripts.
; (explicitly, or through the NaN it would cause) and re-read coherently on failure.  No placement assumption."""
a = Asm()
a.cold = []
if os.environ.get('INSTR'):
    Asm.INSTR = True
    Asm.SEL = os.environ['INSTR'].split(',')
    assert len(Asm.SEL) <= 15 and Asm.SEL[0] == 'entry'
gen_prep(a)
a.begin('main_kernel', 256, vgpr=256, agpr=240, lds=LDS_TOTAL, sgpr=100)
entry(a, 'M_done')
a.e("M_pair:")
qkv_a(a)
attn_a(a)
out_proj(a, 'A', 'oa')
qkv_b(a)
attn_b(a)
out_proj(a, 'B', 'ob')
if Asm.INSTR:
    a.stamp_out(16)
a.e(f"""
    s_cmp_lg_u32 s33, 0
    s_cbranch_scc1 M_done
    s_mov_b32 s33, 1
    s_add_u32 s30, s30, {L.ARENA}
    s_branch M_pair
""")
for c in a.cold: a.e(c)
a.e("M_done:\ns_endpgm")
open(sys.argv[1], 'w').write(a.text(header=('; STAMPS ' + ','.join(Asm.SEL)) if Asm.INSTR else HEADER))
```

```python
from asm import *
import math, struct
QS = (28 ** -0.5) * math.log2(math.e)
def fbits(x): return '0x%08x' % struct.unpack('<I', struct.pack('<f', x))[0]
MF = 'v_mfma_f32_32x32x16_bf16'
def vr(b, n=4): return f"v[{b}:{b+n-1}]"
def ar(b, n=4): return f"a[{b}:{b+n-1}]"
THR = 2.0 ** -80
SPIN = 1 << 16
LWB = 0
LSCR = 84 * 1024
LSM = 148 * 1024
LKV = 152 * 1024
LDS_TOTAL = 153 * 1024
XRES = 240
AWQ, AWO = 0, 112
VQA, VOA = 236, 237
import os
WOA_MODE = os.environ.get('WOA_MODE', 'peel')
WOB_MODE = os.environ.get('WOB_MODE', 'units')

def check(a, regs, t, fail):
    regs = list(regs)
    if len(regs) == 1: src = regs[0]
    else:
        if len(regs) == 2: a.e(f"v_max_u32 v{t}, v{regs[0]}, v{regs[1]}"); rest = []
        else: a.e(f"v_max3_u32 v{t}, v{regs[0]}, v{regs[1]}, v{regs[2]}"); rest = regs[3:]
        while rest:
            if len(rest) == 1: a.e(f"v_max_u32 v{t}, v{t}, v{rest[0]}"); rest = []
            else: a.e(f"v_max3_u32 v{t}, v{t}, v{rest[0]}, v{rest[1]}"); rest = rest[2:]
        src = t
    a.e(f"""
    v_cmp_eq_u32 vcc, -1, v{src}
    s_nop 1
    s_cmp_lg_u64 vcc, 0
    s_cbranch_scc1 {fail}
    """)

def poll(a, loads, regs, t, sleep=1, name='poll', extra=None, nextra=0):
    l0, l1, l2 = a.lab(name), a.lab(name + '_r'), a.lab(name + '_ok')
    if extra is None:
        a.e(f"s_mov_b32 s35, 0\n{l0}:")
        loads()
        a.e("s_waitcnt vmcnt(0)")
        check(a, regs, t, l1)
        cold = f"""
{l1}:
        s_add_u32 s35, s35, 1
        s_cmp_ge_u32 s35, {SPIN}
        s_cbranch_scc1 {l2}
        s_sleep {sleep}
        s_branch {l0}
        """
        a.cold.append(cold)
    else:
        a.e("s_mov_b32 s35, 0")
        loads()
        extra()
        a.e(f"s_waitcnt vmcnt({nextra})")
        check(a, regs, t, l1)
        sav = a.lines; a.lines = []
        a.e(f"""
{l1}:
        s_add_u32 s35, s35, 1
        s_cmp_ge_u32 s35, {SPIN}
        s_cbranch_scc1 {l2}
        """)
        loads()
        a.e("s_waitcnt vmcnt(0)")
        l3 = a.lab(name + '_s')
        check(a, regs, t, l3)
        a.e(f"s_branch {l2}\n{l3}:\ns_sleep {sleep}\ns_branch {l1}")
        a.cold.append("\n".join(a.lines)); a.lines = sav
    a.e(f"{l2}:")

def wo_loads(a, base, k0, n):
    a.e(f"s_lshl_b32 s55, s36, 15\ns_add_u32 s55, s55, {base + k0*1024}")
    frag_loads(a, lambda k: ar(AWO + 4 * (k0 + k)), n, 55)

def validated(a, loads_sc1, regs, t, name='val'):
    l1, l2 = a.lab(name + '_r'), a.lab(name + '_ok')
    check(a, regs, t, l1)
    a.e(f"{l2}:")
    sav = a.lines; a.lines = []
    a.e(f"{l1}:\ns_mov_b32 s35, 0")
    l3 = a.lab(name + '_l')
    a.e(f"{l3}:\ns_add_u32 s35, s35, 1\ns_cmp_ge_u32 s35, {SPIN}\ns_cbranch_scc1 {l2}")
    loads_sc1()
    a.e("s_waitcnt vmcnt(0)")
    check(a, regs, t, l3)
    a.e(f"s_branch {l2}")
    a.cold.append("\n".join(a.lines)); a.lines = sav

def clamp(a, regs):
    for r in regs: a.e(f"v_min_u32 v{r}, s54, v{r}")

def frag_loads(a, dst_fn, n, sreg, flags='', tmp=29):
    cur = sreg
    for k in range(n):
        if k and k % 4 == 0:
            a.e(f"s_add_u32 s{tmp}, s{sreg}, {k*1024}"); cur = tmp
        a.e(f"buffer_load_dwordx4 {dst_fn(k)}, v1, s[8:11], s{cur} offen offset:{(k%4)*1024} {flags}")

def row_max16(a, x):
    for m in ('quad_perm:[1,0,3,2]', 'quad_perm:[2,3,0,1]', 'row_half_mirror', 'row_mirror'):
        a.e(f"s_nop 1\nv_max_f32_dpp v{x}, v{x}, v{x} {m} row_mask:0xf bank_mask:0xf")

def stats_finish(a, st0, mu, rs, t):
    for q in range(1, 7):
        a.e(f"v_add_f32 v{st0}, v{st0}, v{st0+2*q}\nv_add_f32 v{st0+1}, v{st0+1}, v{st0+2*q+1}")
    a.e(f"""
    v_mov_b32 v{t}, v{st0}
    v_mov_b32 v{t+1}, v{st0+1}
    s_nop 1
    v_permlane32_swap_b32 v{st0}, v{t}
    v_permlane32_swap_b32 v{st0+1}, v{t+1}
    s_nop 1
    v_add_f32 v{st0}, v{st0}, v{t}
    v_add_f32 v{st0+1}, v{st0+1}, v{t+1}
    v_mul_f32 v{mu}, {fbits(-1.0/448)}, v{st0}
    v_mul_f32 v{t}, {fbits(1.0/448)}, v{st0+1}
    v_fma_f32 v{t}, -v{mu}, v{mu}, v{t}
    v_max_f32 v{t}, 0, v{t}
    v_add_f32 v{t}, {fbits(1e-5)}, v{t}
    v_rsq_f32 v{rs}, v{t}
    s_nop 0
    """)

def stats_poll(a, st0, off, smt, vaddr, t, extra=None, nextra=0):
    a.e(f"""
    v_mul_u32_u24 v{vaddr}, {7*256}, v3
    v_lshl_add_u32 v{vaddr}, v2, 3, v{vaddr}
    s_lshl_b32 s20, s{smt}, 12
    s_add_u32 s20, s20, s30
    s_add_u32 s20, s20, {off}
    """)
    def ld():
        for q in range(7):
            a.e(f"buffer_load_dwordx2 v[{st0+2*q}:{st0+2*q+1}], v{vaddr}, s[8:11], s20 offen offset:{q*256} sc1")
    poll(a, ld, range(st0, st0 + 14), t, name='st', extra=extra, nextra=nextra)

def c_pieces(a, c, t, d0, d1):
    a.e(f"""
    v_and_b32 v{t}, 0xffff0000, v{c}
    v_sub_f32 v{t+1}, v{c}, v{t}
    v_and_b32 v{t+2}, 0xffff0000, v{t+1}
    v_sub_f32 v{t+1}, v{t+1}, v{t+2}
    v_lshrrev_b32 v{t}, 16, v{t}
    v_or_b32 v{t}, v{t}, v{t+2}
    v_lshrrev_b32 v{t+1}, 16, v{t+1}
    v_xor_b32 v{d0}, 0x80008000, v{t}
    v_xor_b32 v{d1}, 0x00008000, v{t+1}
    """)

def pk_fma_s(a, d, s_, x, c, n=16, neg=False):
    assert s_ % 2 == 0 and d % 2 == 0 and x % 2 == 0 and c % 2 == 0
    for r in range(0, n, 2):
        a.e(f"v_pk_fma_f32 v[{d+r}:{d+r+1}], v[{s_}:{s_+1}], v[{x+r}:{x+r+1}], v[{c+r}:{c+r+1}] op_sel_hi:[0,1,1]")
def pk_mul_s(a, d, s_, x, n=16):
    assert s_ % 2 == 0 and d % 2 == 0 and x % 2 == 0
    for r in range(0, n, 2):
        a.e(f"v_pk_mul_f32 v[{d+r}:{d+r+1}], v[{s_}:{s_+1}], v[{x+r}:{x+r+1}] op_sel_hi:[0,1]")
def pk_mul_hi(a, d, s_, x, n=16):
    assert s_ % 2 == 1
    for r in range(0, n, 2):
        a.e(f"v_pk_mul_f32 v[{d+r}:{d+r+1}], v[{s_-1}:{s_}], v[{x+r}:{x+r+1}] op_sel:[1,0] op_sel_hi:[1,1]")

def entry(a, done):
    if os.environ.get('MAP') == 'flat':
        MAPCODE = "s_lshr_b32 s4, s2, 4\ns_and_b32 s5, s2, 15"
    else:
        MAPCODE = '''s_and_b32 s4, s2, 7
    s_lshl_b32 s4, s4, 1
    s_lshr_b32 s5, s2, 7
    s_add_u32 s4, s4, s5
    s_lshr_b32 s5, s2, 3
    s_and_b32 s5, s5, 15'''
    a.e(f"""
    s_cmp_ge_u32 s2, 256
    s_cbranch_scc1 {done}
    """)
    a.stamp('entry')
    a.e(f"""
    s_load_dwordx2 s[16:17], s[0:1], 80
    s_load_dwordx2 s[18:19], s[0:1], 64
    v_lshrrev_b32 v4, 6, v0
    v_and_b32 v1, 63, v0
    v_and_b32 v2, 31, v0
    v_readfirstlane_b32 s3, v4
    v_bfe_u32 v3, v0, 5, 1
    v_lshlrev_b32 v1, 4, v1
    {MAPCODE}
    s_lshl_b32 s6, s4, 2
    s_and_b32 s31, s5, 3
    s_add_u32 s31, s31, s6
    s_add_u32 s6, s6, s3
    s_lshl_b32 s7, s4, 4
    s_add_u32 s7, s7, s5
    s_and_b32 s32, s5, 12
    s_add_u32 s32, s32, s3
    s_min_u32 s36, s32, 13
    s_mov_b32 s30, {L.ARENA0}
    s_mov_b32 s33, 0
    s_mov_b32 s54, 0xfffffffe
    s_waitcnt lgkmcnt(0)
    """)
    a.srd(8, 16, L.TOTAL)
    a.srd(12, 18, S * 896)
    a.e(f"""
    v_lshrrev_b32 v4, 3, v2
    v_and_b32 v5, 7, v2
    v_lshlrev_b32 v5, 4, v5
    v_lshl_add_u32 v5, v3, 9, v5
    v_lshl_add_u32 v{VQA}, v4, 13, v5
    v_lshl_add_u32 v{VOA}, v4, 11, v5
    """)
    a.c("first QKV_A: inputs come from the previous kernel, no polling; resident WQA fragments; residual tile of x0")
    XF, CS, STT, T = 16, 144, 160, 176
    a.e(f"""
    s_mul_i32 s21, s31, {28*1024}
    s_mul_i32 s22, s3, {7*1024}
    s_add_u32 s21, s21, s22
    s_add_u32 s27, s21, {A(0, L.XIN)}
    s_add_u32 s22, s22, {LSCR}
    """)
    a.e("s_mov_b32 m0, s22\ns_nop 0\nbuffer_load_dwordx4 v1, s[8:11], s27 offen offset:0 lds\nbuffer_load_dwordx4 v1, s[8:11], s27 offen offset:1024 lds\nbuffer_load_dwordx4 v1, s[8:11], s27 offen offset:2048 lds\nbuffer_load_dwordx4 v1, s[8:11], s27 offen offset:3072 lds\ns_add_u32 s29, s27, 4096\ns_add_u32 s25, s22, 4096\ns_mov_b32 m0, s25\ns_nop 0\nbuffer_load_dwordx4 v1, s[8:11], s29 offen offset:0 lds\nbuffer_load_dwordx4 v1, s[8:11], s29 offen offset:1024 lds\nbuffer_load_dwordx4 v1, s[8:11], s29 offen offset:2048 lds")
    a.e(f"""
    v_mul_u32_u24 v{T}, {7*256}, v3
    v_lshl_add_u32 v{T}, v2, 3, v{T}
    s_lshl_b32 s20, s31, 12
    s_add_u32 s20, s20, {A(0, L.STIN)}
    """)
    for q in range(7): a.e(f"buffer_load_dwordx2 v[{STT+2*q}:{STT+2*q+1}], v{T}, s[8:11], s20 offen offset:{q*256}")
    a.e(f"""
    s_mul_i32 s20, s32, {28*1024}
    s_add_u32 s20, s20, {L.WQA}
    """)
    frag_loads(a, lambda k: ar(AWQ + 4 * k), 28, 20)
    a.e(f"""
    s_lshl_b32 s20, s32, 7
    s_add_u32 s20, s20, {L.CSA}
    v_lshlrev_b32 v{T+1}, 4, v3
    """)
    for q in range(4): a.e(f"buffer_load_dwordx4 {vr(CS+4*q)}, v{T+1}, s[8:11], s20 offen offset:{q*32}")
    a.e(f"""
    s_mul_i32 s20, s31, {28*1024}
    s_lshl_b32 s23, s36, 11
    s_add_u32 s20, s20, s23
    s_add_u32 s20, s20, {A(0, L.XIN)}
    buffer_load_dwordx4 {vr(XRES)}, v1, s[8:11], s20 offen
    buffer_load_dwordx4 {vr(XRES+4)}, v1, s[8:11], s20 offen offset:1024
    s_waitcnt vmcnt(34)
    s_branch M_qa_entry
    """)

def qkv_a(a):
    XF, ACC, CS, STT, MU, RS, T, PK, QP = 16, 128, 144, 160, 174, 175, 176, 184, 192
    a.c("==== QKV_A : m-tile s31, column group s32")
    a.e("s_barrier")
    a.e(f"""
    s_lshl_b32 s21, s32, 7
    s_add_u32 s21, s21, {L.CSA}
    v_lshlrev_b32 v{T+1}, 4, v3
    """)
    for q in range(4): a.e(f"buffer_load_dwordx4 {vr(CS+4*q)}, v{T+1}, s[8:11], s21 offen offset:{q*32}")
    if WOA_MODE == 'poll': stats_poll(a, STT, L.STIN, 31, T, T + 2, lambda: wo_loads(a, L.WOA, 0, 16), 16)
    else: stats_poll(a, STT, L.STIN, 31, T, T + 2)
    a.stamp('qa_st')
    a.e(f"""
    s_mul_i32 s21, s31, {28*1024}
    s_mul_i32 s22, s3, {7*1024}
    s_add_u32 s21, s21, s22
    s_add_u32 s21, s21, s30
    s_add_u32 s27, s21, {L.XIN}
    s_add_u32 s22, s22, {LSCR}
    """)
    a.e("s_mov_b32 m0, s22\ns_nop 0\nbuffer_load_dwordx4 v1, s[8:11], s27 offen offset:0 lds\nbuffer_load_dwordx4 v1, s[8:11], s27 offen offset:1024 lds\nbuffer_load_dwordx4 v1, s[8:11], s27 offen offset:2048 lds\nbuffer_load_dwordx4 v1, s[8:11], s27 offen offset:3072 lds\ns_add_u32 s29, s27, 4096\ns_add_u32 s25, s22, 4096\ns_mov_b32 m0, s25\ns_nop 0\nbuffer_load_dwordx4 v1, s[8:11], s29 offen offset:0 lds\nbuffer_load_dwordx4 v1, s[8:11], s29 offen offset:1024 lds\nbuffer_load_dwordx4 v1, s[8:11], s29 offen offset:2048 lds")
    a.e("M_qa_entry:")
    stats_finish(a, STT, MU, RS, T)
    lmm, lredo, lok = a.lab('qa_mm'), a.lab('qa_redo'), a.lab('qa_ok')
    a.e(f"""
    v_add_u32 v{T+5}, s22, v1
    v_add_u32 v{T+3}, {LSCR}, v1
    v_mul_f32 v{T}, {fbits(QS)}, v{RS}
    s_mov_b32 s53, 0
    s_waitcnt vmcnt(0)
    s_barrier
{lmm}:
    v_cmp_eq_u32 vcc, 1, v3
    """)
    a.stamp('qa_pan')
    if a.INSTR: a.e("s_waitcnt lgkmcnt(0)")
    for k in range(28): a.e(f"ds_read_b128 {vr(XF+4*k)}, v{T+3} offset:{k*1024}")
    sav = a.lines; a.lines = []
    a.e(f"{lredo}:\ns_cmp_lg_u32 s53, 0\ns_cbranch_scc1 {lok}\ns_mov_b32 s53, 1\ns_barrier")
    poll(a, lambda: frag_loads(a, lambda k: vr(XF + 4 * k), 7, 27, 'sc1'), range(XF, XF + 28), T + 4, name='xar')
    for k in range(7): a.e(f"ds_write_b128 v{T+5}, {vr(XF+4*k)} offset:{k*1024}")
    a.e(f"s_waitcnt lgkmcnt(0)\ns_barrier\ns_branch {lmm}")
    a.cold.append("\n".join(a.lines)); a.lines = sav
    a.e(f"v_cndmask_b32 v{T+1}, v{T}, v{RS}, vcc")
    for k in range(28):
        a.e(f"s_waitcnt lgkmcnt({min(15, 27-k)})")
        a.e(f"{MF} {vr(ACC,16)}, {ar(AWQ+4*k)}, {vr(XF+4*k)}, {'0' if k == 0 else vr(ACC,16)}")
    U = 200
    a.c("K / V quad first (all-to-all critical path): staged through LDS so that whole fragments are stored by one wave")
    a.e(f"""
    s_and_b32 s21, s3, 1
    s_lshl_b32 s21, s21, 9
    s_lshr_b32 s22, s3, 1
    s_lshl_b32 s22, s22, 3
    s_add_u32 s21, s21, s22
    s_add_u32 s21, s21, {LKV}
    v_lshl_add_u32 v{U}, v2, 4, s21
    v_lshrrev_b32 v{U+1}, 4, v2
    v_lshlrev_b32 v{U+1}, 9, v{U+1}
    v_bfe_u32 v{U+2}, v2, 2, 1
    v_lshl_add_u32 v{U+1}, v{U+2}, 8, v{U+1}
    v_bfe_u32 v{U+2}, v2, 3, 1
    v_lshl_add_u32 v{U+1}, v{U+2}, 3, v{U+1}
    v_and_b32 v{U+2}, 3, v2
    v_lshl_add_u32 v{U+1}, v{U+2}, 1, v{U+1}
    s_lshl_b32 s21, s3, 6
    s_add_u32 s21, s21, {LKV}
    v_add_u32 v{U+1}, s21, v{U+1}
    v_cmp_u_f32 s[24:25], v{ACC}, v{ACC}
    s_nop 1
    s_cmp_lg_u64 s[24:25], 0
    s_cbranch_scc1 {lredo}
{lok}:
    """)
    for r in range(12, 16): a.e(f"v_fmac_f32 v{ACC+r}, v{MU}, v{CS+r}")
    for r in range(12, 16): a.e(f"v_mul_f32 v{ACC+r}, v{ACC+r}, v{T+1}")
    for q in (6, 7): a.e(f"v_cvt_pk_bf16_f32 v{PK+q}, v{ACC+2*q}, v{ACC+2*q+1}")
    lv, lb, lq, lnc = a.lab('qa_v'), a.lab('qa_bar'), a.lab('qa_q'), a.lab('qa_nc')
    a.e(f"""
    v_mov_b32 v{U+4}, v{PK+6}
    v_mov_b32 v{U+5}, v{PK+7}
    s_and_b32 s21, s32, 7
    s_cmp_lg_u32 s21, 7
    s_cbranch_scc1 {lnc}
    s_movk_i32 s23, 0x3f80
    s_cmp_eq_u32 s32, 7
    s_cselect_b32 s21, 0x3f803f80, s23
    s_cselect_b32 s22, s23, 0
    v_mov_b32 v{U+4}, s21
    v_mov_b32 v{U+5}, s22
{lnc}:
    s_mov_b32 exec_lo, 0
    s_cmp_ge_u32 s32, 8
    s_cbranch_scc1 {lv}
    ds_write_b64 v{U}, v[{U+4}:{U+5}]
    s_branch {lb}
{lv}:
    ds_write_b16 v{U+1}, v{U+4}
    ds_write_b16_d16_hi v{U+1}, v{U+4} offset:16
    ds_write_b16 v{U+1}, v{U+5} offset:32
    ds_write_b16_d16_hi v{U+1}, v{U+5} offset:48
{lb}:
    s_mov_b64 exec, -1
    v_add_u32 v{U}, {LKV}, v1
    s_waitcnt lgkmcnt(0)
    s_barrier
    s_cmp_lg_u32 s3, 0
    s_cbranch_scc1 {lq}
    ds_read_b128 {vr(U+4)}, v{U}
    s_lshr_b32 s22, s32, 2
    s_lshl_b32 s24, s31, 7
    s_add_u32 s24, s24, s30
    s_add_u32 s24, s24, {L.KNA}
    s_lshl_b32 s21, s22, 2
    s_add_u32 s24, s24, s21
    s_lshl_b32 s20, s31, 11
    s_add_u32 s20, s20, s30
    s_lshl_b32 s21, s22, 10
    s_add_u32 s23, s20, s21
    s_add_u32 s23, s23, {L.KA}
    s_lshl_b32 s21, s22, 8
    s_add_u32 s20, s20, s21
    s_add_u32 s20, s20, {L.VA - 512}
    s_cmp_lt_u32 s22, 2
    s_cselect_b32 s20, s23, s20
    s_cselect_b64 s[26:27], -1, 0
    v_lshrrev_b32 v{U+1}, 4, v0
    v_lshlrev_b32 v{U+1}, 9, v{U+1}
    v_and_b32 v{U+2}, 15, v0
    v_lshl_add_u32 v{U+1}, v{U+2}, 4, v{U+1}
    v_cndmask_b32 v{U+1}, v{U+1}, v1, s[26:27]
    v_mov_b32 v{U+2}, 0
    v_lshlrev_b32 v{U}, 13, v2
    s_waitcnt lgkmcnt(0)
    """)
    clamp(a, range(U + 4, U + 8))
    a.e(f"buffer_store_dwordx4 {vr(U+4)}, v{U+1}, s[8:11], s20 offen sc1")
    for q in range(4): a.e(f"v_dot2_f32_bf16 v{U+2}, v{U+4+q}, v{U+4+q}, v{U+2}")
    a.e(f"""
    s_nop 2
    v_mov_b32 v{U+3}, v{U+2}
    s_nop 1
    v_permlane32_swap_b32 v{U+2}, v{U+3}
    s_nop 1
    v_add_f32 v{U+2}, v{U+2}, v{U+3}
    """)
    row_max16(a, U + 2)
    a.e(f"""
    s_nop 1
    v_readlane_b32 s22, v{U+2}, 0
    v_readlane_b32 s23, v{U+2}, 16
    s_max_u32 s22, s22, s23
    s_min_u32 s22, s22, 0x7fc00000
    s_and_b32 s22, s22, s26
    v_mov_b32 v{U+1}, s22
    s_mov_b64 exec, 0xffff
    buffer_store_dword v{U+1}, v{U}, s[8:11], s24 offen sc1
    s_mov_b64 exec, -1
{lq}:
    """)
    clamp(a, (PK + 6, PK + 7))
    a.c("Q part")
    pk_fma_s(a, ACC, MU, CS, ACC, 12)
    pk_mul_s(a, ACC, T, ACC, 12)
    for q in range(6): a.e(f"v_cvt_pk_bf16_f32 v{PK+q}, v{ACC+2*q}, v{ACC+2*q+1}")
    clamp(a, range(PK, PK + 6))
    a.e(f"""
    s_lshl_b32 s20, s31, 15
    s_lshr_b32 s21, s32, 2
    s_lshl_b32 s21, s21, 11
    s_add_u32 s20, s20, s21
    s_lshl_b32 s21, s3, 7
    s_add_u32 s20, s20, s21
    s_add_u32 s47, s20, {L.QA}
    s_add_u32 s20, s47, s30
    buffer_store_dwordx4 {vr(PK)}, v{VQA}, s[8:11], s20 offen sc1
    v_cndmask_b32 v{T+2}, v{PK+6}, 0, vcc
    v_cndmask_b32 v{T+3}, v{PK+7}, 0, vcc
    v_mov_b32 v{T}, 0
    v_mov_b32 v{T+1}, 0
    """)
    for q in range(6): a.e(f"v_dot2_f32_bf16 v{T+(q&1)}, v{PK+q}, v{PK+q}, v{T+(q&1)}")
    a.e(f"""
    v_dot2_f32_bf16 v{T}, v{T+2}, v{T+2}, v{T}
    v_dot2_f32_bf16 v{T+1}, v{T+3}, v{T+3}, v{T+1}
    v_mov_b32 v{QP}, v{PK+4}
    v_mov_b32 v{QP+1}, v{PK+5}
    v_mov_b32 v{QP+3}, v{T+3}
    s_nop 0
    v_add_f32 v{T}, v{T}, v{T+1}
    v_mov_b32 v{T+1}, v{T}
    s_nop 1
    v_permlane32_swap_b32 v{T}, v{T+1}
    s_nop 1
    v_add_f32 v{T}, v{T}, v{T+1}
    v_min_u32 v{T}, s54, v{T}
    v_cndmask_b32 v{QP+2}, v{PK+6}, v{T}, vcc
    buffer_store_dwordx4 {vr(QP)}, v{VQA}, s[8:11], s20 offen offset:1024 sc1
    """)
    a.stamp('qa_pub')
    if a.INSTR and os.environ.get('ACK'):
        a.e("s_waitcnt vmcnt(0)")
    a.stamp('qa_ack')

def attn_a(a):
    QF, S0, S1, P, O, KV, T, FS = 16, 48, 64, 80, 88, 152, 216, 232
    NB = 4
    SS = [S0, S1]
    a.c("==== attention A : rows 8*s7.., all heads; waves split the keys; q slot s = tile (wave+s)&3, slot 0 is finalised by this wave")
    a.e(f"""
    s_barrier
    s_lshl_b32 s21, s6, 11
    s_add_u32 s21, s21, s30
    s_add_u32 s21, s21, {L.KNA}
    v_and_b32 v{T+8}, 15, v2
    v_lshlrev_b32 v{T+8}, 7, v{T+8}
    s_lshl_b32 s20, s7, 13
    s_add_u32 s20, s20, s30
    s_add_u32 s20, s20, {L.QA}
    s_lshl_b32 s26, s3, 11
    s_add_u32 s27, s26, 2048
    s_and_b32 s27, s27, 0x1fff
    s_add_u32 s28, s26, 4096
    s_and_b32 s28, s28, 0x1fff
    s_add_u32 s53, s26, 6144
    s_and_b32 s53, s53, 0x1fff
    s_lshr_b32 s57, s27, 2
    s_lshr_b32 s58, s28, 2
    s_lshr_b32 s59, s53, 2
    s_add_u32 s26, s26, s20
    s_add_u32 s27, s27, s20
    s_add_u32 s28, s28, s20
    s_add_u32 s53, s53, s20
    s_lshl_b32 s22, s3, 15
    s_add_u32 s22, s22, s30
    s_add_u32 s23, s22, {L.VA}
    s_add_u32 s22, s22, {L.KA}
    """)
    for r in range(64): a.e(f"v_mov_b32 v{O+r}, 0")
    for r in range(8): a.e(f"v_mov_b32 v{P+r}, 0")
    for r in range(4): a.e(f"v_mov_b32 v{KV+16*(NB-1)+12+r}, 0")
    for r in range(4): a.e(f"v_mov_b32 v{FS+r}, -1")
    if WOA_MODE == 'poll':
        lw = a.lab('aa_w0')
        a.e(f"s_cmp_lg_u32 s33, 0\ns_cbranch_scc1 {lw}")
        wo_loads(a, L.WOA, 0, 16)
        a.e(f"{lw}:")
    else:
        a.e(f"s_lshl_b32 s55, s36, 15\ns_add_u32 s55, s55, {L.WOA}")
    a.c("Q' fragments (validated below)")
    def q_load(fl=''):
        a.e(f"""
        buffer_load_dwordx4 {vr(QF)}, v1, s[8:11], s26 offen {fl}
        buffer_load_dwordx4 {vr(QF+4)}, v1, s[8:11], s26 offen offset:1024 {fl}
        buffer_load_dwordx4 {vr(QF+8)}, v1, s[8:11], s27 offen {fl}
        buffer_load_dwordx4 {vr(QF+12)}, v1, s[8:11], s27 offen offset:1024 {fl}
        buffer_load_dwordx4 {vr(QF+16)}, v1, s[8:11], s28 offen {fl}
        buffer_load_dwordx4 {vr(QF+20)}, v1, s[8:11], s28 offen offset:1024 {fl}
        buffer_load_dwordx4 {vr(QF+24)}, v1, s[8:11], s53 offen {fl}
        buffer_load_dwordx4 {vr(QF+28)}, v1, s[8:11], s53 offen offset:1024 {fl}
        """)
    q_load()
    a.c("sentinel fills (issued inside the loop) of the payload regions this workgroup itself writes later: own arena, x / Q' of the next")
    VF = FS + 6
    a.e(f"""
    s_lshl_b32 s41, s5, 17
    s_lshl_b32 s42, s6, 11
    s_add_u32 s41, s41, s42
    s_add_u32 s41, s41, s30
    s_add_u32 s42, s41, {L.VB}
    s_add_u32 s41, s41, {L.KB}
    s_lshl_b32 s43, s6, 15
    s_lshl_b32 s44, s5, 11
    s_add_u32 s43, s43, s44
    s_add_u32 s43, s43, s30
    s_add_u32 s43, s43, {L.OB}
    s_mul_i32 s44, s31, {28*1024}
    s_lshl_b32 s45, s36, 11
    s_add_u32 s44, s44, s45
    s_add_u32 s44, s44, s30
    s_add_u32 s52, s44, {L.ARENA + L.XIN}
    s_add_u32 s44, s44, {L.XM}
    s_lshr_b32 s45, s7, 2
    s_lshl_b32 s45, s45, 15
    s_and_b32 s46, s7, 3
    s_lshl_b32 s46, s46, 7
    s_add_u32 s45, s45, s46
    s_add_u32 s45, s45, s30
    s_add_u32 s45, s45, {L.OA}
    s_lshl_b32 s46, s3, 13
    s_add_u32 s45, s45, s46
    s_mov_b32 s56, s45
    s_add_u32 s46, s47, s30
    s_add_u32 s46, s46, {L.ARENA}
    v_mov_b32 v{VF}, v{VOA}
    v_mov_b32 v{VF+1}, v{VQA}
    s_mov_b32 s37, s22
    s_mov_b32 s38, s23
    s_lshl_b32 s20, s3, 9
    s_add_u32 s20, s20, {LSM+1024}
    v_lshl_add_u32 v{T+9}, v2, 2, s20
    v_lshlrev_b32 v{T+10}, 2, v2
    v_add_u32 v{T+10}, {LSM+1024}, v{T+10}
    v_add_u32 v{T+11}, s58, v{T+10}
    v_add_u32 v{T+12}, s59, v{T+10}
    v_add_u32 v{T+10}, s57, v{T+10}
    """)
    def kn_extra():
        wo_loads(a, L.WOA, 16, 16)
    poll(a, lambda: a.e(f"buffer_load_dwordx4 {vr(T)}, v{T+8}, s[8:11], s21 offen sc1"), range(T, T + 4), T + 4, sleep=2, name='kn', extra=(kn_extra if WOA_MODE == 'poll' else None), nextra=16)
    a.stamp('aa_kn')
    def kv_load(b, fl='', adv=True, sk=22, sv=23):
        a.e(f"""
        buffer_load_dwordx4 {vr(KV+16*b)}, v1, s[8:11], s{sk} offen {fl}
        buffer_load_dwordx4 {vr(KV+16*b+4)}, v1, s[8:11], s{sk} offen offset:1024 {fl}
        buffer_load_dwordx4 {vr(KV+16*b+8)}, v1, s[8:11], s{sv} offen {fl}
        buffer_load_dwordx4 {vr(KV+16*b+12)}, v1, s[8:11], s{sv} offen offset:1024 {fl}
        """)
        if adv: a.e(f"s_add_u32 s{sk}, s{sk}, 2048\ns_add_u32 s{sv}, s{sv}, 2048")
    for b in range(3): kv_load(b)
    a.c("per-wave stand-in shift c = 1.02*|q'|*Kmax(own keys): Cauchy-Schwarz upper bound of the row max over this wave's keys")
    a.e(f"""
    v_add_f32 v{T}, v{T}, v{T+1}
    v_add_f32 v{T+2}, v{T+2}, v{T+3}
    v_add_f32 v{T}, v{T}, v{T+2}
    """)
    row_max16(a, T)
    a.e(f"""
    s_nop 1
    v_readfirstlane_b32 s24, v{T}
    """)
    validated(a, lambda: q_load('sc1'), range(QF, QF + 32), T, 'qa')
    a.e("s_mov_b32 exec_lo, 0")
    for t in range(4):
        q2 = QF + 8 * t + 6
        a.e(f"""
        v_mul_f32 v{T}, s24, v{q2}
        v_sqrt_f32 v{T}, v{T}
        s_nop 0
        v_mul_f32 v{T}, {fbits(1.02)}, v{T}
        ds_write_b32 v{T+9+t}, v{T} offset:{t*128}
        """)
        c_pieces(a, T, T + 1, q2, q2 + 1)
    a.e("s_mov_b64 exec, -1")
    a.e("s_waitcnt vmcnt(0)")
    def kv_reload():
        a.e("s_mov_b32 s39, s37\ns_mov_b32 s40, s38")
        for b in range(3): kv_load(b, 'sc1', True, 39, 40)
    validated(a, kv_reload, range(KV, KV + 48), T, 'kv')
    a.e(f"""
    {MF} {vr(S0,16)}, {vr(KV)}, {vr(QF)}, 0
    {MF} {vr(S0,16)}, {vr(KV+4)}, {vr(QF+4)}, {vr(S0,16)}
    s_mov_b32 s29, 0
    s_nop 7
    s_nop 2
    """)
    a.stamp('aa_go')
    a.cstamp(6)
    slots = {0: ('s41', 'v1', 0), 1: ('s41', 'v1', 1024), 2: ('s45', f'v{VF}', 0), 3: ('s45', f'v{VF}', 1024)}
    lp = a.lab('aa_loop')
    def body(peel):
        u = 0
        for b in range(NB):
            for t in range(4):
                sb = SS[u & 1]; sn = SS[(u + 1) & 1]
                kb = KV + 16 * (b if t < 3 else (b + 1) % NB)
                qn = QF + 8 * ((t + 1) % 4)
                vp = KV + 16 * (b if t > 0 else (b - 1) % NB) + 12
                vc = KV + 16 * b + 8
                op = O + 16 * ((t - 1) % 4); oc = O + 16 * t
                def ex(i0):
                    for i in range(i0, i0 + 4): a.e(f"v_exp_f32 v{sb+i}, v{sb+i}")
                def cv(j0):
                    for jx in (j0, j0 + 1): a.e(f"v_cvt_pk_bf16_f32 v{P+jx}, v{sb+2*jx}, v{sb+2*jx+1}")
                def woa(k):
                    if not peel: return
                    if k and k % 4 == 0: a.e("s_add_u32 s55, s55, 4096")
                    a.e(f"buffer_load_dwordx4 {ar(AWO+4*k)}, v1, s[8:11], s55 offen offset:{(k%4)*1024}")
                ex(0)
                if t == 3 and not (peel and b < 2):
                    n = 11 + ((8 - 1) + 8 + 6 if peel else 0)
                    a.e(f"s_waitcnt vmcnt({n})")
                a.e(f"{MF} {vr(sn,16)}, {vr(kb)}, {vr(qn)}, 0")
                cv(0); woa(2 * u); ex(4)
                a.e(f"{MF} {vr(sn,16)}, {vr(kb+4)}, {vr(qn+4)}, {vr(sn,16)}")
                cv(2); ex(8)
                a.e(f"{MF} {vr(op,16)}, {vr(vp)}, {vr(P+4)}, {vr(op,16)}")
                cv(4)
                if t == 0: kv_load((b - 1) % NB)
                elif t == 2:
                    sr, vo, of = slots[b]
                    a.e(f"buffer_store_dwordx4 {vr(FS)}, {vo}, s[8:11], {sr} offen offset:{of} sc1")
                ex(12)
                a.e(f"{MF} {vr(oc,16)}, {vr(vc)}, {vr(P)}, {vr(oc,16)}")
                cv(6); woa(2 * u + 1)
                u += 1
        a.e(f"""
        s_mov_b32 s41, s42
        s_mov_b32 s42, s43
        s_mov_b32 s43, s44
        s_mov_b32 s45, s46
        s_mov_b32 s46, s52
        v_mov_b32 v{VF}, v{VF+1}
        v_mov_b32 v{VF+1}, v1
        s_add_u32 s29, s29, 1
        """)
    if WOA_MODE == 'peel':
        a.c("first four key tiles: also prefetch the WOA fragments (consumed after attention)")
        body(True)
    a.e(f".p2align 6\n{lp}:")
    body(False)
    a.e(f"""
    s_cmp_lt_u32 s29, 4
    s_cbranch_scc1 {lp}
    s_mul_i32 s57, s57, 24
    s_mul_i32 s58, s58, 24
    {MF} {vr(O+48,16)}, {vr(KV+16*(NB-1)+12)}, {vr(P+4)}, {vr(O+48,16)}
    s_mul_i32 s59, s59, 24
    v_add_u32 v{T+3}, {LSCR}, v1
    v_add_u32 v{T}, s57, v{T+3}
    v_add_u32 v{T+1}, s58, v{T+3}
    v_add_u32 v{T+2}, s59, v{T+3}
    s_mul_i32 s20, s3, 12288
    v_add_u32 v{T+3}, s20, v{T+3}
    s_lshl_b32 s21, s7, 7
    s_lshl_b32 s22, s3, 2
    s_add_u32 s21, s21, s22
    s_add_u32 s21, s21, s30
    s_add_u32 s21, s21, {L.HOA}
    s_mov_b32 s20, {fbits(THR)}
    """)
    a.stamp('aa_end')
    a.cstamp(7)
    a.c("send the three foreign q tiles to their owners through LDS; rescale all partials to a common shift")
    for t in range(1, 4):
        for q in range(4): a.e(f"ds_write_b128 v{T+t-1}, {vr(O+16*t+4*q)} offset:{(t-1)*4096+q*1024}")
    a.e("s_waitcnt vmcnt(0) lgkmcnt(0)\ns_barrier")
    a.stamp('aa_bar')
    if a.INSTR: a.e("s_waitcnt lgkmcnt(0)")
    R = KV
    F = S0
    for w in range(4): a.e(f"ds_read_b32 v{F+w}, v{T+9} offset:{w*128}")
    for w in range(3):
        for q in range(4): a.e(f"ds_read_b128 {vr(R+16*w+4*q)}, v{T+3} offset:{w*4096+q*1024}")
    a.e(f"""
    v_mov_b32 v{T+5}, 0
    s_waitcnt lgkmcnt(12)
    v_max3_f32 v{T+6}, v{F}, v{F+1}, v{F+2}
    v_max_f32 v{T+6}, v{T+6}, v{F+3}
    """)
    for w in range(4): a.e(f"v_sub_f32 v{F+w}, v{F+w}, v{T+6}")
    for w in range(4): a.e(f"v_exp_f32 v{F+w}, v{F+w}")
    for r in range(16): a.e(f"v_mul_f32 v{O+r}, v{F}, v{O+r}")
    for w in range(3):
        a.e(f"s_waitcnt lgkmcnt({8-4*w})")
        for r in range(16): a.e(f"v_fmac_f32 v{O+r}, v{F+1+w}, v{R+16*w+r}")
    lnorm, lslow = a.lab('aa_norm'), a.lab('aa_slow')
    a.e(f"""
    v_mov_b32 v{T+2}, v{O+12}
    v_mov_b32 v{T+3}, v{O+12}
    v_pk_add_f32 v[{T+6}:{T+7}], v[{O}:{O+1}], v[{O+2}:{O+3}]
    v_pk_add_f32 v[{T+10}:{T+11}], v[{O+4}:{O+5}], v[{O+6}:{O+7}]
    v_permlane32_swap_b32 v{T+2}, v{T+3}
    v_pk_add_f32 v[{T+6}:{T+7}], v[{T+6}:{T+7}], v[{O+8}:{O+9}]
    v_pk_add_f32 v[{T+10}:{T+11}], v[{T+10}:{T+11}], v[{O+10}:{O+11}]
    v_pk_add_f32 v[{T+6}:{T+7}], v[{T+6}:{T+7}], v[{O+12}:{O+13}]
    v_pk_add_f32 v[{T+10}:{T+11}], v[{T+10}:{T+11}], v[{O+14}:{O+15}]
    v_pk_add_f32 v[{T+6}:{T+7}], v[{T+6}:{T+7}], v[{T+10}:{T+11}]
    v_cmp_gt_f32 vcc, s20, v{T+3}
    v_cmp_u_f32 s[24:25], v{T+6}, v{T+7}
    v_rcp_f32 v{T+2}, v{T+3}
    s_or_b64 vcc, vcc, s[24:25]
    s_cmp_lg_u64 vcc, 0
    s_cbranch_scc1 {lslow}
{lnorm}:
    """)
    for r in range(16): a.e(f"v_mul_f32 v{O+r}, v{T+2}, v{O+r}")
    for q in range(8): a.e(f"v_cvt_pk_bf16_f32 v{P+q}, v{O+2*q}, v{O+2*q+1}")
    clamp(a, range(P, P + 8))
    a.e(f"""
    buffer_store_dwordx4 {vr(P)}, v{VOA}, s[8:11], s56 offen sc1
    buffer_store_dwordx4 {vr(P+4)}, v{VOA}, s[8:11], s56 offen offset:1024 sc1
    s_mov_b64 exec, 1
    buffer_store_dword v{T+5}, v{T+5}, s[8:11], s21 offen sc1
    s_mov_b64 exec, -1
    """)
    a.stamp('aa_pub')
    sav = a.lines; a.lines = []
    l1, l2, l1r, l2r = a.lab('aa_s1'), a.lab('aa_s2'), a.lab('aa_s1r'), a.lab('aa_s2r')
    a.e(f"{lslow}:")
    a.c("exact fallback: this wave redoes its 32 queries over all keys with the true row max (validated coherent loads)")
    a.e(f"""
    buffer_load_dwordx4 {vr(QF)}, v1, s[8:11], s26 offen sc1
    buffer_load_dwordx4 {vr(QF+4)}, v1, s[8:11], s26 offen offset:1024 sc1
    v_cmp_eq_u32 vcc, 1, v3
    v_mov_b32 v{T}, 0xff800000
    s_add_u32 s22, s30, {L.KA}
    s_mov_b32 s29, 0
    s_mov_b32 s35, 0
    s_waitcnt vmcnt(0)
    v_cndmask_b32 v{QF+6}, v{QF+6}, 0, vcc
    v_cndmask_b32 v{QF+7}, v{QF+7}, 0, vcc
{l1}:
    buffer_load_dwordx4 {vr(KV)}, v1, s[8:11], s22 offen sc1
    buffer_load_dwordx4 {vr(KV+4)}, v1, s[8:11], s22 offen offset:1024 sc1
    s_waitcnt vmcnt(0)
    s_add_u32 s35, s35, 1
    s_cmp_ge_u32 s35, {SPIN}
    s_cbranch_scc1 {l1r}
    """)
    check(a, range(KV, KV + 8), T + 1, l1)
    a.e(f"""
{l1r}:
    s_add_u32 s22, s22, 2048
    {MF} {vr(S0,16)}, {vr(KV)}, {vr(QF)}, 0
    {MF} {vr(S0,16)}, {vr(KV+4)}, {vr(QF+4)}, {vr(S0,16)}
    s_nop 15
    """)
    for r in range(0, 16, 2): a.e(f"v_max3_f32 v{T}, v{T}, v{S0+r}, v{S0+r+1}")
    a.e(f"""
    s_add_u32 s29, s29, 1
    s_cmp_lt_u32 s29, 64
    s_cbranch_scc1 {l1}
    v_mov_b32 v{T+1}, v{T}
    s_nop 1
    v_permlane32_swap_b32 v{T}, v{T+1}
    s_nop 1
    v_max_f32 v{T}, v{T}, v{T+1}
    s_mov_b32 exec_lo, 0
    """)
    c_pieces(a, T, T + 1, QF + 6, QF + 7)
    a.e(f"""
    s_mov_b64 exec, -1
    s_add_u32 s22, s30, {L.KA}
    s_add_u32 s23, s30, {L.VA}
    s_mov_b32 s29, 0
    """)
    for r in range(16): a.e(f"v_mov_b32 v{O+r}, 0")
    a.e(f"{l2}:")
    kv_load(0, 'sc1', False)
    a.e(f"""
    s_waitcnt vmcnt(0)
    s_add_u32 s35, s35, 1
    s_cmp_ge_u32 s35, {SPIN}
    s_cbranch_scc1 {l2r}
    """)
    check(a, range(KV, KV + 16), T + 1, l2)
    a.e(f"""
{l2r}:
    s_add_u32 s22, s22, 2048
    s_add_u32 s23, s23, 2048
    {MF} {vr(S0,16)}, {vr(KV)}, {vr(QF)}, 0
    {MF} {vr(S0,16)}, {vr(KV+4)}, {vr(QF+4)}, {vr(S0,16)}
    s_nop 15
    """)
    for r in range(16): a.e(f"v_exp_f32 v{S0+r}, v{S0+r}")
    a.e("s_nop 0")
    for q in range(8): a.e(f"v_cvt_pk_bf16_f32 v{P+q}, v{S0+2*q}, v{S0+2*q+1}")
    a.e(f"""
    s_nop 1
    {MF} {vr(O,16)}, {vr(KV+8)}, {vr(P)}, {vr(O,16)}
    {MF} {vr(O,16)}, {vr(KV+12)}, {vr(P+4)}, {vr(O,16)}
    s_add_u32 s29, s29, 1
    s_cmp_lt_u32 s29, 64
    s_cbranch_scc1 {l2}
    s_nop 15
    v_mov_b32 v{T+2}, v{O+12}
    v_mov_b32 v{T+3}, v{O+12}
    s_nop 1
    v_permlane32_swap_b32 v{T+2}, v{T+3}
    s_nop 1
    v_rcp_f32 v{T+2}, v{T+3}
    s_nop 0
    s_branch {lnorm}
    """)
    a.cold.append("\n".join(a.lines)); a.lines = sav

def out_proj(a, which, sbase):
    OF, ACC, PK, T = 16, 144, XRES, 176
    isA = which == 'A'
    a.c(f"==== out projection {which} : m-tile s31, column group s32")
    a.e("s_barrier")
    if isA:
        a.e(f"""
        s_lshl_b32 s21, s31, 9
        s_add_u32 s21, s21, s30
        s_add_u32 s21, s21, {L.HOA}
        v_lshrrev_b32 v{T+1}, 2, v2
        v_and_b32 v{T+1}, 3, v{T+1}
        v_lshlrev_b32 v{T+1}, 7, v{T+1}
        v_and_b32 v{T+2}, 3, v2
        v_lshl_add_u32 v{T+1}, v{T+2}, 2, v{T+1}
        """)
    else:
        a.e(f"""
        s_lshl_b32 s21, s31, 11
        s_add_u32 s21, s21, s30
        s_add_u32 s21, s21, {L.HOB}
        v_and_b32 v{T+1}, 15, v2
        v_lshlrev_b32 v{T+1}, 7, v{T+1}
        """)
    a.e(f"""
    s_lshl_b32 s20, s31, 15
    s_lshl_b32 s22, s3, 13
    s_add_u32 s20, s20, s22
    s_add_u32 s20, s20, s30
    s_add_u32 s20, s20, {L.OA if isA else L.OB}
    s_mov_b32 s27, s20
    s_add_u32 s22, s22, {LSCR}
    v_add_u32 v{T}, s22, v1
    v_add_u32 v{T+3}, {LSCR}, v1
    """)
    if isA:
        a.c("first pass only: QKV_B weights of this head into LDS (resident afterwards)")
        lnw = a.lab('aa_nowb')
        a.e(f"""
        s_cmp_lg_u32 s33, 0
        s_cbranch_scc1 {lnw}
        s_mul_i32 s44, s5, {84*1024}
        s_mul_i32 s45, s3, {21*1024}
        s_add_u32 s44, s44, s45
        s_add_u32 s44, s44, {L.WB}
        """)
        for k in range(21):
            if k % 4 == 0:
                if k: a.e("s_add_u32 s44, s44, 4096\ns_add_u32 s45, s45, 4096")
                a.e("s_mov_b32 m0, s45\ns_nop 0")
            a.e(f"buffer_load_dwordx4 v1, s[8:11], s44 offen offset:{(k%4)*1024} lds")
        a.e(f"{lnw}:")

    poll(a, lambda: a.e(f"buffer_load_dword v{T+2}, v{T+1}, s[8:11], s21 offen sc1"), [T + 2], T + 4, name='ho')
    a.stamp(sbase + '_hint')
    a.e("s_mov_b32 m0, s22\ns_nop 0\nbuffer_load_dwordx4 v1, s[8:11], s20 offen offset:0 lds\nbuffer_load_dwordx4 v1, s[8:11], s20 offen offset:1024 lds\nbuffer_load_dwordx4 v1, s[8:11], s20 offen offset:2048 lds\nbuffer_load_dwordx4 v1, s[8:11], s20 offen offset:3072 lds\ns_add_u32 s29, s20, 4096\ns_add_u32 s25, s22, 4096\ns_mov_b32 m0, s25\ns_nop 0\nbuffer_load_dwordx4 v1, s[8:11], s29 offen offset:0 lds\nbuffer_load_dwordx4 v1, s[8:11], s29 offen offset:1024 lds\nbuffer_load_dwordx4 v1, s[8:11], s29 offen offset:2048 lds\nbuffer_load_dwordx4 v1, s[8:11], s29 offen offset:3072 lds")
    XU = 160
    for q in range(8): a.e(f"v_lshlrev_b32 v{XU+2*q}, 16, v{XRES+q}\nv_and_b32 v{XU+2*q+1}, 0xffff0000, v{XRES+q}")
    lskip, lmm, lredo, lok = a.lab('op_skip'), a.lab('op_mm'), a.lab('op_redo'), a.lab('op_ok')
    a.e(f"""
    s_mov_b32 s53, 0
    s_waitcnt vmcnt(0)
    s_barrier
{lmm}:
    """)
    a.stamp(sbase + '_pan')
    if a.INSTR: a.e("s_waitcnt lgkmcnt(0)")
    for k in range(32): a.e(f"ds_read_b128 {vr(OF+4*k)}, v{T+3} offset:{k*1024}")
    for k in range(32):
        a.e(f"s_waitcnt lgkmcnt({min(15, 31-k)})")
        a.e(f"{MF} {vr(ACC,16)}, {ar(AWO+4*k)}, {vr(OF+4*k)}, {vr(XU,16) if k == 0 else vr(ACC,16)}")
    sav = a.lines; a.lines = []
    a.c("a word that had not arrived (sentinel = NaN pair) poisons its row in every wave alike: reload coherently, validate, redo once")
    a.e(f"{lredo}:\ns_cmp_lg_u32 s53, 0\ns_cbranch_scc1 {lok}\ns_mov_b32 s53, 1\ns_barrier")
    poll(a, lambda: frag_loads(a, lambda k: vr(OF + 4 * k), 8, 27, 'sc1'), range(OF, OF + 32), T + 4, name='ofr')
    for k in range(8): a.e(f"ds_write_b128 v{T}, {vr(OF+4*k)} offset:{k*1024}")
    a.e(f"s_waitcnt lgkmcnt(0)\ns_barrier\ns_branch {lmm}")
    a.cold.append("\n".join(a.lines)); a.lines = sav
    a.stamp(sbase + '_mm')
    nxt = 0 if isA else L.ARENA
    xo, so = (L.XM, L.STM) if isA else (L.XIN, L.STIN)
    a.e(f"""
    s_mul_i32 s20, s31, {28*1024}
    s_lshl_b32 s21, s32, 11
    s_add_u32 s20, s20, s21
    s_add_u32 s20, s20, s30
    s_add_u32 s20, s20, {nxt + xo}
    s_lshl_b32 s21, s31, 12
    s_lshl_b32 s22, s32, 8
    s_add_u32 s21, s21, s22
    s_add_u32 s21, s21, s30
    s_add_u32 s21, s21, {nxt + so}
    s_mov_b32 s22, 0x3f803f80
    v_lshlrev_b32 v{T+6}, 3, v2
    s_nop 1
    v_cmp_u_f32 vcc, v{ACC}, v{ACC}
    s_nop 1
    s_cmp_lg_u64 vcc, 0
    s_cbranch_scc1 {lredo}
{lok}:
    s_cmp_ge_u32 s32, 14
    s_cbranch_scc1 {lskip}
    v_mov_b32 v{T}, 0
    v_mov_b32 v{T+1}, 0
    """)
    for q in range(8): a.e(f"v_cvt_pk_bf16_f32 v{PK+q}, v{ACC+2*q}, v{ACC+2*q+1}")
    lfin = a.lab('op_fin')
    if not isA:
        a.e(f"s_cmp_lg_u32 s33, 0\ns_cbranch_scc1 {lfin}")
    clamp(a, range(PK, PK + 8))
    a.e(f"""
    buffer_store_dwordx4 {vr(PK)}, v1, s[8:11], s20 offen sc1
    buffer_store_dwordx4 {vr(PK+4)}, v1, s[8:11], s20 offen offset:1024 sc1
    """)
    for q in range(8):
        a.e(f"v_dot2_f32_bf16 v{T}, v{PK+q}, s22, v{T}\nv_dot2_f32_bf16 v{T+1}, v{PK+q}, v{PK+q}, v{T+1}")
    a.e(f"""
    s_nop 3
    v_mov_b32 v{T+2}, v{T}
    v_mov_b32 v{T+3}, v{T+1}
    s_nop 1
    v_permlane32_swap_b32 v{T}, v{T+2}
    v_permlane32_swap_b32 v{T+1}, v{T+3}
    s_nop 1
    v_add_f32 v{T}, v{T}, v{T+2}
    v_add_f32 v{T+1}, v{T+1}, v{T+3}
    v_min_u32 v{T}, s54, v{T}
    v_min_u32 v{T+1}, s54, v{T+1}
    s_mov_b32 exec_hi, 0
    buffer_store_dwordx2 v[{T}:{T+1}], v{T+6}, s[8:11], s21 offen sc1
    s_mov_b64 exec, -1
    """)
    if not isA:
        sav = a.lines; a.lines = []
        a.e(f"""
{lfin}:
        s_lshl_b32 s21, s31, 5
        v_add_u32 v{T}, s21, v2
        v_mul_u32_u24 v{T}, 896, v{T}
        v_lshl_add_u32 v{T}, v3, 3, v{T}
        s_lshl_b32 s21, s32, 6
        """)
        for q in range(4): a.e(f"buffer_store_dwordx2 v[{PK+2*q}:{PK+2*q+1}], v{T}, s[12:15], s21 offen offset:{16*q}")
        a.e(f"s_branch {lskip}")
        a.cold.append("\n".join(a.lines)); a.lines = sav
    a.e(f"{lskip}:")
    a.stamp(sbase + '_pub')

QB = 224
def qkv_b(a):
    XF, AQ, AK, AV, WR, CQ, CK, STT, MU, RS, T = 16, 128, 144, 160, 176, 192, 208, 4, 232, 233, 248
    NWR = 4
    STT = 176 - 0
    a.c("==== QKV_B : head s5, m-tile s6")
    a.e(f"""
    s_mul_i32 s21, s5, 384
    s_add_u32 s21, s21, {L.CSB}
    v_lshlrev_b32 v{T+1}, 4, v3
    v_lshlrev_b32 v{T+2}, 2, v2
    """)
    for q in range(4): a.e(f"buffer_load_dwordx4 {vr(CQ+4*q)}, v{T+1}, s[8:11], s21 offen offset:{q*32}")
    for q in range(4): a.e(f"buffer_load_dwordx4 {vr(CK+4*q)}, v{T+1}, s[8:11], s21 offen offset:{128+q*32}")
    a.e(f"buffer_load_dword v{T+3}, v{T+2}, s[8:11], s21 offen offset:256")
    ST2 = 128
    if WOB_MODE == 'poll': stats_poll(a, ST2, L.STM, 6, T, T + 1, lambda: wo_loads(a, L.WOB, 0, 16), 16)
    else: stats_poll(a, ST2, L.STM, 6, T, T + 1)
    a.stamp('qb_st')
    a.e(f"""
    s_mul_i32 s21, s6, {28*1024}
    s_add_u32 s21, s21, s30
    s_add_u32 s21, s21, {L.XM}
    s_mov_b32 s35, 0
    """)
    frag_loads(a, lambda k: vr(XF + 4 * k), 28, 21)
    stats_finish(a, ST2, MU, RS, T + 5)
    a.e(f"""
    v_mul_f32 v{T+5}, v{MU}, v{RS}
    s_lshl_b32 s20, s3, 8
    s_add_u32 s20, s20, {LSM}
    v_lshl_add_u32 v{T+6}, v2, 2, s20
    v_lshl_add_u32 v{T+7}, v3, 4, s20
    ds_write_b32 v{T+6}, v{RS}
    ds_write_b32 v{T+6}, v{T+5} offset:128
    v_add_u32 v{T+4}, {56*1024}, v1
    """)
    lmm, lredo, lok = a.lab('qb_mm'), a.lab('qb_redo'), a.lab('qb_ok')
    a.e(f"{lmm}:")
    def chain(seq, first):
        def rd(idx):
            k, p = seq[idx]; o = (p * 28 + k) * 1024
            if o >= 56 * 1024: a.e(f"ds_read_b128 {vr(WR+4*(idx%NWR))}, v{T+4} offset:{o-56*1024}")
            else: a.e(f"ds_read_b128 {vr(WR+4*(idx%NWR))}, v1 offset:{o}")
        for idx in range(NWR - 1): rd(idx)
        for idx, (k, p) in enumerate(seq):
            if idx + NWR - 1 < len(seq): rd(idx + NWR - 1)
            rem = min(NWR - 1, len(seq) - 1 - idx)
            if first and p == 1: a.e(f"s_waitcnt vmcnt({27-k}) lgkmcnt({rem})")
            else: a.e(f"s_waitcnt lgkmcnt({rem})")
            acc = [AQ, AK, AV][p]; w = vr(WR + 4 * (idx % NWR)); x = vr(XF + 4 * k)
            cc = '0' if k == 0 else vr(acc, 16)
            if p < 2: a.e(f"{MF} {vr(acc,16)}, {w}, {x}, {cc}")
            else: a.e(f"{MF} {vr(acc,16)}, {x}, {w}, {cc}")
    a.c("K and V chains first (published to the neighbours); WOB fragments are prefetched in between")
    chain([(k, p) for k in range(28) for p in (1, 2)], True)
    a.stamp('qb_mm')
    if a.INSTR: a.e("s_waitcnt lgkmcnt(0)")
    a.e('s_nop 3')
    RSr, MRr, PKK, PV = AQ, WR, AK, AV
    for q in range(4):
        a.e(f"ds_read_b128 {vr(RSr+4*q)}, v{T+7} offset:{q*32}\nds_read_b128 {vr(MRr+4*q)}, v{T+7} offset:{128+q*32}")
    a.c("a not-yet-arrived x word (sentinel = bf16 NaN pair) poisons the row: any NaN -> re-load coherently, validate, redo")
    a.e(f"""
    v_cmp_u_f32 vcc, v{AK}, v{AK}
    v_mul_f32 v{T+5}, {fbits(QS)}, v{RS}
    v_cmp_eq_u32 s[24:25], 28, v2
    s_cmp_lg_u64 vcc, 0
    s_cbranch_scc1 {lredo}
{lok}:
    """)
    sav = a.lines; a.lines = []
    lr2 = a.lab('qb_r2')
    a.e(f"""
{lredo}:
    s_cmp_lg_u32 s35, 0
    s_cbranch_scc1 {lok}
    s_waitcnt lgkmcnt(0)
{lr2}:
    s_add_u32 s35, s35, 1
    s_cmp_ge_u32 s35, {SPIN}
    s_cbranch_scc1 {lmm}
    """)
    frag_loads(a, lambda k: vr(XF + 4 * k), 28, 21, 'sc1')
    a.e("s_waitcnt vmcnt(0)")
    check(a, range(XF, XF + 112), T, lr2)
    a.e(f"s_branch {lmm}")
    a.cold.append("\n".join(a.lines)); a.lines = sav
    pk_fma_s(a, AK, MU, CK, AK)
    pk_mul_hi(a, AK, RS, AK)
    for q in range(8): a.e(f"v_cvt_pk_bf16_f32 v{PKK+q}, v{AK+2*q}, v{AK+2*q+1}")
    a.e(f"""
    v_cmp_eq_u32 vcc, 1, v3
    v_mov_b32 v{T+1}, 0
    v_mov_b32 v{T}, 0x3f803f80
    v_mov_b32 v{T+6}, 0x00003f80
    """)
    for q in range(8): a.e(f"v_dot2_f32_bf16 v{T+1}, v{PKK+q}, v{PKK+q}, v{T+1}")
    a.e(f"""
    s_lshl_b32 s20, s5, 17
    s_lshl_b32 s21, s6, 11
    s_add_u32 s20, s20, s21
    s_add_u32 s20, s20, s30
    s_add_u32 s21, s20, {L.KB}
    s_add_u32 s22, s20, {L.VB}
    s_lshl_b32 s20, s3, 12
    s_add_u32 s20, s20, {LSCR + 8*4096}
    v_cndmask_b32 v{PKK+6}, v{PKK+6}, v{T}, vcc
    v_cndmask_b32 v{PKK+7}, v{PKK+7}, v{T+6}, vcc
    v_add_u32 v{T+6}, s20, v1
    v_mov_b32 v{T+2}, v{T+1}
    """)
    clamp(a, range(PKK, PKK + 8))
    a.e(f"""
    buffer_store_dwordx4 {vr(PKK)}, v1, s[8:11], s21 offen sc1
    buffer_store_dwordx4 {vr(PKK+4)}, v1, s[8:11], s21 offen offset:1024 sc1
    v_permlane32_swap_b32 v{T+1}, v{T+2}
    s_waitcnt lgkmcnt(0)
    """)
    for r in range(0, 16, 2): a.e(f"v_pk_mul_f32 v[{AV+r}:{AV+r+1}], v[{AV+r}:{AV+r+1}], v[{RSr+r}:{RSr+r+1}]")
    a.e(f"v_add_f32 v{T+1}, v{T+1}, v{T+2}")
    for r in range(0, 16, 2): a.e(f"v_pk_fma_f32 v[{AV+r}:{AV+r+1}], v[{T+2}:{T+3}], v[{MRr+r}:{MRr+r+1}], v[{AV+r}:{AV+r+1}] op_sel:[1,0,0] op_sel_hi:[1,1,1]")
    a.e(f"v_max_f32_dpp v{T+1}, v{T+1}, v{T+1} quad_perm:[1,0,3,2] row_mask:0xf bank_mask:0xf")
    for q in range(8): a.e(f"v_cvt_pk_bf16_f32 v{PV+q}, v{AV+2*q}, v{AV+2*q+1}")
    a.e(f"v_max_f32_dpp v{T+1}, v{T+1}, v{T+1} quad_perm:[2,3,0,1] row_mask:0xf bank_mask:0xf")
    for q in range(8): a.e(f"v_cndmask_b32 v{PV+q}, v{PV+q}, v{T}, s[24:25]")
    a.e(f"v_max_f32_dpp v{T+1}, v{T+1}, v{T+1} row_half_mirror row_mask:0xf bank_mask:0xf")
    clamp(a, range(PV, PV + 8))
    a.e(f"""
    v_max_f32_dpp v{T+1}, v{T+1}, v{T+1} row_mirror row_mask:0xf bank_mask:0xf
    buffer_store_dwordx4 {vr(PV)}, v1, s[8:11], s22 offen sc1
    buffer_store_dwordx4 {vr(PV+4)}, v1, s[8:11], s22 offen offset:1024 sc1
    s_lshl_b32 s20, s5, 4
    s_add_u32 s20, s20, s4
    s_lshl_b32 s20, s20, 7
    s_lshl_b32 s21, s3, 2
    s_add_u32 s20, s20, s21
    s_add_u32 s20, s20, s30
    s_add_u32 s20, s20, {L.KNB}
    v_readlane_b32 s24, v{T+1}, 0
    v_readlane_b32 s25, v{T+1}, 16
    s_add_u32 s21, s21, {LSM + 3072}
    v_mov_b32 v{T+2}, 0
    v_mov_b32 v{T+3}, s21
    s_max_u32 s24, s24, s25
    s_min_u32 s24, s24, 0x7fc00000
    v_mov_b32 v{T}, s24
    s_mov_b64 exec, 1
    buffer_store_dword v{T}, v{T+2}, s[8:11], s20 offen sc1
    s_mov_b64 exec, -1
    s_barrier
    s_mov_b64 exec, 1
    ds_write_b32 v{T+3}, v{T}
    s_mov_b64 exec, -1
    ds_write_b128 v{T+6}, {vr(PKK)}
    ds_write_b128 v{T+6}, {vr(PKK+4)} offset:1024
    ds_write_b128 v{T+6}, {vr(PV)} offset:2048
    ds_write_b128 v{T+6}, {vr(PV+4)} offset:3072
    """)
    a.stamp('qb_pub')
    if a.INSTR: a.e("s_waitcnt lgkmcnt(0)")
    a.c("Q chain while the K/V hand-off is in flight")
    chain([(k, 0) for k in range(28)], False)
    a.e(f"v_mov_b32 v{T}, 0\ns_nop 7\ns_nop 2")
    pk_fma_s(a, AQ, MU, CQ, AQ)
    pk_mul_hi(a, AQ, T + 5, AQ)
    for q in range(8): a.e(f"v_cvt_pk_bf16_f32 v{QB+q}, v{AQ+2*q}, v{AQ+2*q+1}")
    for q in range(8): a.e(f"v_dot2_f32_bf16 v{T}, v{QB+q}, v{QB+q}, v{T}")
    a.e(f"""
    s_nop 3
    v_mov_b32 v{RS}, v{T}
    s_nop 1
    v_permlane32_swap_b32 v{T}, v{RS}
    s_nop 1
    v_add_f32 v{MU}, v{T}, v{RS}
    """)

def attn_b(a):
    QF, QN = QB, 232
    S0, S1, P, O, MHI, MLO, NL, KV, T = 24, 40, 56, 64, 80, 96, 112, 144, 4
    NR = 3
    SS = [S0, S1]
    NEG = fbits(-1e30)
    a.c("==== attention B : head s5, query tile s6; LDS tile slot i = global tile 4g-8+i")
    a.e(f"""
    s_lshl_b32 s20, s5, 4
    s_add_u32 s20, s20, s4
    s_lshl_b32 s20, s20, 7
    s_add_u32 s20, s20, s30
    s_add_u32 s21, s20, {L.KNB - 256}
    v_lshrrev_b32 v{T}, 2, v2
    v_and_b32 v{T}, 1, v{T}
    v_and_b32 v{T+1}, 3, v2
    v_lshlrev_b32 v{T+2}, 7, v{T}
    v_lshl_add_u32 v{T+2}, v{T+1}, 2, v{T+2}
    v_add_u32 v{T+3}, s4, v{T}
    v_cmp_gt_u32 s[26:27], 2, v{T+3}
    v_mov_b32 v{T+4}, 256
    v_lshl_add_u32 v{T+4}, v{T+1}, 2, v{T+4}
    v_cndmask_b32 v{T+2}, v{T+2}, v{T+4}, s[26:27]
    """)
    def gen_masks():
        a.c("mask tiles used as MFMA C operand")
        a.e(f"v_lshlrev_b32 v{T+5}, 2, v3\nv_sub_u32 v{T+5}, v2, v{T+5}\nv_cvt_f32_i32 v{T+5}, v{T+5}\nv_add_f32 v{T+5}, 0.5, v{T+5}\nv_mul_f32 v{T+5}, {fbits(2e30)}, v{T+5}")
        for r in range(16):
            ar_ = (r & 3) + 8 * (r >> 2)
            a.e(f"v_subrev_f32 v{MLO+r}, {fbits(2e30 * ar_)}, v{T+5}")
        for r in range(16):
            a.e(f"v_min_f32 v{MHI+r}, 0, v{MLO+r}\nv_min_f32_e64 v{MLO+r}, 0, -v{MLO+r}")
    a.c("neighbour tiles: this wave fetches slots 2w,2w+1 (clamped at tile 0)")
    a.e(f"""
    s_lshl_b32 s22, s4, 2
    s_lshl_b32 s23, s3, 1
    s_add_u32 s22, s22, s23
    s_sub_i32 s22, s22, 8
    s_max_i32 s22, s22, 0
    s_lshl_b32 s22, s22, 11
    s_lshl_b32 s23, s5, 17
    s_add_u32 s22, s22, s23
    s_add_u32 s22, s22, s30
    s_add_u32 s23, s22, {L.VB}
    s_add_u32 s22, s22, {L.KB}
    s_lshl_b32 s20, s3, 13
    s_add_u32 s20, s20, {LSCR}
    v_add_u32 v{T+7}, s20, v1
    s_min_u32 s28, s6, 8
    """)
    a.stamp('ab_pre')
    poll(a, lambda: a.e(f"buffer_load_dword v{T+8}, v{T+2}, s[8:11], s21 offen sc1"), [T + 8], T + 9, name='kb')
    a.stamp('ab_kn')
    lnn, lnm = a.lab('ab_nn'), a.lab('ab_nm')
    a.e(f"""
    s_lshl_b32 s24, s4, 2
    s_lshl_b32 s25, s3, 1
    s_add_u32 s24, s24, s25
    s_cmp_lt_u32 s24, 8
    s_cbranch_scc1 {lnm}
    """)
    def nl(fl=''):
        a.e(f"""
        buffer_load_dwordx4 {vr(NL)}, v1, s[8:11], s22 offen {fl}
        buffer_load_dwordx4 {vr(NL+4)}, v1, s[8:11], s22 offen offset:1024 {fl}
        buffer_load_dwordx4 {vr(NL+8)}, v1, s[8:11], s23 offen {fl}
        buffer_load_dwordx4 {vr(NL+12)}, v1, s[8:11], s23 offen offset:1024 {fl}
        buffer_load_dwordx4 {vr(NL+16)}, v1, s[8:11], s22 offen offset:2048 {fl}
        buffer_load_dwordx4 {vr(NL+20)}, v1, s[8:11], s22 offen offset:3072 {fl}
        buffer_load_dwordx4 {vr(NL+24)}, v1, s[8:11], s23 offen offset:2048 {fl}
        buffer_load_dwordx4 {vr(NL+28)}, v1, s[8:11], s23 offen offset:3072 {fl}
        """)
    nl()
    if WOB_MODE == 'poll': wo_loads(a, L.WOB, 16, 16)
    gen_masks()
    sav = a.lines; a.lines = []
    a.e(f"{lnm}:")
    if WOB_MODE == 'poll': wo_loads(a, L.WOB, 16, 16)
    gen_masks()
    a.e(f"s_branch {lnn}")
    a.cold.append("\n".join(a.lines)); a.lines = sav
    a.e("s_waitcnt vmcnt(16)" if WOB_MODE == 'poll' else "s_waitcnt vmcnt(0)")
    validated(a, lambda: nl('sc1'), range(NL, NL + 32), T + 9, 'nb')
    for k in range(8): a.e(f"ds_write_b128 v{T+7}, {vr(NL+4*k)} offset:{k*1024}")
    a.e(f"""
{lnn}:
    v_mov_b32 v{T+9}, {LSM + 3072}
    s_lshl_b32 s20, s3, 12
    s_add_u32 s20, s20, {LSCR + 8*4096}
    v_add_u32 v{T+7}, s20, v1
    s_waitcnt lgkmcnt(0)
    s_barrier
    ds_read_b128 {vr(NL)}, v{T+9}
    """)
    a.e(f"v_subrev_u32 v{T+7}, {8*4096}, v{T+7}")
    def rdt(k):
        for q in range(4): a.e(f"ds_read_b128 {vr(KV+16*(k%NR)+4*q)}, v{T+7} offset:{(8-k)*4096+q*1024}")
    a.c("Kmax over the two neighbour blocks and the own block (superset of the window)")
    row_max16(a, T + 8)
    a.e(f"""
    s_waitcnt lgkmcnt(0)
    v_max3_f32 v{T+8}, v{T+8}, v{NL}, v{NL+1}
    v_max3_f32 v{T+8}, v{T+8}, v{NL+2}, v{NL+3}
    s_nop 0
    v_readfirstlane_b32 s24, v{T+8}
    s_mov_b32 exec_lo, 0
    s_nop 1
    v_mul_f32 v{T}, s24, v{QN}
    v_sqrt_f32 v{T}, v{T}
    s_nop 0
    v_mul_f32 v{T}, {fbits(1.02)}, v{T}
    """)
    c_pieces(a, T, T + 1, QF + 6, QF + 7)
    a.e("s_mov_b64 exec, -1\ns_mov_b32 s29, 0")
    a.stamp('ab_go')
    if a.INSTR: a.e("s_waitcnt lgkmcnt(0)")
    lmain, lfin, lslow, lnorm = a.lab('ab_main'), a.lab('ab_fin'), a.lab('ab_slow'), a.lab('ab_norm')
    a.e(f"{lmain}:\ns_lshl_b32 s44, s36, 15\ns_add_u32 s44, s44, {L.WOB}")
    def wob(g, i):
        if g >= 8 or WOB_MODE != 'units': return
        if i == 0: a.e(f"s_add_u32 s43, s44, {g*4096}")
        a.e(f"buffer_load_dwordx4 {ar(AWO+16*g+4*i)}, v1, s[8:11], s43 offen offset:{i*1024}")
    rdt(0); rdt(1)
    for r in range(16): a.e(f"v_mov_b32 v{O+r}, 0")
    def cmask(k): return vr(MHI, 16) if k == 0 else (vr(MLO, 16) if k == 8 else '0')
    def kvb(k): return KV + 16 * (k % NR)
    a.e(f"""
    s_waitcnt lgkmcnt(4)
    {MF} {vr(S0,16)}, {vr(kvb(0))}, {vr(QF)}, {cmask(0)}
    {MF} {vr(S0,16)}, {vr(kvb(0)+4)}, {vr(QF+4)}, {vr(S0,16)}
    s_nop 7
    s_nop 3
    """)
    stubs = []
    for k in range(9):
        sb = SS[k & 1]; sn = SS[(k + 1) & 1]
        def ex(i0):
            for i in range(i0, i0 + 4): a.e(f"v_exp_f32 v{sb+i}, v{sb+i}")
        def cv(j0):
            for jx in (j0, j0 + 1): a.e(f"v_cvt_pk_bf16_f32 v{P+jx}, v{sb+2*jx}, v{sb+2*jx+1}")
        ex(0)
        if k < 8:
            a.e("s_waitcnt lgkmcnt(0)")
            a.e(f"{MF} {vr(sn,16)}, {vr(kvb(k+1))}, {vr(QF)}, {cmask(k+1)}")
        cv(0); wob(k, 0); ex(4)
        if k < 8: a.e(f"{MF} {vr(sn,16)}, {vr(kvb(k+1)+4)}, {vr(QF+4)}, {vr(sn,16)}")
        cv(2); wob(k, 1); ex(8)
        if k > 0: a.e(f"{MF} {vr(O,16)}, {vr(kvb(k-1)+12)}, {vr(P+4)}, {vr(O,16)}")
        cv(4)
        if k + 2 <= 8: rdt(k + 2)
        wob(k, 2)
        ex(12)
        a.e(f"{MF} {vr(O,16)}, {vr(kvb(k)+8)}, {vr(P)}, {vr(O,16)}")
        wob(k, 3)
        cv(6)
        if k < 8:
            st = a.lab('ab_x'); stubs.append((st, k))
            a.e(f"s_cmp_eq_u32 s28, {k}\ns_cbranch_scc1 {st}")
        else:
            a.e(f"s_nop 1\n{MF} {vr(O,16)}, {vr(kvb(k)+12)}, {vr(P+4)}, {vr(O,16)}")
    a.e(f"{lfin}:")
    a.stamp('ab_end')
    a.e(f"""
    s_lshl_b32 s20, s6, 15
    s_lshl_b32 s21, s5, 11
    s_add_u32 s20, s20, s21
    s_add_u32 s20, s20, s30
    s_add_u32 s20, s20, {L.OB}
    s_lshl_b32 s21, s6, 11
    s_lshl_b32 s22, s5, 7
    s_add_u32 s21, s21, s22
    s_add_u32 s21, s21, s30
    s_add_u32 s21, s21, {L.HOB}
    s_mov_b32 s22, {fbits(THR)}
    v_mov_b32 v{T+4}, 0
    s_waitcnt lgkmcnt(0)
    v_mov_b32 v{T+2}, v{O+12}
    v_mov_b32 v{T+3}, v{O+12}
    s_nop 1
    v_permlane32_swap_b32 v{T+2}, v{T+3}
    s_nop 1
    v_cmp_gt_f32 vcc, s22, v{T+3}
    s_nop 1
    s_cmp_lg_u64 vcc, 0
    s_cbranch_scc1 {lslow}
{lnorm}:
    v_rcp_f32 v{T+3}, v{T+3}
    s_nop 0
    """)
    pk_mul_hi(a, O, T + 3, O)
    for q in range(8): a.e(f"v_cvt_pk_bf16_f32 v{P+q}, v{O+2*q}, v{O+2*q+1}")
    clamp(a, range(P, P + 8))
    a.e(f"""
    buffer_store_dwordx4 {vr(P)}, v1, s[8:11], s20 offen sc1
    buffer_store_dwordx4 {vr(P+4)}, v1, s[8:11], s20 offen offset:1024 sc1
    s_mov_b64 exec, 1
    buffer_store_dword v{T+4}, v{T+4}, s[8:11], s21 offen sc1
    s_mov_b64 exec, -1
    """)
    a.stamp('ab_pub')
    sav = a.lines; a.lines = []
    cu = [a.lab('ab_cu') for _ in range(9)]
    for st, k in stubs:
        a.e(f"{st}:\n{MF} {vr(O,16)}, {vr(kvb(k)+12)}, {vr(P+4)}, {vr(O,16)}\ns_branch {cu[k+1]}")
    for g in range(1, 9):
        a.e(f"{cu[g]}:")
        for i in range(4): wob(g, i)
    a.e(f"s_branch {lfin}")
    lsm = a.lab('ab_sm')
    a.e(f"""
{lslow}:
    s_cmp_lg_u32 s29, 0
    s_cbranch_scc1 {lnorm}
    """)
    a.c("exact fallback: true (masked) row max, then rerun")
    a.e(f"""
    v_cmp_eq_u32 vcc, 1, v3
    v_mov_b32 v{T}, 0xff800000
    s_mov_b32 s29, 1
    v_cndmask_b32 v{QF+6}, v{QF+6}, 0, vcc
    v_cndmask_b32 v{QF+7}, v{QF+7}, 0, vcc
    """)
    for k in range(9):
        a.e(f"""
        ds_read_b128 {vr(KV)}, v{T+7} offset:{(8-k)*4096}
        ds_read_b128 {vr(KV+4)}, v{T+7} offset:{(8-k)*4096+1024}
        s_waitcnt lgkmcnt(0)
        {MF} {vr(S0,16)}, {vr(KV)}, {vr(QF)}, {cmask(k)}
        {MF} {vr(S0,16)}, {vr(KV+4)}, {vr(QF+4)}, {vr(S0,16)}
        s_nop 15
        """)
        for r in range(0, 16, 2): a.e(f"v_max3_f32 v{T}, v{T}, v{S0+r}, v{S0+r+1}")
        if k < 8: a.e(f"s_cmp_eq_u32 s28, {k}\ns_cbranch_scc1 {lsm}")
    a.e(f"""
{lsm}:
    v_mov_b32 v{T+1}, v{T}
    s_nop 1
    v_permlane32_swap_b32 v{T}, v{T+1}
    s_nop 1
    v_max_f32 v{T}, v{T}, v{T+1}
    s_mov_b32 exec_lo, 0
    """)
    c_pieces(a, T, T + 1, QF + 6, QF + 7)
    a.e(f"s_mov_b64 exec, -1\ns_branch {lmain}")
    a.cold.append("\n".join(a.lines)); a.lines = sav
```

```python
from asm import *
import math, struct
QS = (28 ** -0.5) * math.log2(math.e)
def fbits(x): return '0x%08x' % struct.unpack('<I', struct.pack('<f', x))[0]
MF = 'v_mfma_f32_32x32x16_bf16'
def vr(b, n=4): return f"v[{b}:{b+n-1}]"
def ar(b, n=4): return f"a[{b}:{b+n-1}]"
THR = 2.0 ** -80
SPIN = 1 << 16
LWB = 0
LSCR = 84 * 1024
LSM = 148 * 1024
LKV = 152 * 1024
LDS_TOTAL = 153 * 1024
XRES = 240
AWQ, AWO = 0, 112
VQA, VOA = 236, 237
import os
WOA_MODE = os.environ.get('WOA_MODE', 'peel')
WOB_MODE = os.environ.get('WOB_MODE', 'units')

def check(a, regs, t, fail):
    regs = list(regs)
    if len(regs) == 1: src = regs[0]
    else:
        if len(regs) == 2: a.e(f"v_max_u32 v{t}, v{regs[0]}, v{regs[1]}"); rest = []
        else: a.e(f"v_max3_u32 v{t}, v{regs[0]}, v{regs[1]}, v{regs[2]}"); rest = regs[3:]
        while rest:
            if len(rest) == 1: a.e(f"v_max_u32 v{t}, v{t}, v{rest[0]}"); rest = []
            else: a.e(f"v_max3_u32 v{t}, v{t}, v{rest[0]}, v{rest[1]}"); rest = rest[2:]
        src = t
    a.e(f"""
    v_cmp_eq_u32 vcc, -1, v{src}
    s_nop 1
    s_cmp_lg_u64 vcc, 0
    s_cbranch_scc1 {fail}
    """)

SL1 = int(os.environ.get('SL1', '1')); SL2 = int(os.environ.get('SL2', '2'))
def poll(a, loads, regs, t, sleep=SL1, name='poll', extra=None, nextra=0):
    l0, l1, l2 = a.lab(name), a.lab(name + '_r'), a.lab(name + '_ok')
    if extra is None:
        a.e(f"s_mov_b32 s35, 0\n{l0}:")
        loads()
        a.e("s_waitcnt vmcnt(0)")
        check(a, regs, t, l1)
        cold = f"""
{l1}:
        s_add_u32 s35, s35, 1
        s_cmp_ge_u32 s35, {SPIN}
        s_cbranch_scc1 {l2}
        s_sleep {sleep}
        s_branch {l0}
        """
        a.cold.append(cold)
    else:
        a.e("s_mov_b32 s35, 0")
        loads()
        extra()
        a.e(f"s_waitcnt vmcnt({nextra})")
        check(a, regs, t, l1)
        sav = a.lines; a.lines = []
        a.e(f"""
{l1}:
        s_add_u32 s35, s35, 1
        s_cmp_ge_u32 s35, {SPIN}
        s_cbranch_scc1 {l2}
        """)
        loads()
        a.e("s_waitcnt vmcnt(0)")
        l3 = a.lab(name + '_s')
        check(a, regs, t, l3)
        a.e(f"s_branch {l2}\n{l3}:\ns_sleep {sleep}\ns_branch {l1}")
        a.cold.append("\n".join(a.lines)); a.lines = sav
    a.e(f"{l2}:")

def wo_loads(a, base, k0, n):
    a.e(f"s_lshl_b32 s55, s36, 15\ns_add_u32 s55, s55, {base + k0*1024}")
    frag_loads(a, lambda k: ar(AWO + 4 * (k0 + k)), n, 55)

def validated(a, loads_sc1, regs, t, name='val'):
    l1, l2 = a.lab(name + '_r'), a.lab(name + '_ok')
    check(a, regs, t, l1)
    a.e(f"{l2}:")
    sav = a.lines; a.lines = []
    a.e(f"{l1}:\ns_mov_b32 s35, 0")
    l3 = a.lab(name + '_l')
    a.e(f"{l3}:\ns_add_u32 s35, s35, 1\ns_cmp_ge_u32 s35, {SPIN}\ns_cbranch_scc1 {l2}")
    loads_sc1()
    a.e("s_waitcnt vmcnt(0)")
    check(a, regs, t, l3)
    a.e(f"s_branch {l2}")
    a.cold.append("\n".join(a.lines)); a.lines = sav

def clamp(a, regs):
    for r in regs: a.e(f"v_min_u32 v{r}, s54, v{r}")

def frag_loads(a, dst_fn, n, sreg, flags='', tmp=29):
    cur = sreg
    for k in range(n):
        if k and k % 4 == 0:
            a.e(f"s_add_u32 s{tmp}, s{sreg}, {k*1024}"); cur = tmp
        a.e(f"buffer_load_dwordx4 {dst_fn(k)}, v1, s[8:11], s{cur} offen offset:{(k%4)*1024} {flags}")

def row_max16(a, x):
    for m in ('quad_perm:[1,0,3,2]', 'quad_perm:[2,3,0,1]', 'row_half_mirror', 'row_mirror'):
        a.e(f"s_nop 1\nv_max_f32_dpp v{x}, v{x}, v{x} {m} row_mask:0xf bank_mask:0xf")

def stats_finish(a, st0, mu, rs, t):
    for q in range(1, 7):
        a.e(f"v_add_f32 v{st0}, v{st0}, v{st0+2*q}\nv_add_f32 v{st0+1}, v{st0+1}, v{st0+2*q+1}")
    a.e(f"""
    v_mov_b32 v{t}, v{st0}
    v_mov_b32 v{t+1}, v{st0+1}
    s_nop 1
    v_permlane32_swap_b32 v{st0}, v{t}
    v_permlane32_swap_b32 v{st0+1}, v{t+1}
    s_nop 1
    v_add_f32 v{st0}, v{st0}, v{t}
    v_add_f32 v{st0+1}, v{st0+1}, v{t+1}
    v_mul_f32 v{mu}, {fbits(-1.0/448)}, v{st0}
    v_mul_f32 v{t}, {fbits(1.0/448)}, v{st0+1}
    v_fma_f32 v{t}, -v{mu}, v{mu}, v{t}
    v_max_f32 v{t}, 0, v{t}
    v_add_f32 v{t}, {fbits(1e-5)}, v{t}
    v_rsq_f32 v{rs}, v{t}
    s_nop 0
    """)

def stats_poll(a, st0, off, smt, vaddr, t, extra=None, nextra=0):
    a.e(f"""
    v_mul_u32_u24 v{vaddr}, {7*256}, v3
    v_lshl_add_u32 v{vaddr}, v2, 3, v{vaddr}
    s_lshl_b32 s20, s{smt}, 12
    s_add_u32 s20, s20, s30
    s_add_u32 s20, s20, {off}
    """)
    def ld():
        for q in range(7):
            a.e(f"buffer_load_dwordx2 v[{st0+2*q}:{st0+2*q+1}], v{vaddr}, s[8:11], s20 offen offset:{q*256} sc1")
    poll(a, ld, range(st0, st0 + 14), t, name='st', extra=extra, nextra=nextra)

def c_pieces(a, c, t, d0, d1):
    a.e(f"""
    v_and_b32 v{t}, 0xffff0000, v{c}
    v_sub_f32 v{t+1}, v{c}, v{t}
    v_and_b32 v{t+2}, 0xffff0000, v{t+1}
    v_sub_f32 v{t+1}, v{t+1}, v{t+2}
    v_lshrrev_b32 v{t}, 16, v{t}
    v_or_b32 v{t}, v{t}, v{t+2}
    v_lshrrev_b32 v{t+1}, 16, v{t+1}
    v_xor_b32 v{d0}, 0x80008000, v{t}
    v_xor_b32 v{d1}, 0x00008000, v{t+1}
    """)

def pk_fma_s(a, d, s_, x, c, n=16, neg=False):
    assert s_ % 2 == 0 and d % 2 == 0 and x % 2 == 0 and c % 2 == 0
    for r in range(0, n, 2):
        a.e(f"v_pk_fma_f32 v[{d+r}:{d+r+1}], v[{s_}:{s_+1}], v[{x+r}:{x+r+1}], v[{c+r}:{c+r+1}] op_sel_hi:[0,1,1]")
def pk_mul_s(a, d, s_, x, n=16):
    assert s_ % 2 == 0 and d % 2 == 0 and x % 2 == 0
    for r in range(0, n, 2):
        a.e(f"v_pk_mul_f32 v[{d+r}:{d+r+1}], v[{s_}:{s_+1}], v[{x+r}:{x+r+1}] op_sel_hi:[0,1]")
def pk_mul_hi(a, d, s_, x, n=16):
    assert s_ % 2 == 1
    for r in range(0, n, 2):
        a.e(f"v_pk_mul_f32 v[{d+r}:{d+r+1}], v[{s_-1}:{s_}], v[{x+r}:{x+r+1}] op_sel:[1,0] op_sel_hi:[1,1]")

def entry(a, done):
    if os.environ.get('MAP', 'flat') == 'flat':
        MAPCODE = "s_lshr_b32 s4, s2, 4\ns_and_b32 s5, s2, 15"
    elif os.environ.get('MAP') == 'half':
        MAPCODE = '''s_lshr_b32 s4, s2, 1
    s_and_b32 s4, s4, 3
    s_lshl_b32 s4, s4, 2
    s_lshr_b32 s5, s2, 3
    s_and_b32 s5, s5, 3
    s_add_u32 s4, s4, s5
    s_and_b32 s5, s2, 1
    s_lshl_b32 s5, s5, 3
    s_lshr_b32 s6, s2, 5
    s_add_u32 s5, s5, s6'''
    elif os.environ.get('MAP') == 'quad':
        MAPCODE = '''s_lshr_b32 s4, s2, 2
    s_and_b32 s4, s4, 1
    s_lshl_b32 s4, s4, 3
    s_lshr_b32 s5, s2, 3
    s_and_b32 s5, s5, 7
    s_add_u32 s4, s4, s5
    s_and_b32 s5, s2, 3
    s_lshl_b32 s5, s5, 2
    s_lshr_b32 s6, s2, 6
    s_add_u32 s5, s5, s6'''
    else:
        MAPCODE = '''s_and_b32 s4, s2, 7
    s_lshl_b32 s4, s4, 1
    s_lshr_b32 s5, s2, 7
    s_add_u32 s4, s4, s5
    s_lshr_b32 s5, s2, 3
    s_and_b32 s5, s5, 15'''
    a.e(f"""
    s_cmp_ge_u32 s2, 256
    s_cbranch_scc1 {done}
    """)
    a.stamp('entry')
    a.e(f"""
    s_load_dwordx2 s[16:17], s[0:1], 80
    s_load_dwordx2 s[18:19], s[0:1], 64
    v_lshrrev_b32 v4, 6, v0
    v_and_b32 v1, 63, v0
    v_and_b32 v2, 31, v0
    v_readfirstlane_b32 s3, v4
    v_bfe_u32 v3, v0, 5, 1
    v_lshlrev_b32 v1, 4, v1
    {MAPCODE}
    s_lshl_b32 s6, s4, 2
    s_and_b32 s31, s5, 3
    s_add_u32 s31, s31, s6
    s_add_u32 s6, s6, s3
    s_lshl_b32 s7, s4, 4
    s_add_u32 s7, s7, s5
    s_and_b32 s32, s5, 12
    s_add_u32 s32, s32, s3
    s_min_u32 s36, s32, 13
    s_mov_b32 s30, {L.ARENA0}
    s_mov_b32 s33, 0
    s_mov_b32 s54, 0xfffffffe
    s_waitcnt lgkmcnt(0)
    """)
    a.srd(8, 16, L.TOTAL)
    a.srd(12, 18, S * 896)
    a.e(f"""
    v_lshrrev_b32 v4, 3, v2
    v_and_b32 v5, 7, v2
    v_lshlrev_b32 v5, 4, v5
    v_lshl_add_u32 v5, v3, 9, v5
    v_lshl_add_u32 v{VQA}, v4, 13, v5
    v_lshl_add_u32 v{VOA}, v4, 11, v5
    """)
    a.c("first QKV_A: inputs come from the previous kernel, no polling; resident WQA fragments; residual tile of x0")
    XF, CS, STT, T = 16, 144, 160, 176
    a.e(f"""
    s_mul_i32 s21, s31, {28*1024}
    s_mul_i32 s22, s3, {7*1024}
    s_add_u32 s21, s21, s22
    s_add_u32 s27, s21, {A(0, L.XIN)}
    s_add_u32 s22, s22, {LSCR}
    """)
    a.e("s_mov_b32 m0, s22\ns_nop 0\nbuffer_load_dwordx4 v1, s[8:11], s27 offen offset:0 lds\nbuffer_load_dwordx4 v1, s[8:11], s27 offen offset:1024 lds\nbuffer_load_dwordx4 v1, s[8:11], s27 offen offset:2048 lds\nbuffer_load_dwordx4 v1, s[8:11], s27 offen offset:3072 lds\ns_add_u32 s29, s27, 4096\ns_add_u32 s25, s22, 4096\ns_mov_b32 m0, s25\ns_nop 0\nbuffer_load_dwordx4 v1, s[8:11], s29 offen offset:0 lds\nbuffer_load_dwordx4 v1, s[8:11], s29 offen offset:1024 lds\nbuffer_load_dwordx4 v1, s[8:11], s29 offen offset:2048 lds")
    a.e(f"""
    v_mul_u32_u24 v{T}, {7*256}, v3
    v_lshl_add_u32 v{T}, v2, 3, v{T}
    s_lshl_b32 s20, s31, 12
    s_add_u32 s20, s20, {A(0, L.STIN)}
    """)
    for q in range(7): a.e(f"buffer_load_dwordx2 v[{STT+2*q}:{STT+2*q+1}], v{T}, s[8:11], s20 offen offset:{q*256}")
    a.e(f"""
    s_mul_i32 s20, s32, {28*1024}
    s_add_u32 s20, s20, {L.WQA}
    """)
    frag_loads(a, lambda k: ar(AWQ + 4 * k), 28, 20)
    a.e(f"""
    s_lshl_b32 s20, s32, 7
    s_add_u32 s20, s20, {L.CSA}
    v_lshlrev_b32 v{T+1}, 4, v3
    """)
    for q in range(4): a.e(f"buffer_load_dwordx4 {vr(CS+4*q)}, v{T+1}, s[8:11], s20 offen offset:{q*32}")
    a.e(f"""
    s_mul_i32 s20, s31, {28*1024}
    s_lshl_b32 s23, s36, 11
    s_add_u32 s20, s20, s23
    s_add_u32 s20, s20, {A(0, L.XIN)}
    buffer_load_dwordx4 {vr(XRES)}, v1, s[8:11], s20 offen
    buffer_load_dwordx4 {vr(XRES+4)}, v1, s[8:11], s20 offen offset:1024
    s_waitcnt vmcnt(34)
    s_branch M_qa_entry
    """)

def qkv_a(a):
    XF, ACC, CS, STT, MU, RS, T, PK, QP = 16, 128, 144, 160, 174, 175, 176, 184, 192
    a.c("==== QKV_A : m-tile s31, column group s32")
    a.e("s_barrier")
    a.e(f"""
    s_lshl_b32 s21, s32, 7
    s_add_u32 s21, s21, {L.CSA}
    v_lshlrev_b32 v{T+1}, 4, v3
    """)
    for q in range(4): a.e(f"buffer_load_dwordx4 {vr(CS+4*q)}, v{T+1}, s[8:11], s21 offen offset:{q*32}")
    if WOA_MODE == 'poll': stats_poll(a, STT, L.STIN, 31, T, T + 2, lambda: wo_loads(a, L.WOA, 0, 16), 16)
    else: stats_poll(a, STT, L.STIN, 31, T, T + 2)
    a.stamp('qa_st')
    a.e(f"""
    s_mul_i32 s21, s31, {28*1024}
    s_mul_i32 s22, s3, {7*1024}
    s_add_u32 s21, s21, s22
    s_add_u32 s21, s21, s30
    s_add_u32 s27, s21, {L.XIN}
    s_add_u32 s22, s22, {LSCR}
    """)
    a.e("s_mov_b32 m0, s22\ns_nop 0\nbuffer_load_dwordx4 v1, s[8:11], s27 offen offset:0 lds\nbuffer_load_dwordx4 v1, s[8:11], s27 offen offset:1024 lds\nbuffer_load_dwordx4 v1, s[8:11], s27 offen offset:2048 lds\nbuffer_load_dwordx4 v1, s[8:11], s27 offen offset:3072 lds\ns_add_u32 s29, s27, 4096\ns_add_u32 s25, s22, 4096\ns_mov_b32 m0, s25\ns_nop 0\nbuffer_load_dwordx4 v1, s[8:11], s29 offen offset:0 lds\nbuffer_load_dwordx4 v1, s[8:11], s29 offen offset:1024 lds\nbuffer_load_dwordx4 v1, s[8:11], s29 offen offset:2048 lds")
    a.e("M_qa_entry:")
    stats_finish(a, STT, MU, RS, T)
    lmm, lredo, lok = a.lab('qa_mm'), a.lab('qa_redo'), a.lab('qa_ok')
    a.e(f"""
    v_add_u32 v{T+5}, s22, v1
    v_add_u32 v{T+3}, {LSCR}, v1
    v_mul_f32 v{T}, {fbits(QS)}, v{RS}
    s_mov_b32 s53, 0
    s_cmp_eq_u32 s33, 0
    s_cbranch_scc1 {lmm}_b
    s_waitcnt vmcnt(0)
{lmm}_b:
    s_barrier
{lmm}:
    v_cmp_eq_u32 vcc, 1, v3
    """)
    a.stamp('qa_pan')
    if a.INSTR: a.e("s_waitcnt lgkmcnt(0)")
    for k in range(28): a.e(f"ds_read_b128 {vr(XF+4*k)}, v{T+3} offset:{k*1024}")
    sav = a.lines; a.lines = []
    a.e(f"{lredo}:\ns_cmp_lg_u32 s53, 0\ns_cbranch_scc1 {lok}\ns_mov_b32 s53, 1\ns_barrier")
    poll(a, lambda: frag_loads(a, lambda k: vr(XF + 4 * k), 7, 27, 'sc1'), range(XF, XF + 28), T + 4, name='xar')
    for k in range(7): a.e(f"ds_write_b128 v{T+5}, {vr(XF+4*k)} offset:{k*1024}")
    a.e(f"s_waitcnt lgkmcnt(0)\ns_barrier\ns_branch {lmm}")
    a.cold.append("\n".join(a.lines)); a.lines = sav
    a.e(f"v_cndmask_b32 v{T+1}, v{T}, v{RS}, vcc")
    for k in range(28):
        a.e(f"s_waitcnt vmcnt({33-k}) lgkmcnt({min(15, 27-k)})")
        a.e(f"{MF} {vr(ACC,16)}, {ar(AWQ+4*k)}, {vr(XF+4*k)}, {'0' if k == 0 else vr(ACC,16)}")
    a.e("s_waitcnt vmcnt(0)")
    U = 200
    a.c("K / V quad first (all-to-all critical path): staged through LDS so that whole fragments are stored by one wave")
    a.e(f"""
    s_and_b32 s21, s3, 1
    s_lshl_b32 s21, s21, 9
    s_lshr_b32 s22, s3, 1
    s_lshl_b32 s22, s22, 3
    s_add_u32 s21, s21, s22
    s_add_u32 s21, s21, {LKV}
    v_lshl_add_u32 v{U}, v2, 4, s21
    v_lshrrev_b32 v{U+1}, 4, v2
    v_lshlrev_b32 v{U+1}, 9, v{U+1}
    v_bfe_u32 v{U+2}, v2, 2, 1
    v_lshl_add_u32 v{U+1}, v{U+2}, 8, v{U+1}
    v_bfe_u32 v{U+2}, v2, 3, 1
    v_lshl_add_u32 v{U+1}, v{U+2}, 3, v{U+1}
    v_and_b32 v{U+2}, 3, v2
    v_lshl_add_u32 v{U+1}, v{U+2}, 1, v{U+1}
    s_lshl_b32 s21, s3, 6
    s_add_u32 s21, s21, {LKV}
    v_add_u32 v{U+1}, s21, v{U+1}
    v_cmp_u_f32 s[24:25], v{ACC}, v{ACC}
    s_nop 1
    s_cmp_lg_u64 s[24:25], 0
    s_cbranch_scc1 {lredo}
{lok}:
    """)
    for r in range(12, 16): a.e(f"v_fmac_f32 v{ACC+r}, v{MU}, v{CS+r}")
    for r in range(12, 16): a.e(f"v_mul_f32 v{ACC+r}, v{ACC+r}, v{T+1}")
    for q in (6, 7): a.e(f"v_cvt_pk_bf16_f32 v{PK+q}, v{ACC+2*q}, v{ACC+2*q+1}")
    lv, lb, lq, lnc = a.lab('qa_v'), a.lab('qa_bar'), a.lab('qa_q'), a.lab('qa_nc')
    a.e(f"""
    v_mov_b32 v{U+4}, v{PK+6}
    v_mov_b32 v{U+5}, v{PK+7}
    s_and_b32 s21, s32, 7
    s_cmp_lg_u32 s21, 7
    s_cbranch_scc1 {lnc}
    s_movk_i32 s23, 0x3f80
    s_cmp_eq_u32 s32, 7
    s_cselect_b32 s21, 0x3f803f80, s23
    s_cselect_b32 s22, s23, 0
    v_mov_b32 v{U+4}, s21
    v_mov_b32 v{U+5}, s22
{lnc}:
    s_mov_b32 exec_lo, 0
    s_cmp_ge_u32 s32, 8
    s_cbranch_scc1 {lv}
    ds_write_b64 v{U}, v[{U+4}:{U+5}]
    s_branch {lb}
{lv}:
    ds_write_b16 v{U+1}, v{U+4}
    ds_write_b16_d16_hi v{U+1}, v{U+4} offset:16
    ds_write_b16 v{U+1}, v{U+5} offset:32
    ds_write_b16_d16_hi v{U+1}, v{U+5} offset:48
{lb}:
    s_mov_b64 exec, -1
    v_add_u32 v{U}, {LKV}, v1
    s_waitcnt lgkmcnt(0)
    s_barrier
    s_cmp_lg_u32 s3, 0
    s_cbranch_scc1 {lq}
    ds_read_b128 {vr(U+4)}, v{U}
    s_lshr_b32 s22, s32, 2
    s_lshl_b32 s24, s31, 7
    s_add_u32 s24, s24, s30
    s_add_u32 s24, s24, {L.KNA}
    s_lshl_b32 s21, s22, 2
    s_add_u32 s24, s24, s21
    s_lshl_b32 s20, s31, 11
    s_add_u32 s20, s20, s30
    s_lshl_b32 s21, s22, 10
    s_add_u32 s23, s20, s21
    s_add_u32 s23, s23, {L.KA}
    s_lshl_b32 s21, s22, 8
    s_add_u32 s20, s20, s21
    s_add_u32 s20, s20, {L.VA - 512}
    s_cmp_lt_u32 s22, 2
    s_cselect_b32 s20, s23, s20
    s_cselect_b64 s[26:27], -1, 0
    v_lshrrev_b32 v{U+1}, 4, v0
    v_lshlrev_b32 v{U+1}, 9, v{U+1}
    v_and_b32 v{U+2}, 15, v0
    v_lshl_add_u32 v{U+1}, v{U+2}, 4, v{U+1}
    v_cndmask_b32 v{U+1}, v{U+1}, v1, s[26:27]
    v_mov_b32 v{U+2}, 0
    v_lshlrev_b32 v{U}, 13, v2
    s_waitcnt lgkmcnt(0)
    """)
    clamp(a, range(U + 4, U + 8))
    a.e(f"buffer_store_dwordx4 {vr(U+4)}, v{U+1}, s[8:11], s20 offen sc1")
    for q in range(4): a.e(f"v_dot2_f32_bf16 v{U+2}, v{U+4+q}, v{U+4+q}, v{U+2}")
    a.e(f"""
    s_nop 2
    v_mov_b32 v{U+3}, v{U+2}
    s_nop 1
    v_permlane32_swap_b32 v{U+2}, v{U+3}
    s_nop 1
    v_add_f32 v{U+2}, v{U+2}, v{U+3}
    """)
    row_max16(a, U + 2)
    a.e(f"""
    s_nop 1
    v_readlane_b32 s22, v{U+2}, 0
    v_readlane_b32 s23, v{U+2}, 16
    s_max_u32 s22, s22, s23
    s_min_u32 s22, s22, 0x7fc00000
    s_and_b32 s22, s22, s26
    v_mov_b32 v{U+1}, s22
    s_mov_b64 exec, 0xffff
    buffer_store_dword v{U+1}, v{U}, s[8:11], s24 offen sc1
    s_mov_b64 exec, -1
{lq}:
    """)
    clamp(a, (PK + 6, PK + 7))
    a.c("Q part")
    pk_fma_s(a, ACC, MU, CS, ACC, 12)
    pk_mul_s(a, ACC, T, ACC, 12)
    for q in range(6): a.e(f"v_cvt_pk_bf16_f32 v{PK+q}, v{ACC+2*q}, v{ACC+2*q+1}")
    clamp(a, range(PK, PK + 6))
    a.e(f"""
    s_lshl_b32 s20, s31, 15
    s_lshr_b32 s21, s32, 2
    s_lshl_b32 s21, s21, 11
    s_add_u32 s20, s20, s21
    s_lshl_b32 s21, s3, 7
    s_add_u32 s20, s20, s21
    s_add_u32 s47, s20, {L.QA}
    s_add_u32 s20, s47, s30
    buffer_store_dwordx4 {vr(PK)}, v{VQA}, s[8:11], s20 offen sc1
    v_cndmask_b32 v{T+2}, v{PK+6}, 0, vcc
    v_cndmask_b32 v{T+3}, v{PK+7}, 0, vcc
    v_mov_b32 v{T}, 0
    v_mov_b32 v{T+1}, 0
    """)
    for q in range(6): a.e(f"v_dot2_f32_bf16 v{T+(q&1)}, v{PK+q}, v{PK+q}, v{T+(q&1)}")
    a.e(f"""
    v_dot2_f32_bf16 v{T}, v{T+2}, v{T+2}, v{T}
    v_dot2_f32_bf16 v{T+1}, v{T+3}, v{T+3}, v{T+1}
    v_mov_b32 v{QP}, v{PK+4}
    v_mov_b32 v{QP+1}, v{PK+5}
    v_mov_b32 v{QP+3}, v{T+3}
    s_nop 0
    v_add_f32 v{T}, v{T}, v{T+1}
    v_mov_b32 v{T+1}, v{T}
    s_nop 1
    v_permlane32_swap_b32 v{T}, v{T+1}
    s_nop 1
    v_add_f32 v{T}, v{T}, v{T+1}
    v_min_u32 v{T}, s54, v{T}
    v_cndmask_b32 v{QP+2}, v{PK+6}, v{T}, vcc
    buffer_store_dwordx4 {vr(QP)}, v{VQA}, s[8:11], s20 offen offset:1024 sc1
    """)
    a.stamp('qa_pub')
    if a.INSTR and os.environ.get('ACK'):
        a.e("s_waitcnt vmcnt(0)")
    a.stamp('qa_ack')

def attn_a(a):
    QF, S0, S1, P, O, KV, T, FS = 16, 48, 64, 80, 88, 152, 216, 232
    NB = 4
    SS = [S0, S1]
    a.c("==== attention A : rows 8*s7.., all heads; waves split the keys; q slot s = tile (wave+s)&3, slot 0 is finalised by this wave")
    a.e(f"""
    s_barrier
    s_lshl_b32 s21, s6, 11
    s_add_u32 s21, s21, s30
    s_add_u32 s21, s21, {L.KNA}
    v_and_b32 v{T+8}, 15, v2
    v_lshlrev_b32 v{T+8}, 7, v{T+8}
    s_lshl_b32 s20, s7, 13
    s_add_u32 s20, s20, s30
    s_add_u32 s20, s20, {L.QA}
    s_lshl_b32 s26, s3, 11
    s_add_u32 s27, s26, 2048
    s_and_b32 s27, s27, 0x1fff
    s_add_u32 s28, s26, 4096
    s_and_b32 s28, s28, 0x1fff
    s_add_u32 s53, s26, 6144
    s_and_b32 s53, s53, 0x1fff
    s_lshr_b32 s57, s27, 2
    s_lshr_b32 s58, s28, 2
    s_lshr_b32 s59, s53, 2
    s_add_u32 s26, s26, s20
    s_add_u32 s27, s27, s20
    s_add_u32 s28, s28, s20
    s_add_u32 s53, s53, s20
    s_lshl_b32 s22, s3, 15
    s_add_u32 s22, s22, s30
    s_add_u32 s23, s22, {L.VA}
    s_add_u32 s22, s22, {L.KA}
    """)
    for r in range(64): a.e(f"v_mov_b32 v{O+r}, 0")
    for r in range(8): a.e(f"v_mov_b32 v{P+r}, 0")
    for r in range(4): a.e(f"v_mov_b32 v{KV+16*(NB-1)+12+r}, 0")
    for r in range(4): a.e(f"v_mov_b32 v{FS+r}, -1")
    if WOA_MODE == 'poll':
        lw = a.lab('aa_w0')
        a.e(f"s_cmp_lg_u32 s33, 0\ns_cbranch_scc1 {lw}")
        wo_loads(a, L.WOA, 0, 16)
        a.e(f"{lw}:")
    else:
        a.e(f"s_lshl_b32 s55, s36, 15\ns_add_u32 s55, s55, {L.WOA}")
    a.c("Q' fragments (validated below)")
    def q_load(fl=''):
        a.e(f"""
        buffer_load_dwordx4 {vr(QF)}, v1, s[8:11], s26 offen {fl}
        buffer_load_dwordx4 {vr(QF+4)}, v1, s[8:11], s26 offen offset:1024 {fl}
        buffer_load_dwordx4 {vr(QF+8)}, v1, s[8:11], s27 offen {fl}
        buffer_load_dwordx4 {vr(QF+12)}, v1, s[8:11], s27 offen offset:1024 {fl}
        buffer_load_dwordx4 {vr(QF+16)}, v1, s[8:11], s28 offen {fl}
        buffer_load_dwordx4 {vr(QF+20)}, v1, s[8:11], s28 offen offset:1024 {fl}
        buffer_load_dwordx4 {vr(QF+24)}, v1, s[8:11], s53 offen {fl}
        buffer_load_dwordx4 {vr(QF+28)}, v1, s[8:11], s53 offen offset:1024 {fl}
        """)
    q_load()
    a.c("sentinel fills (issued inside the loop) of the payload regions this workgroup itself writes later: own arena, x / Q' of the next")
    VF = FS + 6
    a.e(f"""
    s_lshl_b32 s41, s5, 17
    s_lshl_b32 s42, s6, 11
    s_add_u32 s41, s41, s42
    s_add_u32 s41, s41, s30
    s_add_u32 s42, s41, {L.VB}
    s_add_u32 s41, s41, {L.KB}
    s_lshl_b32 s43, s6, 15
    s_lshl_b32 s44, s5, 11
    s_add_u32 s43, s43, s44
    s_add_u32 s43, s43, s30
    s_add_u32 s43, s43, {L.OB}
    s_mul_i32 s44, s31, {28*1024}
    s_lshl_b32 s45, s36, 11
    s_add_u32 s44, s44, s45
    s_add_u32 s44, s44, s30
    s_add_u32 s52, s44, {L.ARENA + L.XIN}
    s_add_u32 s44, s44, {L.XM}
    s_lshr_b32 s45, s7, 2
    s_lshl_b32 s45, s45, 15
    s_and_b32 s46, s7, 3
    s_lshl_b32 s46, s46, 7
    s_add_u32 s45, s45, s46
    s_add_u32 s45, s45, s30
    s_add_u32 s45, s45, {L.OA}
    s_lshl_b32 s46, s3, 13
    s_add_u32 s45, s45, s46
    s_mov_b32 s56, s45
    s_add_u32 s46, s47, s30
    s_add_u32 s46, s46, {L.ARENA}
    v_mov_b32 v{VF}, v{VOA}
    v_mov_b32 v{VF+1}, v{VQA}
    s_mov_b32 s37, s22
    s_mov_b32 s38, s23
    s_lshl_b32 s20, s3, 9
    s_add_u32 s20, s20, {LSM+1024}
    v_lshl_add_u32 v{T+9}, v2, 2, s20
    v_lshlrev_b32 v{T+10}, 2, v2
    v_add_u32 v{T+10}, {LSM+1024}, v{T+10}
    v_add_u32 v{T+11}, s58, v{T+10}
    v_add_u32 v{T+12}, s59, v{T+10}
    v_add_u32 v{T+10}, s57, v{T+10}
    """)
    def kn_extra():
        wo_loads(a, L.WOA, 16, 16)
    poll(a, lambda: a.e(f"buffer_load_dwordx4 {vr(T)}, v{T+8}, s[8:11], s21 offen sc1"), range(T, T + 4), T + 4, sleep=SL2, name='kn', extra=(kn_extra if WOA_MODE == 'poll' else None), nextra=16)
    a.stamp('aa_kn')
    def kv_load(b, fl='', adv=True, sk=22, sv=23):
        a.e(f"""
        buffer_load_dwordx4 {vr(KV+16*b)}, v1, s[8:11], s{sk} offen {fl}
        buffer_load_dwordx4 {vr(KV+16*b+4)}, v1, s[8:11], s{sk} offen offset:1024 {fl}
        buffer_load_dwordx4 {vr(KV+16*b+8)}, v1, s[8:11], s{sv} offen {fl}
        buffer_load_dwordx4 {vr(KV+16*b+12)}, v1, s[8:11], s{sv} offen offset:1024 {fl}
        """)
        if adv: a.e(f"s_add_u32 s{sk}, s{sk}, 2048\ns_add_u32 s{sv}, s{sv}, 2048")
    for b in range(3): kv_load(b)
    a.c("per-wave stand-in shift c = 1.02*|q'|*Kmax(own keys): Cauchy-Schwarz upper bound of the row max over this wave's keys")
    a.e(f"""
    v_add_f32 v{T}, v{T}, v{T+1}
    v_add_f32 v{T+2}, v{T+2}, v{T+3}
    v_add_f32 v{T}, v{T}, v{T+2}
    """)
    row_max16(a, T)
    a.e(f"""
    s_nop 1
    v_readfirstlane_b32 s24, v{T}
    """)
    validated(a, lambda: q_load('sc1'), range(QF, QF + 32), T, 'qa')
    a.e("s_mov_b32 exec_lo, 0")
    for t in range(4):
        q2 = QF + 8 * t + 6
        a.e(f"""
        v_mul_f32 v{T}, s24, v{q2}
        v_sqrt_f32 v{T}, v{T}
        s_nop 0
        v_mul_f32 v{T}, {fbits(1.02)}, v{T}
        ds_write_b32 v{T+9+t}, v{T} offset:{t*128}
        """)
        c_pieces(a, T, T + 1, q2, q2 + 1)
    a.e("s_mov_b64 exec, -1")
    a.e("s_waitcnt vmcnt(0)")
    def kv_reload():
        a.e("s_mov_b32 s39, s37\ns_mov_b32 s40, s38")
        for b in range(3): kv_load(b, 'sc1', True, 39, 40)
    validated(a, kv_reload, range(KV, KV + 48), T, 'kv')
    a.e(f"""
    {MF} {vr(S0,16)}, {vr(KV)}, {vr(QF)}, 0
    {MF} {vr(S0,16)}, {vr(KV+4)}, {vr(QF+4)}, {vr(S0,16)}
    s_mov_b32 s29, 0
    s_nop 7
    s_nop 2
    """)
    a.stamp('aa_go')
    a.cstamp(6)
    slots = {0: ('s41', 'v1', 0), 1: ('s41', 'v1', 1024), 2: ('s45', f'v{VF}', 0), 3: ('s45', f'v{VF}', 1024)}
    lp = a.lab('aa_loop')
    def body(peel):
        u = 0
        for b in range(NB):
            for t in range(4):
                sb = SS[u & 1]; sn = SS[(u + 1) & 1]
                kb = KV + 16 * (b if t < 3 else (b + 1) % NB)
                qn = QF + 8 * ((t + 1) % 4)
                vp = KV + 16 * (b if t > 0 else (b - 1) % NB) + 12
                vc = KV + 16 * b + 8
                op = O + 16 * ((t - 1) % 4); oc = O + 16 * t
                def ex(i0):
                    for i in range(i0, i0 + 4): a.e(f"v_exp_f32 v{sb+i}, v{sb+i}")
                def cv(j0):
                    for jx in (j0, j0 + 1): a.e(f"v_cvt_pk_bf16_f32 v{P+jx}, v{sb+2*jx}, v{sb+2*jx+1}")
                def woa(k):
                    if not peel: return
                    if k and k % 4 == 0: a.e("s_add_u32 s55, s55, 4096")
                    a.e(f"buffer_load_dwordx4 {ar(AWO+4*k)}, v1, s[8:11], s55 offen offset:{(k%4)*1024}")
                ex(0)
                if t == 3 and not (peel and b < 2):
                    n = 11 + ((8 - 1) + 8 + 6 if peel else 0)
                    a.e(f"s_waitcnt vmcnt({n})")
                a.e(f"{MF} {vr(sn,16)}, {vr(kb)}, {vr(qn)}, 0")
                cv(0); woa(2 * u); ex(4)
                a.e(f"{MF} {vr(sn,16)}, {vr(kb+4)}, {vr(qn+4)}, {vr(sn,16)}")
                cv(2); ex(8)
                a.e(f"{MF} {vr(op,16)}, {vr(vp)}, {vr(P+4)}, {vr(op,16)}")
                cv(4)
                if t == 0: kv_load((b - 1) % NB)
                elif t == 2:
                    sr, vo, of = slots[b]
                    a.e(f"buffer_store_dwordx4 {vr(FS)}, {vo}, s[8:11], {sr} offen offset:{of} sc1")
                ex(12)
                a.e(f"{MF} {vr(oc,16)}, {vr(vc)}, {vr(P)}, {vr(oc,16)}")
                cv(6); woa(2 * u + 1)
                u += 1
        a.e(f"""
        s_mov_b32 s41, s42
        s_mov_b32 s42, s43
        s_mov_b32 s43, s44
        s_mov_b32 s45, s46
        s_mov_b32 s46, s52
        v_mov_b32 v{VF}, v{VF+1}
        v_mov_b32 v{VF+1}, v1
        s_add_u32 s29, s29, 1
        """)
    if WOA_MODE == 'peel':
        a.c("first four key tiles: also prefetch the WOA fragments (consumed after attention)")
        body(True)
    a.e(f".p2align 6\n{lp}:")
    body(False)
    a.e(f"""
    s_cmp_lt_u32 s29, 4
    s_cbranch_scc1 {lp}
    s_mul_i32 s57, s57, 24
    s_mul_i32 s58, s58, 24
    {MF} {vr(O+48,16)}, {vr(KV+16*(NB-1)+12)}, {vr(P+4)}, {vr(O+48,16)}
    s_mul_i32 s59, s59, 24
    v_add_u32 v{T+3}, {LSCR}, v1
    v_add_u32 v{T}, s57, v{T+3}
    v_add_u32 v{T+1}, s58, v{T+3}
    v_add_u32 v{T+2}, s59, v{T+3}
    s_mul_i32 s20, s3, 12288
    v_add_u32 v{T+3}, s20, v{T+3}
    s_lshl_b32 s21, s7, 7
    s_lshl_b32 s22, s3, 2
    s_add_u32 s21, s21, s22
    s_add_u32 s21, s21, s30
    s_add_u32 s21, s21, {L.HOA}
    s_mov_b32 s20, {fbits(THR)}
    """)
    a.stamp('aa_end')
    a.cstamp(7)
    a.c("send the three foreign q tiles to their owners through LDS; rescale all partials to a common shift")
    for t in range(1, 4):
        for q in range(4): a.e(f"ds_write_b128 v{T+t-1}, {vr(O+16*t+4*q)} offset:{(t-1)*4096+q*1024}")
    a.e("s_waitcnt vmcnt(0) lgkmcnt(0)\ns_barrier")
    a.stamp('aa_bar')
    if a.INSTR: a.e("s_waitcnt lgkmcnt(0)")
    R = KV
    F = S0
    for w in range(4): a.e(f"ds_read_b32 v{F+w}, v{T+9} offset:{w*128}")
    for w in range(3):
        for q in range(4): a.e(f"ds_read_b128 {vr(R+16*w+4*q)}, v{T+3} offset:{w*4096+q*1024}")
    a.e(f"""
    v_mov_b32 v{T+5}, 0
    s_waitcnt lgkmcnt(12)
    v_max3_f32 v{T+6}, v{F}, v{F+1}, v{F+2}
    v_max_f32 v{T+6}, v{T+6}, v{F+3}
    """)
    for w in range(4): a.e(f"v_sub_f32 v{F+w}, v{F+w}, v{T+6}")
    for w in range(4): a.e(f"v_exp_f32 v{F+w}, v{F+w}")
    for r in range(16): a.e(f"v_mul_f32 v{O+r}, v{F}, v{O+r}")
    for w in range(3):
        a.e(f"s_waitcnt lgkmcnt({8-4*w})")
        for r in range(16): a.e(f"v_fmac_f32 v{O+r}, v{F+1+w}, v{R+16*w+r}")
    lnorm, lslow = a.lab('aa_norm'), a.lab('aa_slow')
    a.e(f"""
    v_mov_b32 v{T+2}, v{O+12}
    v_mov_b32 v{T+3}, v{O+12}
    v_pk_add_f32 v[{T+6}:{T+7}], v[{O}:{O+1}], v[{O+2}:{O+3}]
    v_pk_add_f32 v[{T+10}:{T+11}], v[{O+4}:{O+5}], v[{O+6}:{O+7}]
    v_permlane32_swap_b32 v{T+2}, v{T+3}
    v_pk_add_f32 v[{T+6}:{T+7}], v[{T+6}:{T+7}], v[{O+8}:{O+9}]
    v_pk_add_f32 v[{T+10}:{T+11}], v[{T+10}:{T+11}], v[{O+10}:{O+11}]
    v_pk_add_f32 v[{T+6}:{T+7}], v[{T+6}:{T+7}], v[{O+12}:{O+13}]
    v_pk_add_f32 v[{T+10}:{T+11}], v[{T+10}:{T+11}], v[{O+14}:{O+15}]
    v_pk_add_f32 v[{T+6}:{T+7}], v[{T+6}:{T+7}], v[{T+10}:{T+11}]
    v_cmp_gt_f32 vcc, s20, v{T+3}
    v_cmp_u_f32 s[24:25], v{T+6}, v{T+7}
    v_rcp_f32 v{T+2}, v{T+3}
    s_or_b64 vcc, vcc, s[24:25]
    s_cmp_lg_u64 vcc, 0
    s_cbranch_scc1 {lslow}
{lnorm}:
    """)
    for r in range(16): a.e(f"v_mul_f32 v{O+r}, v{T+2}, v{O+r}")
    for q in range(8): a.e(f"v_cvt_pk_bf16_f32 v{P+q}, v{O+2*q}, v{O+2*q+1}")
    clamp(a, range(P, P + 8))
    a.e(f"""
    buffer_store_dwordx4 {vr(P)}, v{VOA}, s[8:11], s56 offen sc1
    buffer_store_dwordx4 {vr(P+4)}, v{VOA}, s[8:11], s56 offen offset:1024 sc1
    s_mov_b64 exec, 1
    buffer_store_dword v{T+5}, v{T+5}, s[8:11], s21 offen sc1
    s_mov_b64 exec, -1
    """)
    a.stamp('aa_pub')
    sav = a.lines; a.lines = []
    l1, l2, l1r, l2r = a.lab('aa_s1'), a.lab('aa_s2'), a.lab('aa_s1r'), a.lab('aa_s2r')
    a.e(f"{lslow}:")
    a.c("exact fallback: this wave redoes its 32 queries over all keys with the true row max (validated coherent loads)")
    a.e(f"""
    buffer_load_dwordx4 {vr(QF)}, v1, s[8:11], s26 offen sc1
    buffer_load_dwordx4 {vr(QF+4)}, v1, s[8:11], s26 offen offset:1024 sc1
    v_cmp_eq_u32 vcc, 1, v3
    v_mov_b32 v{T}, 0xff800000
    s_add_u32 s22, s30, {L.KA}
    s_mov_b32 s29, 0
    s_mov_b32 s35, 0
    s_waitcnt vmcnt(0)
    v_cndmask_b32 v{QF+6}, v{QF+6}, 0, vcc
    v_cndmask_b32 v{QF+7}, v{QF+7}, 0, vcc
{l1}:
    buffer_load_dwordx4 {vr(KV)}, v1, s[8:11], s22 offen sc1
    buffer_load_dwordx4 {vr(KV+4)}, v1, s[8:11], s22 offen offset:1024 sc1
    s_waitcnt vmcnt(0)
    s_add_u32 s35, s35, 1
    s_cmp_ge_u32 s35, {SPIN}
    s_cbranch_scc1 {l1r}
    """)
    check(a, range(KV, KV + 8), T + 1, l1)
    a.e(f"""
{l1r}:
    s_add_u32 s22, s22, 2048
    {MF} {vr(S0,16)}, {vr(KV)}, {vr(QF)}, 0
    {MF} {vr(S0,16)}, {vr(KV+4)}, {vr(QF+4)}, {vr(S0,16)}
    s_nop 15
    """)
    for r in range(0, 16, 2): a.e(f"v_max3_f32 v{T}, v{T}, v{S0+r}, v{S0+r+1}")
    a.e(f"""
    s_add_u32 s29, s29, 1
    s_cmp_lt_u32 s29, 64
    s_cbranch_scc1 {l1}
    v_mov_b32 v{T+1}, v{T}
    s_nop 1
    v_permlane32_swap_b32 v{T}, v{T+1}
    s_nop 1
    v_max_f32 v{T}, v{T}, v{T+1}
    s_mov_b32 exec_lo, 0
    """)
    c_pieces(a, T, T + 1, QF + 6, QF + 7)
    a.e(f"""
    s_mov_b64 exec, -1
    s_add_u32 s22, s30, {L.KA}
    s_add_u32 s23, s30, {L.VA}
    s_mov_b32 s29, 0
    """)
    for r in range(16): a.e(f"v_mov_b32 v{O+r}, 0")
    a.e(f"{l2}:")
    kv_load(0, 'sc1', False)
    a.e(f"""
    s_waitcnt vmcnt(0)
    s_add_u32 s35, s35, 1
    s_cmp_ge_u32 s35, {SPIN}
    s_cbranch_scc1 {l2r}
    """)
    check(a, range(KV, KV + 16), T + 1, l2)
    a.e(f"""
{l2r}:
    s_add_u32 s22, s22, 2048
    s_add_u32 s23, s23, 2048
    {MF} {vr(S0,16)}, {vr(KV)}, {vr(QF)}, 0
    {MF} {vr(S0,16)}, {vr(KV+4)}, {vr(QF+4)}, {vr(S0,16)}
    s_nop 15
    """)
    for r in range(16): a.e(f"v_exp_f32 v{S0+r}, v{S0+r}")
    a.e("s_nop 0")
    for q in range(8): a.e(f"v_cvt_pk_bf16_f32 v{P+q}, v{S0+2*q}, v{S0+2*q+1}")
    a.e(f"""
    s_nop 1
    {MF} {vr(O,16)}, {vr(KV+8)}, {vr(P)}, {vr(O,16)}
    {MF} {vr(O,16)}, {vr(KV+12)}, {vr(P+4)}, {vr(O,16)}
    s_add_u32 s29, s29, 1
    s_cmp_lt_u32 s29, 64
    s_cbranch_scc1 {l2}
    s_nop 15
    v_mov_b32 v{T+2}, v{O+12}
    v_mov_b32 v{T+3}, v{O+12}
    s_nop 1
    v_permlane32_swap_b32 v{T+2}, v{T+3}
    s_nop 1
    v_rcp_f32 v{T+2}, v{T+3}
    s_nop 0
    s_branch {lnorm}
    """)
    a.cold.append("\n".join(a.lines)); a.lines = sav

def out_proj(a, which, sbase):
    OF, ACC, PK, T = 16, 144, XRES, 176
    isA = which == 'A'
    a.c(f"==== out projection {which} : m-tile s31, column group s32")
    a.e("s_barrier")
    if isA:
        a.e(f"""
        s_lshl_b32 s21, s31, 9
        s_add_u32 s21, s21, s30
        s_add_u32 s21, s21, {L.HOA}
        v_lshrrev_b32 v{T+1}, 2, v2
        v_and_b32 v{T+1}, 3, v{T+1}
        v_lshlrev_b32 v{T+1}, 7, v{T+1}
        v_and_b32 v{T+2}, 3, v2
        v_lshl_add_u32 v{T+1}, v{T+2}, 2, v{T+1}
        """)
    else:
        a.e(f"""
        s_lshl_b32 s21, s31, 11
        s_add_u32 s21, s21, s30
        s_add_u32 s21, s21, {L.HOB}
        v_and_b32 v{T+1}, 15, v2
        v_lshlrev_b32 v{T+1}, 7, v{T+1}
        """)
    a.e(f"""
    s_lshl_b32 s20, s31, 15
    s_lshl_b32 s22, s3, 13
    s_add_u32 s20, s20, s22
    s_add_u32 s20, s20, s30
    s_add_u32 s20, s20, {L.OA if isA else L.OB}
    s_mov_b32 s27, s20
    s_add_u32 s22, s22, {LSCR}
    v_add_u32 v{T}, s22, v1
    v_add_u32 v{T+3}, {LSCR}, v1
    """)
    if isA:
        a.c("first pass only: QKV_B weights of this head into LDS (resident afterwards)")
        lnw = a.lab('aa_nowb')
        a.e(f"""
        s_cmp_lg_u32 s33, 0
        s_cbranch_scc1 {lnw}
        s_mul_i32 s44, s5, {84*1024}
        s_mul_i32 s45, s3, {21*1024}
        s_add_u32 s44, s44, s45
        s_add_u32 s44, s44, {L.WB}
        """)
        for k in range(21):
            if k % 4 == 0:
                if k: a.e("s_add_u32 s44, s44, 4096\ns_add_u32 s45, s45, 4096")
                a.e("s_mov_b32 m0, s45\ns_nop 0")
            a.e(f"buffer_load_dwordx4 v1, s[8:11], s44 offen offset:{(k%4)*1024} lds")
        a.e(f"{lnw}:")

    poll(a, lambda: a.e(f"buffer_load_dword v{T+2}, v{T+1}, s[8:11], s21 offen sc1"), [T + 2], T + 4, name='ho')
    a.stamp(sbase + '_hint')
    a.e("s_mov_b32 m0, s22\ns_nop 0\nbuffer_load_dwordx4 v1, s[8:11], s20 offen offset:0 lds\nbuffer_load_dwordx4 v1, s[8:11], s20 offen offset:1024 lds\nbuffer_load_dwordx4 v1, s[8:11], s20 offen offset:2048 lds\nbuffer_load_dwordx4 v1, s[8:11], s20 offen offset:3072 lds\ns_add_u32 s29, s20, 4096\ns_add_u32 s25, s22, 4096\ns_mov_b32 m0, s25\ns_nop 0\nbuffer_load_dwordx4 v1, s[8:11], s29 offen offset:0 lds\nbuffer_load_dwordx4 v1, s[8:11], s29 offen offset:1024 lds\nbuffer_load_dwordx4 v1, s[8:11], s29 offen offset:2048 lds\nbuffer_load_dwordx4 v1, s[8:11], s29 offen offset:3072 lds")
    XU = 160
    for q in range(8): a.e(f"v_lshlrev_b32 v{XU+2*q}, 16, v{XRES+q}\nv_and_b32 v{XU+2*q+1}, 0xffff0000, v{XRES+q}")
    lskip, lmm, lredo, lok = a.lab('op_skip'), a.lab('op_mm'), a.lab('op_redo'), a.lab('op_ok')
    a.e(f"""
    s_mov_b32 s53, 0
    s_waitcnt vmcnt(0)
    s_barrier
{lmm}:
    """)
    a.stamp(sbase + '_pan')
    if a.INSTR: a.e("s_waitcnt lgkmcnt(0)")
    for k in range(32): a.e(f"ds_read_b128 {vr(OF+4*k)}, v{T+3} offset:{k*1024}")
    for k in range(32):
        a.e(f"s_waitcnt lgkmcnt({min(15, 31-k)})")
        a.e(f"{MF} {vr(ACC,16)}, {ar(AWO+4*k)}, {vr(OF+4*k)}, {vr(XU,16) if k == 0 else vr(ACC,16)}")
    sav = a.lines; a.lines = []
    a.c("a word that had not arrived (sentinel = NaN pair) poisons its row in every wave alike: reload coherently, validate, redo once")
    a.e(f"{lredo}:\ns_cmp_lg_u32 s53, 0\ns_cbranch_scc1 {lok}\ns_mov_b32 s53, 1\ns_barrier")
    poll(a, lambda: frag_loads(a, lambda k: vr(OF + 4 * k), 8, 27, 'sc1'), range(OF, OF + 32), T + 4, name='ofr')
    for k in range(8): a.e(f"ds_write_b128 v{T}, {vr(OF+4*k)} offset:{k*1024}")
    a.e(f"s_waitcnt lgkmcnt(0)\ns_barrier\ns_branch {lmm}")
    a.cold.append("\n".join(a.lines)); a.lines = sav
    a.stamp(sbase + '_mm')
    nxt = 0 if isA else L.ARENA
    xo, so = (L.XM, L.STM) if isA else (L.XIN, L.STIN)
    a.e(f"""
    s_mul_i32 s20, s31, {28*1024}
    s_lshl_b32 s21, s32, 11
    s_add_u32 s20, s20, s21
    s_add_u32 s20, s20, s30
    s_add_u32 s20, s20, {nxt + xo}
    s_lshl_b32 s21, s31, 12
    s_lshl_b32 s22, s32, 8
    s_add_u32 s21, s21, s22
    s_add_u32 s21, s21, s30
    s_add_u32 s21, s21, {nxt + so}
    s_mov_b32 s22, 0x3f803f80
    v_lshlrev_b32 v{T+6}, 3, v2
    s_nop 1
    v_cmp_u_f32 vcc, v{ACC}, v{ACC}
    s_nop 1
    s_cmp_lg_u64 vcc, 0
    s_cbranch_scc1 {lredo}
{lok}:
    s_cmp_ge_u32 s32, 14
    s_cbranch_scc1 {lskip}
    v_mov_b32 v{T}, 0
    v_mov_b32 v{T+1}, 0
    """)
    for q in range(8): a.e(f"v_cvt_pk_bf16_f32 v{PK+q}, v{ACC+2*q}, v{ACC+2*q+1}")
    lfin = a.lab('op_fin')
    if not isA:
        a.e(f"s_cmp_lg_u32 s33, 0\ns_cbranch_scc1 {lfin}")
    clamp(a, range(PK, PK + 8))
    a.e(f"""
    buffer_store_dwordx4 {vr(PK)}, v1, s[8:11], s20 offen sc1
    buffer_store_dwordx4 {vr(PK+4)}, v1, s[8:11], s20 offen offset:1024 sc1
    """)
    for q in range(8):
        a.e(f"v_dot2_f32_bf16 v{T}, v{PK+q}, s22, v{T}\nv_dot2_f32_bf16 v{T+1}, v{PK+q}, v{PK+q}, v{T+1}")
    a.e(f"""
    s_nop 3
    v_mov_b32 v{T+2}, v{T}
    v_mov_b32 v{T+3}, v{T+1}
    s_nop 1
    v_permlane32_swap_b32 v{T}, v{T+2}
    v_permlane32_swap_b32 v{T+1}, v{T+3}
    s_nop 1
    v_add_f32 v{T}, v{T}, v{T+2}
    v_add_f32 v{T+1}, v{T+1}, v{T+3}
    v_min_u32 v{T}, s54, v{T}
    v_min_u32 v{T+1}, s54, v{T+1}
    s_mov_b32 exec_hi, 0
    buffer_store_dwordx2 v[{T}:{T+1}], v{T+6}, s[8:11], s21 offen sc1
    s_mov_b64 exec, -1
    """)
    if not isA:
        sav = a.lines; a.lines = []
        a.e(f"""
{lfin}:
        s_lshl_b32 s21, s31, 5
        v_add_u32 v{T}, s21, v2
        v_mul_u32_u24 v{T}, 896, v{T}
        v_lshl_add_u32 v{T}, v3, 3, v{T}
        s_lshl_b32 s21, s32, 6
        """)
        for q in range(4): a.e(f"buffer_store_dwordx2 v[{PK+2*q}:{PK+2*q+1}], v{T}, s[12:15], s21 offen offset:{16*q}")
        a.e(f"s_branch {lskip}")
        a.cold.append("\n".join(a.lines)); a.lines = sav
    a.e(f"{lskip}:")
    a.stamp(sbase + '_pub')

QB = 224
def qkv_b(a):
    XF, AQ, AK, AV, WR, CQ, CK, STT, MU, RS, T = 16, 128, 144, 160, 176, 192, 208, 4, 232, 233, 248
    NWR = 4
    STT = 176 - 0
    a.c("==== QKV_B : head s5, m-tile s6")
    a.e("s_barrier")
    a.e(f"""
    s_mul_i32 s21, s5, 384
    s_add_u32 s21, s21, {L.CSB}
    v_lshlrev_b32 v{T+1}, 4, v3
    v_lshlrev_b32 v{T+2}, 2, v2
    """)
    for q in range(4): a.e(f"buffer_load_dwordx4 {vr(CQ+4*q)}, v{T+1}, s[8:11], s21 offen offset:{q*32}")
    for q in range(4): a.e(f"buffer_load_dwordx4 {vr(CK+4*q)}, v{T+1}, s[8:11], s21 offen offset:{128+q*32}")
    a.e(f"buffer_load_dword v{T+3}, v{T+2}, s[8:11], s21 offen offset:256")
    ST2 = 128
    if WOB_MODE == 'poll': stats_poll(a, ST2, L.STM, 6, T, T + 1, lambda: wo_loads(a, L.WOB, 0, 16), 16)
    else: stats_poll(a, ST2, L.STM, 6, T, T + 1)
    a.stamp('qb_st')
    a.e(f"""
    s_mul_i32 s21, s6, {28*1024}
    s_add_u32 s21, s21, s30
    s_add_u32 s21, s21, {L.XM}
    s_mov_b32 s35, 0
    """)
    frag_loads(a, lambda k: vr(XF + 4 * k), 28, 21)
    stats_finish(a, ST2, MU, RS, T + 5)
    a.e(f"""
    v_mul_f32 v{T+5}, v{MU}, v{RS}
    s_lshl_b32 s20, s3, 8
    s_add_u32 s20, s20, {LSM}
    v_lshl_add_u32 v{T+6}, v2, 2, s20
    v_lshl_add_u32 v{T+7}, v3, 4, s20
    ds_write_b32 v{T+6}, v{RS}
    ds_write_b32 v{T+6}, v{T+5} offset:128
    v_add_u32 v{T+4}, {56*1024}, v1
    """)
    lmm, lredo, lok = a.lab('qb_mm'), a.lab('qb_redo'), a.lab('qb_ok')
    a.e(f"{lmm}:")
    def chain(seq, first):
        def rd(idx):
            k, p = seq[idx]; o = (p * 28 + k) * 1024
            if o >= 56 * 1024: a.e(f"ds_read_b128 {vr(WR+4*(idx%NWR))}, v{T+4} offset:{o-56*1024}")
            else: a.e(f"ds_read_b128 {vr(WR+4*(idx%NWR))}, v1 offset:{o}")
        for idx in range(NWR - 1): rd(idx)
        for idx, (k, p) in enumerate(seq):
            if idx + NWR - 1 < len(seq): rd(idx + NWR - 1)
            rem = min(NWR - 1, len(seq) - 1 - idx)
            if first and p == 1: a.e(f"s_waitcnt vmcnt({27-k}) lgkmcnt({rem})")
            else: a.e(f"s_waitcnt lgkmcnt({rem})")
            acc = [AQ, AK, AV][p]; w = vr(WR + 4 * (idx % NWR)); x = vr(XF + 4 * k)
            cc = '0' if k == 0 else vr(acc, 16)
            if p < 2: a.e(f"{MF} {vr(acc,16)}, {w}, {x}, {cc}")
            else: a.e(f"{MF} {vr(acc,16)}, {x}, {w}, {cc}")
    a.c("K and V chains first (published to the neighbours); WOB fragments are prefetched in between")
    chain([(k, p) for k in range(28) for p in (1, 2)], True)
    a.stamp('qb_mm')
    if a.INSTR: a.e("s_waitcnt lgkmcnt(0)")
    a.e('s_nop 3')
    RSr, MRr, PKK, PV = AQ, WR, AK, AV
    for q in range(4):
        a.e(f"ds_read_b128 {vr(RSr+4*q)}, v{T+7} offset:{q*32}\nds_read_b128 {vr(MRr+4*q)}, v{T+7} offset:{128+q*32}")
    a.c("a not-yet-arrived x word (sentinel = bf16 NaN pair) poisons the row: any NaN -> re-load coherently, validate, redo")
    a.e(f"""
    v_cmp_u_f32 vcc, v{AK}, v{AK}
    v_mul_f32 v{T+5}, {fbits(QS)}, v{RS}
    v_cmp_eq_u32 s[24:25], 28, v2
    s_cmp_lg_u64 vcc, 0
    s_cbranch_scc1 {lredo}
{lok}:
    """)
    sav = a.lines; a.lines = []
    lr2 = a.lab('qb_r2')
    a.e(f"""
{lredo}:
    s_cmp_lg_u32 s35, 0
    s_cbranch_scc1 {lok}
    s_waitcnt lgkmcnt(0)
{lr2}:
    s_add_u32 s35, s35, 1
    s_cmp_ge_u32 s35, {SPIN}
    s_cbranch_scc1 {lmm}
    """)
    frag_loads(a, lambda k: vr(XF + 4 * k), 28, 21, 'sc1')
    a.e("s_waitcnt vmcnt(0)")
    check(a, range(XF, XF + 112), T, lr2)
    a.e(f"s_branch {lmm}")
    a.cold.append("\n".join(a.lines)); a.lines = sav
    pk_fma_s(a, AK, MU, CK, AK)
    pk_mul_hi(a, AK, RS, AK)
    for q in range(8): a.e(f"v_cvt_pk_bf16_f32 v{PKK+q}, v{AK+2*q}, v{AK+2*q+1}")
    a.e(f"""
    v_cmp_eq_u32 vcc, 1, v3
    v_mov_b32 v{T+1}, 0
    v_mov_b32 v{T}, 0x3f803f80
    v_mov_b32 v{T+6}, 0x00003f80
    """)
    for q in range(8): a.e(f"v_dot2_f32_bf16 v{T+1}, v{PKK+q}, v{PKK+q}, v{T+1}")
    a.e(f"""
    s_lshl_b32 s20, s5, 17
    s_lshl_b32 s21, s6, 11
    s_add_u32 s20, s20, s21
    s_add_u32 s20, s20, s30
    s_add_u32 s21, s20, {L.KB}
    s_add_u32 s22, s20, {L.VB}
    s_lshl_b32 s20, s3, 12
    s_add_u32 s20, s20, {LSCR + 8*4096}
    v_cndmask_b32 v{PKK+6}, v{PKK+6}, v{T}, vcc
    v_cndmask_b32 v{PKK+7}, v{PKK+7}, v{T+6}, vcc
    v_add_u32 v{T+6}, s20, v1
    v_mov_b32 v{T+2}, v{T+1}
    """)
    clamp(a, range(PKK, PKK + 8))
    a.e(f"""
    buffer_store_dwordx4 {vr(PKK)}, v1, s[8:11], s21 offen sc1
    buffer_store_dwordx4 {vr(PKK+4)}, v1, s[8:11], s21 offen offset:1024 sc1
    v_permlane32_swap_b32 v{T+1}, v{T+2}
    s_waitcnt lgkmcnt(0)
    """)
    for r in range(0, 16, 2): a.e(f"v_pk_mul_f32 v[{AV+r}:{AV+r+1}], v[{AV+r}:{AV+r+1}], v[{RSr+r}:{RSr+r+1}]")
    a.e(f"v_add_f32 v{T+1}, v{T+1}, v{T+2}")
    for r in range(0, 16, 2): a.e(f"v_pk_fma_f32 v[{AV+r}:{AV+r+1}], v[{T+2}:{T+3}], v[{MRr+r}:{MRr+r+1}], v[{AV+r}:{AV+r+1}] op_sel:[1,0,0] op_sel_hi:[1,1,1]")
    a.e(f"v_max_f32_dpp v{T+1}, v{T+1}, v{T+1} quad_perm:[1,0,3,2] row_mask:0xf bank_mask:0xf")
    for q in range(8): a.e(f"v_cvt_pk_bf16_f32 v{PV+q}, v{AV+2*q}, v{AV+2*q+1}")
    a.e(f"v_max_f32_dpp v{T+1}, v{T+1}, v{T+1} quad_perm:[2,3,0,1] row_mask:0xf bank_mask:0xf")
    for q in range(8): a.e(f"v_cndmask_b32 v{PV+q}, v{PV+q}, v{T}, s[24:25]")
    a.e(f"v_max_f32_dpp v{T+1}, v{T+1}, v{T+1} row_half_mirror row_mask:0xf bank_mask:0xf")
    clamp(a, range(PV, PV + 8))
    a.e(f"""
    v_max_f32_dpp v{T+1}, v{T+1}, v{T+1} row_mirror row_mask:0xf bank_mask:0xf
    buffer_store_dwordx4 {vr(PV)}, v1, s[8:11], s22 offen sc1
    buffer_store_dwordx4 {vr(PV+4)}, v1, s[8:11], s22 offen offset:1024 sc1
    s_lshl_b32 s20, s5, 4
    s_add_u32 s20, s20, s4
    s_lshl_b32 s20, s20, 7
    s_lshl_b32 s21, s3, 2
    s_add_u32 s20, s20, s21
    s_add_u32 s20, s20, s30
    s_add_u32 s20, s20, {L.KNB}
    v_readlane_b32 s24, v{T+1}, 0
    v_readlane_b32 s25, v{T+1}, 16
    s_add_u32 s21, s21, {LSM + 3072}
    v_mov_b32 v{T+2}, 0
    v_mov_b32 v{T+3}, s21
    s_max_u32 s24, s24, s25
    s_min_u32 s24, s24, 0x7fc00000
    v_mov_b32 v{T}, s24
    s_mov_b64 exec, 1
    buffer_store_dword v{T}, v{T+2}, s[8:11], s20 offen sc1
    ds_write_b32 v{T+3}, v{T}
    s_mov_b64 exec, -1
    ds_write_b128 v{T+6}, {vr(PKK)}
    ds_write_b128 v{T+6}, {vr(PKK+4)} offset:1024
    ds_write_b128 v{T+6}, {vr(PV)} offset:2048
    ds_write_b128 v{T+6}, {vr(PV+4)} offset:3072
    """)
    a.stamp('qb_pub')
    if a.INSTR: a.e("s_waitcnt lgkmcnt(0)")
    a.c("Q chain while the K/V hand-off is in flight; half way, probe the neighbours and start their K/V tiles towards LDS")
    chain([(k, 0) for k in range(14)], False)
    attn_b_fetch(a)
    chain([(k, 0) for k in range(14, 28)], False)
    a.e(f"v_mov_b32 v{T}, 0\ns_nop 7\ns_nop 2")
    pk_fma_s(a, AQ, MU, CQ, AQ)
    pk_mul_hi(a, AQ, T + 5, AQ)
    for q in range(8): a.e(f"v_cvt_pk_bf16_f32 v{QB+q}, v{AQ+2*q}, v{AQ+2*q+1}")
    for q in range(8): a.e(f"v_dot2_f32_bf16 v{T}, v{QB+q}, v{QB+q}, v{T}")
    a.e(f"""
    s_nop 3
    v_mov_b32 v{RS}, v{T}
    s_nop 1
    v_permlane32_swap_b32 v{T}, v{RS}
    s_nop 1
    v_add_f32 v{MU}, v{T}, v{RS}
    """)

def attn_b_fetch(a):
    T = 4
    a.e(f"""
    s_lshl_b32 s20, s5, 4
    s_add_u32 s20, s20, s4
    s_lshl_b32 s20, s20, 7
    s_add_u32 s20, s20, s30
    s_add_u32 s21, s20, {L.KNB - 256}
    v_lshrrev_b32 v{T}, 2, v2
    v_and_b32 v{T}, 1, v{T}
    v_and_b32 v{T+1}, 3, v2
    v_lshlrev_b32 v{T+2}, 7, v{T}
    v_lshl_add_u32 v{T+2}, v{T+1}, 2, v{T+2}
    v_add_u32 v{T+3}, s4, v{T}
    v_cmp_gt_u32 s[26:27], 2, v{T+3}
    v_mov_b32 v{T+4}, 256
    v_lshl_add_u32 v{T+4}, v{T+1}, 2, v{T+4}
    v_cndmask_b32 v{T+2}, v{T+2}, v{T+4}, s[26:27]
    s_lshl_b32 s24, s4, 2
    s_lshl_b32 s23, s3, 1
    s_add_u32 s24, s24, s23
    s_lshl_b32 s22, s24, 11
    s_lshl_b32 s23, s5, 17
    s_add_u32 s22, s22, s23
    s_add_u32 s22, s22, s30
    s_add_u32 s23, s22, {L.VB - 8*2048}
    s_add_u32 s22, s22, {L.KB - 8*2048}
    s_lshl_b32 s20, s3, 13
    s_add_u32 s20, s20, {LSCR}
    s_add_u32 s25, s20, 2048
    s_add_u32 s26, s20, 4096
    """)
    a.stamp('ab_pre')
    poll(a, lambda: a.e(f"buffer_load_dword v{T+8}, v{T+2}, s[8:11], s21 offen sc1"), [T + 8], T + 9, name='kb')
    a.stamp('ab_kn')
    if a.INSTR: a.e("s_waitcnt lgkmcnt(0)")
    lnn = a.lab('ab_nn')
    a.c("this wave fetches slots 2w,2w+1 (nothing if they lie before the first row)")
    a.e(f"""
    s_cmp_lt_u32 s24, 8
    s_cbranch_scc1 {lnn}
    s_mov_b32 m0, s20
    s_nop 0
    buffer_load_dwordx4 v1, s[8:11], s22 offen lds
    buffer_load_dwordx4 v1, s[8:11], s22 offen offset:1024 lds
    s_mov_b32 m0, s25
    s_nop 0
    buffer_load_dwordx4 v1, s[8:11], s22 offen offset:2048 lds
    buffer_load_dwordx4 v1, s[8:11], s22 offen offset:3072 lds
    buffer_load_dwordx4 v1, s[8:11], s23 offen lds
    buffer_load_dwordx4 v1, s[8:11], s23 offen offset:1024 lds
    s_mov_b32 m0, s26
    s_nop 0
    buffer_load_dwordx4 v1, s[8:11], s23 offen offset:2048 lds
    buffer_load_dwordx4 v1, s[8:11], s23 offen offset:3072 lds
{lnn}:
    """)

def attn_b(a):
    QF, QN = QB, 232
    S0, S1, P, O, MHI, MLO, NL, KV, T = 24, 40, 56, 64, 80, 96, 112, 144, 4
    NR = 3
    SS = [S0, S1]
    a.c("==== attention B : head s5, query tile s6; LDS tile slot i = global tile 4g-8+i")
    a.c("mask tiles used as MFMA C operand")
    a.e(f"v_lshlrev_b32 v{T+5}, 2, v3\nv_sub_u32 v{T+5}, v2, v{T+5}\nv_cvt_f32_i32 v{T+5}, v{T+5}\nv_add_f32 v{T+5}, 0.5, v{T+5}\nv_mul_f32 v{T+5}, {fbits(2e30)}, v{T+5}")
    for r in range(16):
        ar_ = (r & 3) + 8 * (r >> 2)
        a.e(f"v_subrev_f32 v{MLO+r}, {fbits(2e30 * ar_)}, v{T+5}")
    for r in range(16):
        a.e(f"v_min_f32 v{MHI+r}, 0, v{MLO+r}\nv_min_f32_e64 v{MLO+r}, 0, -v{MLO+r}")
    a.e(f"""
    s_min_u32 s28, s6, 8
    v_mov_b32 v{T+9}, {LSM + 3072}
    s_lshl_b32 s20, s3, 12
    s_add_u32 s20, s20, {LSCR + 8*4096}
    v_add_u32 v{T+7}, s20, v1
    s_waitcnt vmcnt(0) lgkmcnt(0)
    s_barrier
    ds_read_b128 {vr(NL)}, v{T+9}
    """)
    a.e(f"v_subrev_u32 v{T+7}, {8*4096}, v{T+7}")
    def rdt(k):
        for q in range(4): a.e(f"ds_read_b128 {vr(KV+16*(k%NR)+4*q)}, v{T+7} offset:{(8-k)*4096+q*1024}")
    a.c("Kmax over the two neighbour blocks and the own block (superset of the window)")
    row_max16(a, T + 8)
    a.e(f"""
    s_waitcnt lgkmcnt(0)
    v_max3_f32 v{T+8}, v{T+8}, v{NL}, v{NL+1}
    v_max3_f32 v{T+8}, v{T+8}, v{NL+2}, v{NL+3}
    s_nop 0
    v_readfirstlane_b32 s24, v{T+8}
    s_mov_b32 exec_lo, 0
    s_nop 1
    v_mul_f32 v{T}, s24, v{QN}
    v_sqrt_f32 v{T}, v{T}
    s_nop 0
    v_mul_f32 v{T}, {fbits(1.02)}, v{T}
    """)
    c_pieces(a, T, T + 1, QF + 6, QF + 7)
    a.e("s_mov_b64 exec, -1\ns_mov_b32 s29, 0")
    a.stamp('ab_go')
    if a.INSTR: a.e("s_waitcnt lgkmcnt(0)")
    lmain, lfin, lslow, lnorm = a.lab('ab_main'), a.lab('ab_fin'), a.lab('ab_slow'), a.lab('ab_norm')
    a.e(f"{lmain}:\ns_lshl_b32 s44, s36, 15\ns_add_u32 s44, s44, {L.WOB}")
    def wob(g, i):
        if g >= 8 or WOB_MODE != 'units': return
        if i == 0: a.e(f"s_add_u32 s43, s44, {g*4096}")
        a.e(f"buffer_load_dwordx4 {ar(AWO+16*g+4*i)}, v1, s[8:11], s43 offen offset:{i*1024}")
    rdt(0); rdt(1)
    for r in range(16): a.e(f"v_mov_b32 v{O+r}, 0")
    def cmask(k): return vr(MHI, 16) if k == 0 else (vr(MLO, 16) if k == 8 else '0')
    def kvb(k): return KV + 16 * (k % NR)
    a.e(f"""
    s_waitcnt lgkmcnt(4)
    {MF} {vr(S0,16)}, {vr(kvb(0))}, {vr(QF)}, {cmask(0)}
    {MF} {vr(S0,16)}, {vr(kvb(0)+4)}, {vr(QF+4)}, {vr(S0,16)}
    s_nop 7
    s_nop 3
    """)
    stubs = []
    for k in range(9):
        sb = SS[k & 1]; sn = SS[(k + 1) & 1]
        def ex(i0):
            for i in range(i0, i0 + 4): a.e(f"v_exp_f32 v{sb+i}, v{sb+i}")
        def cv(j0):
            for jx in (j0, j0 + 1): a.e(f"v_cvt_pk_bf16_f32 v{P+jx}, v{sb+2*jx}, v{sb+2*jx+1}")
        ex(0)
        if k < 8:
            a.e("s_waitcnt lgkmcnt(0)")
            a.e(f"{MF} {vr(sn,16)}, {vr(kvb(k+1))}, {vr(QF)}, {cmask(k+1)}")
        cv(0); wob(k, 0); ex(4)
        if k < 8: a.e(f"{MF} {vr(sn,16)}, {vr(kvb(k+1)+4)}, {vr(QF+4)}, {vr(sn,16)}")
        cv(2); wob(k, 1); ex(8)
        if k > 0: a.e(f"{MF} {vr(O,16)}, {vr(kvb(k-1)+12)}, {vr(P+4)}, {vr(O,16)}")
        cv(4)
        if k + 2 <= 8: rdt(k + 2)
        wob(k, 2)
        ex(12)
        a.e(f"{MF} {vr(O,16)}, {vr(kvb(k)+8)}, {vr(P)}, {vr(O,16)}")
        wob(k, 3)
        cv(6)
        if k < 8:
            st = a.lab('ab_x'); stubs.append((st, k))
            a.e(f"s_cmp_eq_u32 s28, {k}\ns_cbranch_scc1 {st}")
        else:
            a.e(f"s_nop 1\n{MF} {vr(O,16)}, {vr(kvb(k)+12)}, {vr(P+4)}, {vr(O,16)}")
    a.e(f"{lfin}:")
    a.stamp('ab_end')
    a.e(f"""
    s_lshl_b32 s20, s6, 15
    s_lshl_b32 s21, s5, 11
    s_add_u32 s20, s20, s21
    s_add_u32 s20, s20, s30
    s_add_u32 s20, s20, {L.OB}
    s_lshl_b32 s21, s6, 11
    s_lshl_b32 s22, s5, 7
    s_add_u32 s21, s21, s22
    s_add_u32 s21, s21, s30
    s_add_u32 s21, s21, {L.HOB}
    s_mov_b32 s22, {fbits(THR)}
    v_mov_b32 v{T+4}, 0
    s_waitcnt lgkmcnt(0)
    v_mov_b32 v{T+2}, v{O+12}
    v_mov_b32 v{T+3}, v{O+12}
    v_pk_add_f32 v[{S0}:{S0+1}], v[{O}:{O+1}], v[{O+2}:{O+3}]
    v_pk_add_f32 v[{S0+2}:{S0+3}], v[{O+4}:{O+5}], v[{O+6}:{O+7}]
    v_permlane32_swap_b32 v{T+2}, v{T+3}
    v_pk_add_f32 v[{S0}:{S0+1}], v[{S0}:{S0+1}], v[{O+8}:{O+9}]
    v_pk_add_f32 v[{S0+2}:{S0+3}], v[{S0+2}:{S0+3}], v[{O+10}:{O+11}]
    v_pk_add_f32 v[{S0}:{S0+1}], v[{S0}:{S0+1}], v[{O+12}:{O+13}]
    v_pk_add_f32 v[{S0+2}:{S0+3}], v[{S0+2}:{S0+3}], v[{O+14}:{O+15}]
    v_pk_add_f32 v[{S0}:{S0+1}], v[{S0}:{S0+1}], v[{S0+2}:{S0+3}]
    v_cmp_gt_f32 vcc, s22, v{T+3}
    v_cmp_u_f32 s[24:25], v{S0}, v{S0+1}
    v_rcp_f32 v{T+3}, v{T+3}
    s_or_b64 s[26:27], vcc, s[24:25]
    s_cmp_lg_u64 s[26:27], 0
    s_cbranch_scc1 {lslow}
{lnorm}:
    """)
    pk_mul_hi(a, O, T + 3, O)
    for q in range(8): a.e(f"v_cvt_pk_bf16_f32 v{P+q}, v{O+2*q}, v{O+2*q+1}")
    clamp(a, range(P, P + 8))
    a.e(f"""
    buffer_store_dwordx4 {vr(P)}, v1, s[8:11], s20 offen sc1
    buffer_store_dwordx4 {vr(P+4)}, v1, s[8:11], s20 offen offset:1024 sc1
    s_mov_b64 exec, 1
    buffer_store_dword v{T+4}, v{T+4}, s[8:11], s21 offen sc1
    s_mov_b64 exec, -1
    """)
    a.stamp('ab_pub')
    sav = a.lines; a.lines = []
    cu = [a.lab('ab_cu') for _ in range(9)]
    for st, k in stubs:
        a.e(f"{st}:\n{MF} {vr(O,16)}, {vr(kvb(k)+12)}, {vr(P+4)}, {vr(O,16)}\ns_branch {cu[k+1]}")
    for g in range(1, 9):
        a.e(f"{cu[g]}:")
        for i in range(4): wob(g, i)
    a.e(f"s_branch {lfin}")
    lsm, lmx = a.lab('ab_sm'), a.lab('ab_mx')
    a.e(f"""
{lslow}:
    s_cmp_eq_u64 s[24:25], 0
    s_cbranch_scc1 {lmx}
    s_bitcmp1_b32 s29, 1
    s_cbranch_scc1 {lmx}
    s_or_b32 s29, s29, 2
    """)
    a.c("NaN: a neighbour word may not have arrived (sentinel): refetch the neighbour tiles coherently, validated, then rerun")
    a.e(f"""
    s_lshl_b32 s24, s4, 2
    s_lshl_b32 s22, s24, 11
    s_lshl_b32 s23, s5, 17
    s_add_u32 s22, s22, s23
    s_add_u32 s22, s22, s30
    s_add_u32 s23, s22, {L.VB - 8*2048}
    s_add_u32 s22, s22, {L.KB - 8*2048}
    v_add_u32 v{T+10}, {LSCR}, v1
    """)
    for sl in range(8):
        lsk = a.lab('ab_rs')
        a.e(f"s_cmp_lt_u32 s24, {8 - sl}\ns_cbranch_scc1 {lsk}")
        def rl():
            a.e(f"""
            buffer_load_dwordx4 {vr(NL)}, v1, s[8:11], s22 offen sc1
            buffer_load_dwordx4 {vr(NL+4)}, v1, s[8:11], s22 offen offset:1024 sc1
            buffer_load_dwordx4 {vr(NL+8)}, v1, s[8:11], s23 offen sc1
            buffer_load_dwordx4 {vr(NL+12)}, v1, s[8:11], s23 offen offset:1024 sc1
            """)
        poll(a, rl, range(NL, NL + 16), T + 9, name='nbr')
        for q in range(4): a.e(f"ds_write_b128 v{T+10}, {vr(NL+4*q)} offset:{sl*4096+q*1024}")
        a.e(f"s_waitcnt lgkmcnt(0)\n{lsk}:\ns_add_u32 s22, s22, 2048\ns_add_u32 s23, s23, 2048")
    a.e(f"""
    s_branch {lmain}
{lmx}:
    s_cmp_eq_u64 vcc, 0
    s_cbranch_scc1 {lnorm}
    s_bitcmp1_b32 s29, 0
    s_cbranch_scc1 {lnorm}
    """)
    a.c("exact fallback: true (masked) row max, then rerun")
    a.e(f"""
    v_cmp_eq_u32 vcc, 1, v3
    v_mov_b32 v{T}, 0xff800000
    s_or_b32 s29, s29, 1
    v_cndmask_b32 v{QF+6}, v{QF+6}, 0, vcc
    v_cndmask_b32 v{QF+7}, v{QF+7}, 0, vcc
    """)
    for k in range(9):
        a.e(f"""
        ds_read_b128 {vr(KV)}, v{T+7} offset:{(8-k)*4096}
        ds_read_b128 {vr(KV+4)}, v{T+7} offset:{(8-k)*4096+1024}
        s_waitcnt lgkmcnt(0)
        {MF} {vr(S0,16)}, {vr(KV)}, {vr(QF)}, {cmask(k)}
        {MF} {vr(S0,16)}, {vr(KV+4)}, {vr(QF+4)}, {vr(S0,16)}
        s_nop 15
        """)
        for r in range(0, 16, 2): a.e(f"v_max3_f32 v{T}, v{T}, v{S0+r}, v{S0+r+1}")
        if k < 8: a.e(f"s_cmp_eq_u32 s28, {k}\ns_cbranch_scc1 {lsm}")
    a.e(f"""
{lsm}:
    v_mov_b32 v{T+1}, v{T}
    s_nop 1
    v_permlane32_swap_b32 v{T}, v{T+1}
    s_nop 1
    v_max_f32 v{T}, v{T}, v{T+1}
    s_mov_b32 exec_lo, 0
    """)
    c_pieces(a, T, T + 1, QF + 6, QF + 7)
    a.e(f"s_mov_b64 exec, -1\ns_branch {lmain}")
    a.cold.append("\n".join(a.lines)); a.lines = sav
```

```python
from asm import *
import math, struct
QS = (28 ** -0.5) * math.log2(math.e)
def fbits(x): return '0x%08x' % struct.unpack('<I', struct.pack('<f', x))[0]
MF = 'v_mfma_f32_32x32x16_bf16'
def vr(b, n=4): return f"v[{b}:{b+n-1}]"
def ar(b, n=4): return f"a[{b}:{b+n-1}]"
THR = 2.0 ** -80
SPIN = 1 << 16
LWB = 0
LSCR = 84 * 1024
LSM = 148 * 1024
LKV = 152 * 1024
LDS_TOTAL = 153 * 1024
XRES = 240
AWQ, AWO = 0, 112
VQA, VOA = 236, 237
import os
WOA_MODE = os.environ.get('WOA_MODE', 'peel')
WOB_MODE = os.environ.get('WOB_MODE', 'units')

def check(a, regs, t, fail):
    regs = list(regs)
    if len(regs) == 1: src = regs[0]
    else:
        if len(regs) == 2: a.e(f"v_max_u32 v{t}, v{regs[0]}, v{regs[1]}"); rest = []
        else: a.e(f"v_max3_u32 v{t}, v{regs[0]}, v{regs[1]}, v{regs[2]}"); rest = regs[3:]
        while rest:
            if len(rest) == 1: a.e(f"v_max_u32 v{t}, v{t}, v{rest[0]}"); rest = []
            else: a.e(f"v_max3_u32 v{t}, v{t}, v{rest[0]}, v{rest[1]}"); rest = rest[2:]
        src = t
    a.e(f"""
    v_cmp_eq_u32 vcc, -1, v{src}
    s_nop 1
    s_cmp_lg_u64 vcc, 0
    s_cbranch_scc1 {fail}
    """)

SL1 = int(os.environ.get('SL1', '1')); SL2 = int(os.environ.get('SL2', '2'))
def poll(a, loads, regs, t, sleep=SL1, name='poll', extra=None, nextra=0):
    l0, l1, l2 = a.lab(name), a.lab(name + '_r'), a.lab(name + '_ok')
    if extra is None:
        a.e(f"s_mov_b32 s35, 0\n{l0}:")
        loads()
        a.e("s_waitcnt vmcnt(0)")
        check(a, regs, t, l1)
        cold = f"""
{l1}:
        s_add_u32 s35, s35, 1
        s_cmp_ge_u32 s35, {SPIN}
        s_cbranch_scc1 {l2}
        s_sleep {sleep}
        s_branch {l0}
        """
        a.cold.append(cold)
    else:
        a.e("s_mov_b32 s35, 0")
        loads()
        extra()
        a.e(f"s_waitcnt vmcnt({nextra})")
        check(a, regs, t, l1)
        sav = a.lines; a.lines = []
        a.e(f"""
{l1}:
        s_add_u32 s35, s35, 1
        s_cmp_ge_u32 s35, {SPIN}
        s_cbranch_scc1 {l2}
        """)
        loads()
        a.e("s_waitcnt vmcnt(0)")
        l3 = a.lab(name + '_s')
        check(a, regs, t, l3)
        a.e(f"s_branch {l2}\n{l3}:\ns_sleep {sleep}\ns_branch {l1}")
        a.cold.append("\n".join(a.lines)); a.lines = sav
    a.e(f"{l2}:")

def wo_loads(a, base, k0, n):
    a.e(f"s_lshl_b32 s55, s36, 15\ns_add_u32 s55, s55, {base + k0*1024}")
    frag_loads(a, lambda k: ar(AWO + 4 * (k0 + k)), n, 55)

def validated(a, loads_sc1, regs, t, name='val'):
    l1, l2 = a.lab(name + '_r'), a.lab(name + '_ok')
    check(a, regs, t, l1)
    a.e(f"{l2}:")
    sav = a.lines; a.lines = []
    a.e(f"{l1}:\ns_mov_b32 s35, 0")
    l3 = a.lab(name + '_l')
    a.e(f"{l3}:\ns_add_u32 s35, s35, 1\ns_cmp_ge_u32 s35, {SPIN}\ns_cbranch_scc1 {l2}")
    loads_sc1()
    a.e("s_waitcnt vmcnt(0)")
    check(a, regs, t, l3)
    a.e(f"s_branch {l2}")
    a.cold.append("\n".join(a.lines)); a.lines = sav

def clamp(a, regs):
    for r in regs: a.e(f"v_min_u32 v{r}, s54, v{r}")

def frag_loads(a, dst_fn, n, sreg, flags='', tmp=29):
    cur = sreg
    for k in range(n):
        if k and k % 4 == 0:
            a.e(f"s_add_u32 s{tmp}, s{sreg}, {k*1024}"); cur = tmp
        a.e(f"buffer_load_dwordx4 {dst_fn(k)}, v1, s[8:11], s{cur} offen offset:{(k%4)*1024} {flags}")

def row_max16(a, x):
    for m in ('quad_perm:[1,0,3,2]', 'quad_perm:[2,3,0,1]', 'row_half_mirror', 'row_mirror'):
        a.e(f"s_nop 1\nv_max_f32_dpp v{x}, v{x}, v{x} {m} row_mask:0xf bank_mask:0xf")

def stats_finish(a, st0, mu, rs, t):
    for q in range(1, 7):
        a.e(f"v_add_f32 v{st0}, v{st0}, v{st0+2*q}\nv_add_f32 v{st0+1}, v{st0+1}, v{st0+2*q+1}")
    a.e(f"""
    v_mov_b32 v{t}, v{st0}
    v_mov_b32 v{t+1}, v{st0+1}
    s_nop 1
    v_permlane32_swap_b32 v{st0}, v{t}
    v_permlane32_swap_b32 v{st0+1}, v{t+1}
    s_nop 1
    v_add_f32 v{st0}, v{st0}, v{t}
    v_add_f32 v{st0+1}, v{st0+1}, v{t+1}
    v_mul_f32 v{mu}, {fbits(-1.0/448)}, v{st0}
    v_mul_f32 v{t}, {fbits(1.0/448)}, v{st0+1}
    v_fma_f32 v{t}, -v{mu}, v{mu}, v{t}
    v_max_f32 v{t}, 0, v{t}
    v_add_f32 v{t}, {fbits(1e-5)}, v{t}
    v_rsq_f32 v{rs}, v{t}
    s_nop 0
    """)

def stats_poll(a, st0, off, smt, vaddr, t, extra=None, nextra=0):
    a.e(f"""
    v_mul_u32_u24 v{vaddr}, {7*256}, v3
    v_lshl_add_u32 v{vaddr}, v2, 3, v{vaddr}
    s_lshl_b32 s20, s{smt}, 12
    s_add_u32 s20, s20, s30
    s_add_u32 s20, s20, {off}
    """)
    def ld():
        for q in range(7):
            a.e(f"buffer_load_dwordx2 v[{st0+2*q}:{st0+2*q+1}], v{vaddr}, s[8:11], s20 offen offset:{q*256} sc1")
    poll(a, ld, range(st0, st0 + 14), t, name='st', extra=extra, nextra=nextra)

def c_pieces(a, c, t, d0, d1):
    a.e(f"""
    v_and_b32 v{t}, 0xffff0000, v{c}
    v_sub_f32 v{t+1}, v{c}, v{t}
    v_and_b32 v{t+2}, 0xffff0000, v{t+1}
    v_sub_f32 v{t+1}, v{t+1}, v{t+2}
    v_lshrrev_b32 v{t}, 16, v{t}
    v_or_b32 v{t}, v{t}, v{t+2}
    v_lshrrev_b32 v{t+1}, 16, v{t+1}
    v_xor_b32 v{d0}, 0x80008000, v{t}
    v_xor_b32 v{d1}, 0x00008000, v{t+1}
    """)

def pk_fma_s(a, d, s_, x, c, n=16, neg=False):
    assert s_ % 2 == 0 and d % 2 == 0 and x % 2 == 0 and c % 2 == 0
    for r in range(0, n, 2):
        a.e(f"v_pk_fma_f32 v[{d+r}:{d+r+1}], v[{s_}:{s_+1}], v[{x+r}:{x+r+1}], v[{c+r}:{c+r+1}] op_sel_hi:[0,1,1]")
def pk_mul_s(a, d, s_, x, n=16):
    assert s_ % 2 == 0 and d % 2 == 0 and x % 2 == 0
    for r in range(0, n, 2):
        a.e(f"v_pk_mul_f32 v[{d+r}:{d+r+1}], v[{s_}:{s_+1}], v[{x+r}:{x+r+1}] op_sel_hi:[0,1]")
def pk_mul_hi(a, d, s_, x, n=16):
    assert s_ % 2 == 1
    for r in range(0, n, 2):
        a.e(f"v_pk_mul_f32 v[{d+r}:{d+r+1}], v[{s_-1}:{s_}], v[{x+r}:{x+r+1}] op_sel:[1,0] op_sel_hi:[1,1]")

def entry(a, done):
    if os.environ.get('MAP', 'flat') == 'flat':
        MAPCODE = "s_lshr_b32 s4, s2, 4\ns_and_b32 s5, s2, 15"
    elif os.environ.get('MAP') == 'half':
        MAPCODE = '''s_lshr_b32 s4, s2, 1
    s_and_b32 s4, s4, 3
    s_lshl_b32 s4, s4, 2
    s_lshr_b32 s5, s2, 3
    s_and_b32 s5, s5, 3
    s_add_u32 s4, s4, s5
    s_and_b32 s5, s2, 1
    s_lshl_b32 s5, s5, 3
    s_lshr_b32 s6, s2, 5
    s_add_u32 s5, s5, s6'''
    elif os.environ.get('MAP') == 'quad':
        MAPCODE = '''s_lshr_b32 s4, s2, 2
    s_and_b32 s4, s4, 1
    s_lshl_b32 s4, s4, 3
    s_lshr_b32 s5, s2, 3
    s_and_b32 s5, s5, 7
    s_add_u32 s4, s4, s5
    s_and_b32 s5, s2, 3
    s_lshl_b32 s5, s5, 2
    s_lshr_b32 s6, s2, 6
    s_add_u32 s5, s5, s6'''
    else:
        MAPCODE = '''s_and_b32 s4, s2, 7
    s_lshl_b32 s4, s4, 1
    s_lshr_b32 s5, s2, 7
    s_add_u32 s4, s4, s5
    s_lshr_b32 s5, s2, 3
    s_and_b32 s5, s5, 15'''
    a.e(f"""
    s_cmp_ge_u32 s2, 256
    s_cbranch_scc1 {done}
    """)
    a.stamp('entry')
    if os.environ.get('CPF', '1') == '1':
        a.c("warm the L2 with this kernel's own code (read-only): every wave touches one 1 KB piece")
        a.e(f"""
        s_getpc_b64 s[60:61]
M_pc:
        s_lshr_b32 s20, s2, 3
        s_and_b32 s20, s20, 7
        s_lshl_b32 s20, s20, 12
        s_min_u32 s20, s20, M_done-M_pc-4096
        v_lshlrev_b32 v4, 4, v0
        v_add_u32 v4, s20, v4
        """)
        a.e("global_load_dwordx4 v[8:11], v4, s[60:61]")
    a.e(f"""
    s_load_dwordx2 s[16:17], s[0:1], 80
    s_load_dwordx2 s[18:19], s[0:1], 64
    v_lshrrev_b32 v4, 6, v0
    v_and_b32 v1, 63, v0
    v_and_b32 v2, 31, v0
    v_readfirstlane_b32 s3, v4
    v_bfe_u32 v3, v0, 5, 1
    v_lshlrev_b32 v1, 4, v1
    {MAPCODE}
    s_lshl_b32 s6, s4, 2
    s_and_b32 s31, s5, 3
    s_add_u32 s31, s31, s6
    s_add_u32 s6, s6, s3
    s_lshl_b32 s7, s4, 4
    s_add_u32 s7, s7, s5
    s_and_b32 s32, s5, 12
    s_add_u32 s32, s32, s3
    s_min_u32 s36, s32, 13
    s_mov_b32 s30, {L.ARENA0}
    s_mov_b32 s33, 0
    s_mov_b32 s54, 0xfffffffe
    s_waitcnt lgkmcnt(0)
    """)
    a.srd(8, 16, L.TOTAL)
    a.srd(12, 18, S * 896)
    a.e(f"""
    v_lshrrev_b32 v4, 3, v2
    v_and_b32 v5, 7, v2
    v_lshlrev_b32 v5, 4, v5
    v_lshl_add_u32 v5, v3, 9, v5
    v_lshl_add_u32 v{VQA}, v4, 13, v5
    v_lshl_add_u32 v{VOA}, v4, 11, v5
    """)
    a.c("first QKV_A: inputs come from the previous kernel, no polling; resident WQA fragments; residual tile of x0")
    XF, CS, STT, T = 16, 144, 160, 176
    a.e(f"""
    s_mul_i32 s21, s31, {28*1024}
    s_mul_i32 s22, s3, {7*1024}
    s_add_u32 s21, s21, s22
    s_add_u32 s27, s21, {A(0, L.XIN)}
    s_add_u32 s22, s22, {LSCR}
    """)
    a.e("s_mov_b32 m0, s22\ns_nop 0\nbuffer_load_dwordx4 v1, s[8:11], s27 offen offset:0 lds\nbuffer_load_dwordx4 v1, s[8:11], s27 offen offset:1024 lds\nbuffer_load_dwordx4 v1, s[8:11], s27 offen offset:2048 lds\nbuffer_load_dwordx4 v1, s[8:11], s27 offen offset:3072 lds\ns_add_u32 s29, s27, 4096\ns_add_u32 s25, s22, 4096\ns_mov_b32 m0, s25\ns_nop 0\nbuffer_load_dwordx4 v1, s[8:11], s29 offen offset:0 lds\nbuffer_load_dwordx4 v1, s[8:11], s29 offen offset:1024 lds\nbuffer_load_dwordx4 v1, s[8:11], s29 offen offset:2048 lds")
    a.e(f"""
    v_mul_u32_u24 v{T}, {7*256}, v3
    v_lshl_add_u32 v{T}, v2, 3, v{T}
    s_lshl_b32 s20, s31, 12
    s_add_u32 s20, s20, {A(0, L.STIN)}
    """)
    for q in range(7): a.e(f"buffer_load_dwordx2 v[{STT+2*q}:{STT+2*q+1}], v{T}, s[8:11], s20 offen offset:{q*256}")
    a.e(f"""
    s_mul_i32 s20, s32, {28*1024}
    s_add_u32 s20, s20, {L.WQA}
    """)
    frag_loads(a, lambda k: ar(AWQ + 4 * k), 28, 20)
    a.e(f"""
    s_lshl_b32 s20, s32, 7
    s_add_u32 s20, s20, {L.CSA}
    v_lshlrev_b32 v{T+1}, 4, v3
    """)
    for q in range(4): a.e(f"buffer_load_dwordx4 {vr(CS+4*q)}, v{T+1}, s[8:11], s20 offen offset:{q*32}")
    a.e(f"""
    s_mul_i32 s20, s31, {28*1024}
    s_lshl_b32 s23, s36, 11
    s_add_u32 s20, s20, s23
    s_add_u32 s20, s20, {A(0, L.XIN)}
    buffer_load_dwordx4 {vr(XRES)}, v1, s[8:11], s20 offen
    buffer_load_dwordx4 {vr(XRES+4)}, v1, s[8:11], s20 offen offset:1024
    s_waitcnt vmcnt(34)
    s_branch M_qa_entry
    """)

def qkv_a(a):
    XF, ACC, CS, STT, MU, RS, T, PK, QP = 16, 128, 144, 160, 174, 175, 176, 184, 192
    a.c("==== QKV_A : m-tile s31, column group s32")
    a.e("s_barrier")
    a.e(f"""
    s_lshl_b32 s21, s32, 7
    s_add_u32 s21, s21, {L.CSA}
    v_lshlrev_b32 v{T+1}, 4, v3
    """)
    for q in range(4): a.e(f"buffer_load_dwordx4 {vr(CS+4*q)}, v{T+1}, s[8:11], s21 offen offset:{q*32}")
    if WOA_MODE == 'poll': stats_poll(a, STT, L.STIN, 31, T, T + 2, lambda: wo_loads(a, L.WOA, 0, 16), 16)
    else: stats_poll(a, STT, L.STIN, 31, T, T + 2)
    a.stamp('qa_st')
    a.e(f"""
    s_mul_i32 s21, s31, {28*1024}
    s_mul_i32 s22, s3, {7*1024}
    s_add_u32 s21, s21, s22
    s_add_u32 s21, s21, s30
    s_add_u32 s27, s21, {L.XIN}
    s_add_u32 s22, s22, {LSCR}
    """)
    a.e("s_mov_b32 m0, s22\ns_nop 0\nbuffer_load_dwordx4 v1, s[8:11], s27 offen offset:0 lds\nbuffer_load_dwordx4 v1, s[8:11], s27 offen offset:1024 lds\nbuffer_load_dwordx4 v1, s[8:11], s27 offen offset:2048 lds\nbuffer_load_dwordx4 v1, s[8:11], s27 offen offset:3072 lds\ns_add_u32 s29, s27, 4096\ns_add_u32 s25, s22, 4096\ns_mov_b32 m0, s25\ns_nop 0\nbuffer_load_dwordx4 v1, s[8:11], s29 offen offset:0 lds\nbuffer_load_dwordx4 v1, s[8:11], s29 offen offset:1024 lds\nbuffer_load_dwordx4 v1, s[8:11], s29 offen offset:2048 lds")
    a.e("M_qa_entry:")
    stats_finish(a, STT, MU, RS, T)
    lmm, lredo, lok = a.lab('qa_mm'), a.lab('qa_redo'), a.lab('qa_ok')
    a.e(f"""
    v_add_u32 v{T+5}, s22, v1
    v_add_u32 v{T+3}, {LSCR}, v1
    v_mul_f32 v{T}, {fbits(QS)}, v{RS}
    s_mov_b32 s53, 0
    s_cmp_eq_u32 s33, 0
    s_cbranch_scc1 {lmm}_b
    s_waitcnt vmcnt(0)
{lmm}_b:
    s_barrier
{lmm}:
    v_cmp_eq_u32 vcc, 1, v3
    """)
    a.stamp('qa_pan')
    if a.INSTR: a.e("s_waitcnt lgkmcnt(0)")
    for k in range(28): a.e(f"ds_read_b128 {vr(XF+4*k)}, v{T+3} offset:{k*1024}")
    sav = a.lines; a.lines = []
    a.e(f"{lredo}:\ns_cmp_lg_u32 s53, 0\ns_cbranch_scc1 {lok}\ns_mov_b32 s53, 1\ns_barrier")
    poll(a, lambda: frag_loads(a, lambda k: vr(XF + 4 * k), 7, 27, 'sc1'), range(XF, XF + 28), T + 4, name='xar')
    for k in range(7): a.e(f"ds_write_b128 v{T+5}, {vr(XF+4*k)} offset:{k*1024}")
    a.e(f"s_waitcnt lgkmcnt(0)\ns_barrier\ns_branch {lmm}")
    a.cold.append("\n".join(a.lines)); a.lines = sav
    a.e(f"v_cndmask_b32 v{T+1}, v{T}, v{RS}, vcc")
    for k in range(28):
        a.e(f"s_waitcnt vmcnt({33-k}) lgkmcnt({min(15, 27-k)})")
        a.e(f"{MF} {vr(ACC,16)}, {ar(AWQ+4*k)}, {vr(XF+4*k)}, {'0' if k == 0 else vr(ACC,16)}")
    a.e("s_waitcnt vmcnt(0)")
    U = 200
    a.c("K / V quad first (all-to-all critical path): staged through LDS so that whole fragments are stored by one wave")
    a.e(f"""
    s_and_b32 s21, s3, 1
    s_lshl_b32 s21, s21, 9
    s_lshr_b32 s22, s3, 1
    s_lshl_b32 s22, s22, 3
    s_add_u32 s21, s21, s22
    s_add_u32 s21, s21, {LKV}
    v_lshl_add_u32 v{U}, v2, 4, s21
    v_lshrrev_b32 v{U+1}, 4, v2
    v_lshlrev_b32 v{U+1}, 9, v{U+1}
    v_bfe_u32 v{U+2}, v2, 2, 1
    v_lshl_add_u32 v{U+1}, v{U+2}, 8, v{U+1}
    v_bfe_u32 v{U+2}, v2, 3, 1
    v_lshl_add_u32 v{U+1}, v{U+2}, 3, v{U+1}
    v_and_b32 v{U+2}, 3, v2
    v_lshl_add_u32 v{U+1}, v{U+2}, 1, v{U+1}
    s_lshl_b32 s21, s3, 6
    s_add_u32 s21, s21, {LKV}
    v_add_u32 v{U+1}, s21, v{U+1}
    v_cmp_u_f32 s[24:25], v{ACC}, v{ACC}
    s_nop 1
    s_cmp_lg_u64 s[24:25], 0
    s_cbranch_scc1 {lredo}
{lok}:
    """)
    for r in range(12, 16): a.e(f"v_fmac_f32 v{ACC+r}, v{MU}, v{CS+r}")
    for r in range(12, 16): a.e(f"v_mul_f32 v{ACC+r}, v{ACC+r}, v{T+1}")
    for q in (6, 7): a.e(f"v_cvt_pk_bf16_f32 v{PK+q}, v{ACC+2*q}, v{ACC+2*q+1}")
    lv, lb, lq, lnc = a.lab('qa_v'), a.lab('qa_bar'), a.lab('qa_q'), a.lab('qa_nc')
    a.e(f"""
    v_mov_b32 v{U+4}, v{PK+6}
    v_mov_b32 v{U+5}, v{PK+7}
    s_and_b32 s21, s32, 7
    s_cmp_lg_u32 s21, 7
    s_cbranch_scc1 {lnc}
    s_movk_i32 s23, 0x3f80
    s_cmp_eq_u32 s32, 7
    s_cselect_b32 s21, 0x3f803f80, s23
    s_cselect_b32 s22, s23, 0
    v_mov_b32 v{U+4}, s21
    v_mov_b32 v{U+5}, s22
{lnc}:
    s_mov_b32 exec_lo, 0
    s_cmp_ge_u32 s32, 8
    s_cbranch_scc1 {lv}
    ds_write_b64 v{U}, v[{U+4}:{U+5}]
    s_branch {lb}
{lv}:
    ds_write_b16 v{U+1}, v{U+4}
    ds_write_b16_d16_hi v{U+1}, v{U+4} offset:16
    ds_write_b16 v{U+1}, v{U+5} offset:32
    ds_write_b16_d16_hi v{U+1}, v{U+5} offset:48
{lb}:
    s_mov_b64 exec, -1
    v_add_u32 v{U}, {LKV}, v1
    s_waitcnt lgkmcnt(0)
    s_barrier
    s_cmp_lg_u32 s3, 0
    s_cbranch_scc1 {lq}
    ds_read_b128 {vr(U+4)}, v{U}
    s_lshr_b32 s22, s32, 2
    s_lshl_b32 s24, s31, 7
    s_add_u32 s24, s24, s30
    s_add_u32 s24, s24, {L.KNA}
    s_lshl_b32 s21, s22, 2
    s_add_u32 s24, s24, s21
    s_lshl_b32 s20, s31, 11
    s_add_u32 s20, s20, s30
    s_lshl_b32 s21, s22, 10
    s_add_u32 s23, s20, s21
    s_add_u32 s23, s23, {L.KA}
    s_lshl_b32 s21, s22, 8
    s_add_u32 s20, s20, s21
    s_add_u32 s20, s20, {L.VA - 512}
    s_cmp_lt_u32 s22, 2
    s_cselect_b32 s20, s23, s20
    s_cselect_b64 s[26:27], -1, 0
    v_lshrrev_b32 v{U+1}, 4, v0
    v_lshlrev_b32 v{U+1}, 9, v{U+1}
    v_and_b32 v{U+2}, 15, v0
    v_lshl_add_u32 v{U+1}, v{U+2}, 4, v{U+1}
    v_cndmask_b32 v{U+1}, v{U+1}, v1, s[26:27]
    v_mov_b32 v{U+2}, 0
    v_lshlrev_b32 v{U}, 13, v2
    s_waitcnt lgkmcnt(0)
    """)
    clamp(a, range(U + 4, U + 8))
    a.e(f"buffer_store_dwordx4 {vr(U+4)}, v{U+1}, s[8:11], s20 offen sc1")
    for q in range(4): a.e(f"v_dot2_f32_bf16 v{U+2}, v{U+4+q}, v{U+4+q}, v{U+2}")
    a.e(f"""
    s_nop 2
    v_mov_b32 v{U+3}, v{U+2}
    s_nop 1
    v_permlane32_swap_b32 v{U+2}, v{U+3}
    s_nop 1
    v_add_f32 v{U+2}, v{U+2}, v{U+3}
    """)
    row_max16(a, U + 2)
    a.e(f"""
    s_nop 1
    v_readlane_b32 s22, v{U+2}, 0
    v_readlane_b32 s23, v{U+2}, 16
    s_max_u32 s22, s22, s23
    s_min_u32 s22, s22, 0x7fc00000
    s_and_b32 s22, s22, s26
    v_mov_b32 v{U+1}, s22
    s_mov_b64 exec, 0xffff
    buffer_store_dword v{U+1}, v{U}, s[8:11], s24 offen sc1
    s_mov_b64 exec, -1
{lq}:
    """)
    clamp(a, (PK + 6, PK + 7))
    a.c("Q part")
    pk_fma_s(a, ACC, MU, CS, ACC, 12)
    pk_mul_s(a, ACC, T, ACC, 12)
    for q in range(6): a.e(f"v_cvt_pk_bf16_f32 v{PK+q}, v{ACC+2*q}, v{ACC+2*q+1}")
    clamp(a, range(PK, PK + 6))
    a.e(f"""
    s_lshl_b32 s20, s31, 15
    s_lshr_b32 s21, s32, 2
    s_lshl_b32 s21, s21, 11
    s_add_u32 s20, s20, s21
    s_lshl_b32 s21, s3, 7
    s_add_u32 s20, s20, s21
    s_add_u32 s47, s20, {L.QA}
    s_add_u32 s20, s47, s30
    buffer_store_dwordx4 {vr(PK)}, v{VQA}, s[8:11], s20 offen sc1
    v_cndmask_b32 v{T+2}, v{PK+6}, 0, vcc
    v_cndmask_b32 v{T+3}, v{PK+7}, 0, vcc
    v_mov_b32 v{T}, 0
    v_mov_b32 v{T+1}, 0
    """)
    for q in range(6): a.e(f"v_dot2_f32_bf16 v{T+(q&1)}, v{PK+q}, v{PK+q}, v{T+(q&1)}")
    a.e(f"""
    v_dot2_f32_bf16 v{T}, v{T+2}, v{T+2}, v{T}
    v_dot2_f32_bf16 v{T+1}, v{T+3}, v{T+3}, v{T+1}
    v_mov_b32 v{QP}, v{PK+4}
    v_mov_b32 v{QP+1}, v{PK+5}
    v_mov_b32 v{QP+3}, v{T+3}
    s_nop 0
    v_add_f32 v{T}, v{T}, v{T+1}
    v_mov_b32 v{T+1}, v{T}
    s_nop 1
    v_permlane32_swap_b32 v{T}, v{T+1}
    s_nop 1
    v_add_f32 v{T}, v{T}, v{T+1}
    v_min_u32 v{T}, s54, v{T}
    v_cndmask_b32 v{QP+2}, v{PK+6}, v{T}, vcc
    buffer_store_dwordx4 {vr(QP)}, v{VQA}, s[8:11], s20 offen offset:1024 sc1
    """)
    a.stamp('qa_pub')
    if a.INSTR and os.environ.get('ACK'):
        a.e("s_waitcnt vmcnt(0)")
    a.stamp('qa_ack')

def attn_a(a):
    QF, S0, S1, P, O, KV, T, FS = 16, 48, 64, 80, 88, 152, 216, 232
    NB = 4
    SS = [S0, S1]
    a.c("==== attention A : rows 8*s7.., all heads; waves split the keys; q slot s = tile (wave+s)&3, slot 0 is finalised by this wave")
    a.e(f"""
    s_barrier
    s_lshl_b32 s21, s6, 11
    s_add_u32 s21, s21, s30
    s_add_u32 s21, s21, {L.KNA}
    v_and_b32 v{T+8}, 15, v2
    v_lshlrev_b32 v{T+8}, 7, v{T+8}
    s_lshl_b32 s20, s7, 13
    s_add_u32 s20, s20, s30
    s_add_u32 s20, s20, {L.QA}
    s_lshl_b32 s26, s3, 11
    s_add_u32 s27, s26, 2048
    s_and_b32 s27, s27, 0x1fff
    s_add_u32 s28, s26, 4096
    s_and_b32 s28, s28, 0x1fff
    s_add_u32 s53, s26, 6144
    s_and_b32 s53, s53, 0x1fff
    s_lshr_b32 s57, s27, 2
    s_lshr_b32 s58, s28, 2
    s_lshr_b32 s59, s53, 2
    s_add_u32 s26, s26, s20
    s_add_u32 s27, s27, s20
    s_add_u32 s28, s28, s20
    s_add_u32 s53, s53, s20
    s_lshl_b32 s22, s3, 15
    s_add_u32 s22, s22, s30
    s_add_u32 s23, s22, {L.VA}
    s_add_u32 s22, s22, {L.KA}
    """)
    for r in range(64): a.e(f"v_mov_b32 v{O+r}, 0")
    for r in range(8): a.e(f"v_mov_b32 v{P+r}, 0")
    for r in range(4): a.e(f"v_mov_b32 v{KV+16*(NB-1)+12+r}, 0")
    for r in range(4): a.e(f"v_mov_b32 v{FS+r}, -1")
    if WOA_MODE == 'poll':
        lw = a.lab('aa_w0')
        a.e(f"s_cmp_lg_u32 s33, 0\ns_cbranch_scc1 {lw}")
        wo_loads(a, L.WOA, 0, 16)
        a.e(f"{lw}:")
    else:
        a.e(f"s_lshl_b32 s55, s36, 15\ns_add_u32 s55, s55, {L.WOA}")
    a.c("Q' fragments (validated below)")
    def q_load(fl=''):
        a.e(f"""
        buffer_load_dwordx4 {vr(QF)}, v1, s[8:11], s26 offen {fl}
        buffer_load_dwordx4 {vr(QF+4)}, v1, s[8:11], s26 offen offset:1024 {fl}
        buffer_load_dwordx4 {vr(QF+8)}, v1, s[8:11], s27 offen {fl}
        buffer_load_dwordx4 {vr(QF+12)}, v1, s[8:11], s27 offen offset:1024 {fl}
        buffer_load_dwordx4 {vr(QF+16)}, v1, s[8:11], s28 offen {fl}
        buffer_load_dwordx4 {vr(QF+20)}, v1, s[8:11], s28 offen offset:1024 {fl}
        buffer_load_dwordx4 {vr(QF+24)}, v1, s[8:11], s53 offen {fl}
        buffer_load_dwordx4 {vr(QF+28)}, v1, s[8:11], s53 offen offset:1024 {fl}
        """)
    q_load()
    a.c("sentinel fills (issued inside the loop) of the payload regions this workgroup itself writes later: own arena, x / Q' of the next")
    VF = FS + 6
    a.e(f"""
    s_lshl_b32 s41, s5, 17
    s_lshl_b32 s42, s6, 11
    s_add_u32 s41, s41, s42
    s_add_u32 s41, s41, s30
    s_add_u32 s42, s41, {L.VB}
    s_add_u32 s41, s41, {L.KB}
    s_lshl_b32 s43, s6, 15
    s_lshl_b32 s44, s5, 11
    s_add_u32 s43, s43, s44
    s_add_u32 s43, s43, s30
    s_add_u32 s43, s43, {L.OB}
    s_mul_i32 s44, s31, {28*1024}
    s_lshl_b32 s45, s36, 11
    s_add_u32 s44, s44, s45
    s_add_u32 s44, s44, s30
    s_add_u32 s52, s44, {L.ARENA + L.XIN}
    s_add_u32 s44, s44, {L.XM}
    s_lshr_b32 s45, s7, 2
    s_lshl_b32 s45, s45, 15
    s_and_b32 s46, s7, 3
    s_lshl_b32 s46, s46, 7
    s_add_u32 s45, s45, s46
    s_add_u32 s45, s45, s30
    s_add_u32 s45, s45, {L.OA}
    s_lshl_b32 s46, s3, 13
    s_add_u32 s45, s45, s46
    s_mov_b32 s56, s45
    s_add_u32 s46, s47, s30
    s_add_u32 s46, s46, {L.ARENA}
    v_mov_b32 v{VF}, v{VOA}
    v_mov_b32 v{VF+1}, v{VQA}
    s_mov_b32 s37, s22
    s_mov_b32 s38, s23
    s_lshl_b32 s20, s3, 9
    s_add_u32 s20, s20, {LSM+1024}
    v_lshl_add_u32 v{T+9}, v2, 2, s20
    v_lshlrev_b32 v{T+10}, 2, v2
    v_add_u32 v{T+10}, {LSM+1024}, v{T+10}
    v_add_u32 v{T+11}, s58, v{T+10}
    v_add_u32 v{T+12}, s59, v{T+10}
    v_add_u32 v{T+10}, s57, v{T+10}
    """)
    def kn_extra():
        wo_loads(a, L.WOA, 16, 16)
    poll(a, lambda: a.e(f"buffer_load_dwordx4 {vr(T)}, v{T+8}, s[8:11], s21 offen sc1"), range(T, T + 4), T + 4, sleep=SL2, name='kn', extra=(kn_extra if WOA_MODE == 'poll' else None), nextra=16)
    a.stamp('aa_kn')
    def kv_load(b, fl='', adv=True, sk=22, sv=23):
        a.e(f"""
        buffer_load_dwordx4 {vr(KV+16*b)}, v1, s[8:11], s{sk} offen {fl}
        buffer_load_dwordx4 {vr(KV+16*b+4)}, v1, s[8:11], s{sk} offen offset:1024 {fl}
        buffer_load_dwordx4 {vr(KV+16*b+8)}, v1, s[8:11], s{sv} offen {fl}
        buffer_load_dwordx4 {vr(KV+16*b+12)}, v1, s[8:11], s{sv} offen offset:1024 {fl}
        """)
        if adv: a.e(f"s_add_u32 s{sk}, s{sk}, 2048\ns_add_u32 s{sv}, s{sv}, 2048")
    for b in range(3): kv_load(b)
    a.c("per-wave stand-in shift c = 1.02*|q'|*Kmax(own keys): Cauchy-Schwarz upper bound of the row max over this wave's keys")
    a.e(f"""
    v_add_f32 v{T}, v{T}, v{T+1}
    v_add_f32 v{T+2}, v{T+2}, v{T+3}
    v_add_f32 v{T}, v{T}, v{T+2}
    """)
    row_max16(a, T)
    a.e(f"""
    s_nop 1
    v_readfirstlane_b32 s24, v{T}
    """)
    validated(a, lambda: q_load('sc1'), range(QF, QF + 32), T, 'qa')
    a.e("s_mov_b32 exec_lo, 0")
    for t in range(4):
        q2 = QF + 8 * t + 6
        a.e(f"""
        v_mul_f32 v{T}, s24, v{q2}
        v_sqrt_f32 v{T}, v{T}
        s_nop 0
        v_mul_f32 v{T}, {fbits(1.02)}, v{T}
        ds_write_b32 v{T+9+t}, v{T} offset:{t*128}
        """)
        c_pieces(a, T, T + 1, q2, q2 + 1)
    a.e("s_mov_b64 exec, -1")
    a.e("s_waitcnt vmcnt(0)")
    def kv_reload():
        a.e("s_mov_b32 s39, s37\ns_mov_b32 s40, s38")
        for b in range(3): kv_load(b, 'sc1', True, 39, 40)
    validated(a, kv_reload, range(KV, KV + 48), T, 'kv')
    a.e(f"""
    {MF} {vr(S0,16)}, {vr(KV)}, {vr(QF)}, 0
    {MF} {vr(S0,16)}, {vr(KV+4)}, {vr(QF+4)}, {vr(S0,16)}
    s_mov_b32 s29, 0
    s_nop 7
    s_nop 2
    """)
    a.stamp('aa_go')
    a.cstamp(6)
    slots = {0: ('s41', 'v1', 0), 1: ('s41', 'v1', 1024), 2: ('s45', f'v{VF}', 0), 3: ('s45', f'v{VF}', 1024)}
    lp = a.lab('aa_loop')
    def body(peel):
        u = 0
        for b in range(NB):
            for t in range(4):
                sb = SS[u & 1]; sn = SS[(u + 1) & 1]
                kb = KV + 16 * (b if t < 3 else (b + 1) % NB)
                qn = QF + 8 * ((t + 1) % 4)
                vp = KV + 16 * (b if t > 0 else (b - 1) % NB) + 12
                vc = KV + 16 * b + 8
                op = O + 16 * ((t - 1) % 4); oc = O + 16 * t
                def ex(i0):
                    for i in range(i0, i0 + 4): a.e(f"v_exp_f32 v{sb+i}, v{sb+i}")
                def cv(j0):
                    for jx in (j0, j0 + 1): a.e(f"v_cvt_pk_bf16_f32 v{P+jx}, v{sb+2*jx}, v{sb+2*jx+1}")
                def woa(k):
                    if not peel: return
                    if k and k % 4 == 0: a.e("s_add_u32 s55, s55, 4096")
                    a.e(f"buffer_load_dwordx4 {ar(AWO+4*k)}, v1, s[8:11], s55 offen offset:{(k%4)*1024}")
                ex(0)
                if t == 3 and not (peel and b < 2):
                    n = 11 + ((8 - 1) + 8 + 6 if peel else 0)
                    a.e(f"s_waitcnt vmcnt({n})")
                a.e(f"{MF} {vr(sn,16)}, {vr(kb)}, {vr(qn)}, 0")
                cv(0); woa(2 * u); ex(4)
                a.e(f"{MF} {vr(sn,16)}, {vr(kb+4)}, {vr(qn+4)}, {vr(sn,16)}")
                cv(2); ex(8)
                a.e(f"{MF} {vr(op,16)}, {vr(vp)}, {vr(P+4)}, {vr(op,16)}")
                cv(4)
                if t == 0: kv_load((b - 1) % NB)
                elif t == 2:
                    sr, vo, of = slots[b]
                    a.e(f"buffer_store_dwordx4 {vr(FS)}, {vo}, s[8:11], {sr} offen offset:{of} sc1")
                ex(12)
                a.e(f"{MF} {vr(oc,16)}, {vr(vc)}, {vr(P)}, {vr(oc,16)}")
                cv(6); woa(2 * u + 1)
                u += 1
        a.e(f"""
        s_mov_b32 s41, s42
        s_mov_b32 s42, s43
        s_mov_b32 s43, s44
        s_mov_b32 s45, s46
        s_mov_b32 s46, s52
        v_mov_b32 v{VF}, v{VF+1}
        v_mov_b32 v{VF+1}, v1
        s_add_u32 s29, s29, 1
        """)
    if WOA_MODE == 'peel':
        a.c("first four key tiles: also prefetch the WOA fragments (consumed after attention)")
        body(True)
    a.e(f".p2align 6\n{lp}:")
    body(False)
    a.e(f"""
    s_cmp_lt_u32 s29, 4
    s_cbranch_scc1 {lp}
    s_mul_i32 s57, s57, 24
    s_mul_i32 s58, s58, 24
    {MF} {vr(O+48,16)}, {vr(KV+16*(NB-1)+12)}, {vr(P+4)}, {vr(O+48,16)}
    s_mul_i32 s59, s59, 24
    v_add_u32 v{T+3}, {LSCR}, v1
    v_add_u32 v{T}, s57, v{T+3}
    v_add_u32 v{T+1}, s58, v{T+3}
    v_add_u32 v{T+2}, s59, v{T+3}
    s_mul_i32 s20, s3, 12288
    v_add_u32 v{T+3}, s20, v{T+3}
    s_lshl_b32 s21, s7, 7
    s_lshl_b32 s22, s3, 2
    s_add_u32 s21, s21, s22
    s_add_u32 s21, s21, s30
    s_add_u32 s21, s21, {L.HOA}
    s_mov_b32 s20, {fbits(THR)}
    """)
    a.stamp('aa_end')
    a.cstamp(7)
    a.c("send the three foreign q tiles to their owners through LDS; rescale all partials to a common shift")
    for t in range(1, 4):
        for q in range(4): a.e(f"ds_write_b128 v{T+t-1}, {vr(O+16*t+4*q)} offset:{(t-1)*4096+q*1024}")
    a.e("s_waitcnt vmcnt(0) lgkmcnt(0)\ns_barrier")
    a.stamp('aa_bar')
    if a.INSTR: a.e("s_waitcnt lgkmcnt(0)")
    R = KV
    F = S0
    for w in range(4): a.e(f"ds_read_b32 v{F+w}, v{T+9} offset:{w*128}")
    for w in range(3):
        for q in range(4): a.e(f"ds_read_b128 {vr(R+16*w+4*q)}, v{T+3} offset:{w*4096+q*1024}")
    a.e(f"""
    v_mov_b32 v{T+5}, 0
    s_waitcnt lgkmcnt(12)
    v_max3_f32 v{T+6}, v{F}, v{F+1}, v{F+2}
    v_max_f32 v{T+6}, v{T+6}, v{F+3}
    """)
    for w in range(4): a.e(f"v_sub_f32 v{F+w}, v{F+w}, v{T+6}")
    for w in range(4): a.e(f"v_exp_f32 v{F+w}, v{F+w}")
    for r in range(16): a.e(f"v_mul_f32 v{O+r}, v{F}, v{O+r}")
    for w in range(3):
        a.e(f"s_waitcnt lgkmcnt({8-4*w})")
        for r in range(16): a.e(f"v_fmac_f32 v{O+r}, v{F+1+w}, v{R+16*w+r}")
    lnorm, lslow = a.lab('aa_norm'), a.lab('aa_slow')
    a.e(f"""
    v_mov_b32 v{T+2}, v{O+12}
    v_mov_b32 v{T+3}, v{O+12}
    v_pk_add_f32 v[{T+6}:{T+7}], v[{O}:{O+1}], v[{O+2}:{O+3}]
    v_pk_add_f32 v[{T+10}:{T+11}], v[{O+4}:{O+5}], v[{O+6}:{O+7}]
    v_permlane32_swap_b32 v{T+2}, v{T+3}
    v_pk_add_f32 v[{T+6}:{T+7}], v[{T+6}:{T+7}], v[{O+8}:{O+9}]
    v_pk_add_f32 v[{T+10}:{T+11}], v[{T+10}:{T+11}], v[{O+10}:{O+11}]
    v_pk_add_f32 v[{T+6}:{T+7}], v[{T+6}:{T+7}], v[{O+12}:{O+13}]
    v_pk_add_f32 v[{T+10}:{T+11}], v[{T+10}:{T+11}], v[{O+14}:{O+15}]
    v_pk_add_f32 v[{T+6}:{T+7}], v[{T+6}:{T+7}], v[{T+10}:{T+11}]
    v_cmp_gt_f32 vcc, s20, v{T+3}
    v_cmp_u_f32 s[24:25], v{T+6}, v{T+7}
    v_rcp_f32 v{T+2}, v{T+3}
    s_or_b64 vcc, vcc, s[24:25]
    s_cmp_lg_u64 vcc, 0
    s_cbranch_scc1 {lslow}
{lnorm}:
    """)
    for r in range(16): a.e(f"v_mul_f32 v{O+r}, v{T+2}, v{O+r}")
    for q in range(8): a.e(f"v_cvt_pk_bf16_f32 v{P+q}, v{O+2*q}, v{O+2*q+1}")
    clamp(a, range(P, P + 8))
    a.e(f"""
    buffer_store_dwordx4 {vr(P)}, v{VOA}, s[8:11], s56 offen sc1
    buffer_store_dwordx4 {vr(P+4)}, v{VOA}, s[8:11], s56 offen offset:1024 sc1
    s_mov_b64 exec, 1
    buffer_store_dword v{T+5}, v{T+5}, s[8:11], s21 offen sc1
    s_mov_b64 exec, -1
    """)
    a.stamp('aa_pub')
    sav = a.lines; a.lines = []
    l1, l2, l1r, l2r = a.lab('aa_s1'), a.lab('aa_s2'), a.lab('aa_s1r'), a.lab('aa_s2r')
    a.e(f"{lslow}:")
    a.c("exact fallback: this wave redoes its 32 queries over all keys with the true row max (validated coherent loads)")
    a.e(f"""
    buffer_load_dwordx4 {vr(QF)}, v1, s[8:11], s26 offen sc1
    buffer_load_dwordx4 {vr(QF+4)}, v1, s[8:11], s26 offen offset:1024 sc1
    v_cmp_eq_u32 vcc, 1, v3
    v_mov_b32 v{T}, 0xff800000
    s_add_u32 s22, s30, {L.KA}
    s_mov_b32 s29, 0
    s_mov_b32 s35, 0
    s_waitcnt vmcnt(0)
    v_cndmask_b32 v{QF+6}, v{QF+6}, 0, vcc
    v_cndmask_b32 v{QF+7}, v{QF+7}, 0, vcc
{l1}:
    buffer_load_dwordx4 {vr(KV)}, v1, s[8:11], s22 offen sc1
    buffer_load_dwordx4 {vr(KV+4)}, v1, s[8:11], s22 offen offset:1024 sc1
    s_waitcnt vmcnt(0)
    s_add_u32 s35, s35, 1
    s_cmp_ge_u32 s35, {SPIN}
    s_cbranch_scc1 {l1r}
    """)
    check(a, range(KV, KV + 8), T + 1, l1)
    a.e(f"""
{l1r}:
    s_add_u32 s22, s22, 2048
    {MF} {vr(S0,16)}, {vr(KV)}, {vr(QF)}, 0
    {MF} {vr(S0,16)}, {vr(KV+4)}, {vr(QF+4)}, {vr(S0,16)}
    s_nop 15
    """)
    for r in range(0, 16, 2): a.e(f"v_max3_f32 v{T}, v{T}, v{S0+r}, v{S0+r+1}")
    a.e(f"""
    s_add_u32 s29, s29, 1
    s_cmp_lt_u32 s29, 64
    s_cbranch_scc1 {l1}
    v_mov_b32 v{T+1}, v{T}
    s_nop 1
    v_permlane32_swap_b32 v{T}, v{T+1}
    s_nop 1
    v_max_f32 v{T}, v{T}, v{T+1}
    s_mov_b32 exec_lo, 0
    """)
    c_pieces(a, T, T + 1, QF + 6, QF + 7)
    a.e(f"""
    s_mov_b64 exec, -1
    s_add_u32 s22, s30, {L.KA}
    s_add_u32 s23, s30, {L.VA}
    s_mov_b32 s29, 0
    """)
    for r in range(16): a.e(f"v_mov_b32 v{O+r}, 0")
    a.e(f"{l2}:")
    kv_load(0, 'sc1', False)
    a.e(f"""
    s_waitcnt vmcnt(0)
    s_add_u32 s35, s35, 1
    s_cmp_ge_u32 s35, {SPIN}
    s_cbranch_scc1 {l2r}
    """)
    check(a, range(KV, KV + 16), T + 1, l2)
    a.e(f"""
{l2r}:
    s_add_u32 s22, s22, 2048
    s_add_u32 s23, s23, 2048
    {MF} {vr(S0,16)}, {vr(KV)}, {vr(QF)}, 0
    {MF} {vr(S0,16)}, {vr(KV+4)}, {vr(QF+4)}, {vr(S0,16)}
    s_nop 15
    """)
    for r in range(16): a.e(f"v_exp_f32 v{S0+r}, v{S0+r}")
    a.e("s_nop 0")
    for q in range(8): a.e(f"v_cvt_pk_bf16_f32 v{P+q}, v{S0+2*q}, v{S0+2*q+1}")
    a.e(f"""
    s_nop 1
    {MF} {vr(O,16)}, {vr(KV+8)}, {vr(P)}, {vr(O,16)}
    {MF} {vr(O,16)}, {vr(KV+12)}, {vr(P+4)}, {vr(O,16)}
    s_add_u32 s29, s29, 1
    s_cmp_lt_u32 s29, 64
    s_cbranch_scc1 {l2}
    s_nop 15
    v_mov_b32 v{T+2}, v{O+12}
    v_mov_b32 v{T+3}, v{O+12}
    s_nop 1
    v_permlane32_swap_b32 v{T+2}, v{T+3}
    s_nop 1
    v_rcp_f32 v{T+2}, v{T+3}
    s_nop 0
    s_branch {lnorm}
    """)
    a.cold.append("\n".join(a.lines)); a.lines = sav

def out_proj(a, which, sbase):
    OF, ACC, PK, T = 16, 144, XRES, 176
    isA = which == 'A'
    a.c(f"==== out projection {which} : m-tile s31, column group s32")
    a.e("s_barrier")
    if isA:
        a.e(f"""
        s_lshl_b32 s21, s31, 9
        s_add_u32 s21, s21, s30
        s_add_u32 s21, s21, {L.HOA}
        v_lshrrev_b32 v{T+1}, 2, v2
        v_and_b32 v{T+1}, 3, v{T+1}
        v_lshlrev_b32 v{T+1}, 7, v{T+1}
        v_and_b32 v{T+2}, 3, v2
        v_lshl_add_u32 v{T+1}, v{T+2}, 2, v{T+1}
        """)
    else:
        a.e(f"""
        s_lshl_b32 s21, s31, 11
        s_add_u32 s21, s21, s30
        s_add_u32 s21, s21, {L.HOB}
        v_and_b32 v{T+1}, 15, v2
        v_lshlrev_b32 v{T+1}, 7, v{T+1}
        """)
    a.e(f"""
    s_lshl_b32 s20, s31, 15
    s_lshl_b32 s22, s3, 13
    s_add_u32 s20, s20, s22
    s_add_u32 s20, s20, s30
    s_add_u32 s20, s20, {L.OA if isA else L.OB}
    s_mov_b32 s27, s20
    s_add_u32 s22, s22, {LSCR}
    v_add_u32 v{T}, s22, v1
    v_add_u32 v{T+3}, {LSCR}, v1
    """)
    if isA:
        a.c("first pass only: QKV_B weights of this head into LDS (resident afterwards)")
        lnw = a.lab('aa_nowb')
        a.e(f"""
        s_cmp_lg_u32 s33, 0
        s_cbranch_scc1 {lnw}
        s_mul_i32 s44, s5, {84*1024}
        s_mul_i32 s45, s3, {21*1024}
        s_add_u32 s44, s44, s45
        s_add_u32 s44, s44, {L.WB}
        """)
        for k in range(21):
            if k % 4 == 0:
                if k: a.e("s_add_u32 s44, s44, 4096\ns_add_u32 s45, s45, 4096")
                a.e("s_mov_b32 m0, s45\ns_nop 0")
            a.e(f"buffer_load_dwordx4 v1, s[8:11], s44 offen offset:{(k%4)*1024} lds")
        a.e(f"{lnw}:")

    poll(a, lambda: a.e(f"buffer_load_dword v{T+2}, v{T+1}, s[8:11], s21 offen sc1"), [T + 2], T + 4, name='ho')
    a.stamp(sbase + '_hint')
    a.e("s_mov_b32 m0, s22\ns_nop 0\nbuffer_load_dwordx4 v1, s[8:11], s20 offen offset:0 lds\nbuffer_load_dwordx4 v1, s[8:11], s20 offen offset:1024 lds\nbuffer_load_dwordx4 v1, s[8:11], s20 offen offset:2048 lds\nbuffer_load_dwordx4 v1, s[8:11], s20 offen offset:3072 lds\ns_add_u32 s29, s20, 4096\ns_add_u32 s25, s22, 4096\ns_mov_b32 m0, s25\ns_nop 0\nbuffer_load_dwordx4 v1, s[8:11], s29 offen offset:0 lds\nbuffer_load_dwordx4 v1, s[8:11], s29 offen offset:1024 lds\nbuffer_load_dwordx4 v1, s[8:11], s29 offen offset:2048 lds\nbuffer_load_dwordx4 v1, s[8:11], s29 offen offset:3072 lds")
    XU = 160
    for q in range(8): a.e(f"v_lshlrev_b32 v{XU+2*q}, 16, v{XRES+q}\nv_and_b32 v{XU+2*q+1}, 0xffff0000, v{XRES+q}")
    lskip, lmm, lredo, lok = a.lab('op_skip'), a.lab('op_mm'), a.lab('op_redo'), a.lab('op_ok')
    a.e(f"""
    s_mov_b32 s53, 0
    s_waitcnt vmcnt(0)
    s_barrier
{lmm}:
    """)
    a.stamp(sbase + '_pan')
    if a.INSTR: a.e("s_waitcnt lgkmcnt(0)")
    for k in range(32): a.e(f"ds_read_b128 {vr(OF+4*k)}, v{T+3} offset:{k*1024}")
    for k in range(32):
        a.e(f"s_waitcnt lgkmcnt({min(15, 31-k)})")
        a.e(f"{MF} {vr(ACC,16)}, {ar(AWO+4*k)}, {vr(OF+4*k)}, {vr(XU,16) if k == 0 else vr(ACC,16)}")
    sav = a.lines; a.lines = []
    a.c("a word that had not arrived (sentinel = NaN pair) poisons its row in every wave alike: reload coherently, validate, redo once")
    a.e(f"{lredo}:\ns_cmp_lg_u32 s53, 0\ns_cbranch_scc1 {lok}\ns_mov_b32 s53, 1\ns_barrier")
    poll(a, lambda: frag_loads(a, lambda k: vr(OF + 4 * k), 8, 27, 'sc1'), range(OF, OF + 32), T + 4, name='ofr')
    for k in range(8): a.e(f"ds_write_b128 v{T}, {vr(OF+4*k)} offset:{k*1024}")
    a.e(f"s_waitcnt lgkmcnt(0)\ns_barrier\ns_branch {lmm}")
    a.cold.append("\n".join(a.lines)); a.lines = sav
    a.stamp(sbase + '_mm')
    nxt = 0 if isA else L.ARENA
    xo, so = (L.XM, L.STM) if isA else (L.XIN, L.STIN)
    a.e(f"""
    s_mul_i32 s20, s31, {28*1024}
    s_lshl_b32 s21, s32, 11
    s_add_u32 s20, s20, s21
    s_add_u32 s20, s20, s30
    s_add_u32 s20, s20, {nxt + xo}
    s_lshl_b32 s21, s31, 12
    s_lshl_b32 s22, s32, 8
    s_add_u32 s21, s21, s22
    s_add_u32 s21, s21, s30
    s_add_u32 s21, s21, {nxt + so}
    s_mov_b32 s22, 0x3f803f80
    v_lshlrev_b32 v{T+6}, 3, v2
    s_nop 1
    v_cmp_u_f32 vcc, v{ACC}, v{ACC}
    s_nop 1
    s_cmp_lg_u64 vcc, 0
    s_cbranch_scc1 {lredo}
{lok}:
    s_cmp_ge_u32 s32, 14
    s_cbranch_scc1 {lskip}
    v_mov_b32 v{T}, 0
    v_mov_b32 v{T+1}, 0
    """)
    for q in range(8): a.e(f"v_cvt_pk_bf16_f32 v{PK+q}, v{ACC+2*q}, v{ACC+2*q+1}")
    lfin = a.lab('op_fin')
    if not isA:
        a.e(f"s_cmp_lg_u32 s33, 0\ns_cbranch_scc1 {lfin}")
    clamp(a, range(PK, PK + 8))
    a.e(f"""
    buffer_store_dwordx4 {vr(PK)}, v1, s[8:11], s20 offen sc1
    buffer_store_dwordx4 {vr(PK+4)}, v1, s[8:11], s20 offen offset:1024 sc1
    """)
    for q in range(8):
        a.e(f"v_dot2_f32_bf16 v{T}, v{PK+q}, s22, v{T}\nv_dot2_f32_bf16 v{T+1}, v{PK+q}, v{PK+q}, v{T+1}")
    a.e(f"""
    s_nop 3
    v_mov_b32 v{T+2}, v{T}
    v_mov_b32 v{T+3}, v{T+1}
    s_nop 1
    v_permlane32_swap_b32 v{T}, v{T+2}
    v_permlane32_swap_b32 v{T+1}, v{T+3}
    s_nop 1
    v_add_f32 v{T}, v{T}, v{T+2}
    v_add_f32 v{T+1}, v{T+1}, v{T+3}
    v_min_u32 v{T}, s54, v{T}
    v_min_u32 v{T+1}, s54, v{T+1}
    s_mov_b32 exec_hi, 0
    buffer_store_dwordx2 v[{T}:{T+1}], v{T+6}, s[8:11], s21 offen sc1
    s_mov_b64 exec, -1
    """)
    if not isA:
        sav = a.lines; a.lines = []
        a.e(f"""
{lfin}:
        s_lshl_b32 s21, s31, 5
        v_add_u32 v{T}, s21, v2
        v_mul_u32_u24 v{T}, 896, v{T}
        v_lshl_add_u32 v{T}, v3, 3, v{T}
        s_lshl_b32 s21, s32, 6
        """)
        for q in range(4): a.e(f"buffer_store_dwordx2 v[{PK+2*q}:{PK+2*q+1}], v{T}, s[12:15], s21 offen offset:{16*q}")
        a.e(f"s_branch {lskip}")
        a.cold.append("\n".join(a.lines)); a.lines = sav
    a.e(f"{lskip}:")
    a.stamp(sbase + '_pub')

QB = 224
def qkv_b(a):
    XF, AQ, AK, AV, WR, CQ, CK, STT, MU, RS, T = 16, 128, 144, 160, 176, 192, 208, 4, 232, 233, 248
    NWR = 4
    STT = 176 - 0
    a.c("==== QKV_B : head s5, m-tile s6")
    a.e("s_barrier")
    a.e(f"""
    s_mul_i32 s21, s5, 384
    s_add_u32 s21, s21, {L.CSB}
    v_lshlrev_b32 v{T+1}, 4, v3
    v_lshlrev_b32 v{T+2}, 2, v2
    """)
    for q in range(4): a.e(f"buffer_load_dwordx4 {vr(CQ+4*q)}, v{T+1}, s[8:11], s21 offen offset:{q*32}")
    for q in range(4): a.e(f"buffer_load_dwordx4 {vr(CK+4*q)}, v{T+1}, s[8:11], s21 offen offset:{128+q*32}")
    a.e(f"buffer_load_dword v{T+3}, v{T+2}, s[8:11], s21 offen offset:256")
    ST2 = 128
    if WOB_MODE == 'poll': stats_poll(a, ST2, L.STM, 6, T, T + 1, lambda: wo_loads(a, L.WOB, 0, 16), 16)
    else: stats_poll(a, ST2, L.STM, 6, T, T + 1)
    a.stamp('qb_st')
    a.e(f"""
    s_mul_i32 s21, s6, {28*1024}
    s_add_u32 s21, s21, s30
    s_add_u32 s21, s21, {L.XM}
    s_mov_b32 s35, 0
    """)
    frag_loads(a, lambda k: vr(XF + 4 * k), 28, 21)
    stats_finish(a, ST2, MU, RS, T + 5)
    a.e(f"""
    v_mul_f32 v{T+5}, v{MU}, v{RS}
    s_lshl_b32 s20, s3, 8
    s_add_u32 s20, s20, {LSM}
    v_lshl_add_u32 v{T+6}, v2, 2, s20
    v_lshl_add_u32 v{T+7}, v3, 4, s20
    ds_write_b32 v{T+6}, v{RS}
    ds_write_b32 v{T+6}, v{T+5} offset:128
    v_add_u32 v{T+4}, {56*1024}, v1
    """)
    lmm, lredo, lok = a.lab('qb_mm'), a.lab('qb_redo'), a.lab('qb_ok')
    a.e(f"{lmm}:")
    def chain(seq, first):
        def rd(idx):
            k, p = seq[idx]; o = (p * 28 + k) * 1024
            if o >= 56 * 1024: a.e(f"ds_read_b128 {vr(WR+4*(idx%NWR))}, v{T+4} offset:{o-56*1024}")
            else: a.e(f"ds_read_b128 {vr(WR+4*(idx%NWR))}, v1 offset:{o}")
        for idx in range(NWR - 1): rd(idx)
        for idx, (k, p) in enumerate(seq):
            if idx + NWR - 1 < len(seq): rd(idx + NWR - 1)
            rem = min(NWR - 1, len(seq) - 1 - idx)
            if first and p == 1: a.e(f"s_waitcnt vmcnt({27-k}) lgkmcnt({rem})")
            else: a.e(f"s_waitcnt lgkmcnt({rem})")
            acc = [AQ, AK, AV][p]; w = vr(WR + 4 * (idx % NWR)); x = vr(XF + 4 * k)
            cc = '0' if k == 0 else vr(acc, 16)
            if p < 2: a.e(f"{MF} {vr(acc,16)}, {w}, {x}, {cc}")
            else: a.e(f"{MF} {vr(acc,16)}, {x}, {w}, {cc}")
    a.c("K and V chains first (published to the neighbours); WOB fragments are prefetched in between")
    chain([(k, p) for k in range(28) for p in (1, 2)], True)
    a.stamp('qb_mm')
    if a.INSTR: a.e("s_waitcnt lgkmcnt(0)")
    a.e('s_nop 3')
    RSr, MRr, PKK, PV = AQ, WR, AK, AV
    for q in range(4):
        a.e(f"ds_read_b128 {vr(RSr+4*q)}, v{T+7} offset:{q*32}\nds_read_b128 {vr(MRr+4*q)}, v{T+7} offset:{128+q*32}")
    a.c("a not-yet-arrived x word (sentinel = bf16 NaN pair) poisons the row: any NaN -> re-load coherently, validate, redo")
    a.e(f"""
    v_cmp_u_f32 vcc, v{AK}, v{AK}
    v_mul_f32 v{T+5}, {fbits(QS)}, v{RS}
    v_cmp_eq_u32 s[24:25], 28, v2
    s_cmp_lg_u64 vcc, 0
    s_cbranch_scc1 {lredo}
{lok}:
    """)
    sav = a.lines; a.lines = []
    lr2 = a.lab('qb_r2')
    a.e(f"""
{lredo}:
    s_cmp_lg_u32 s35, 0
    s_cbranch_scc1 {lok}
    s_waitcnt lgkmcnt(0)
{lr2}:
    s_add_u32 s35, s35, 1
    s_cmp_ge_u32 s35, {SPIN}
    s_cbranch_scc1 {lmm}
    """)
    frag_loads(a, lambda k: vr(XF + 4 * k), 28, 21, 'sc1')
    a.e("s_waitcnt vmcnt(0)")
    check(a, range(XF, XF + 112), T, lr2)
    a.e(f"s_branch {lmm}")
    a.cold.append("\n".join(a.lines)); a.lines = sav
    pk_fma_s(a, AK, MU, CK, AK)
    pk_mul_hi(a, AK, RS, AK)
    for q in range(8): a.e(f"v_cvt_pk_bf16_f32 v{PKK+q}, v{AK+2*q}, v{AK+2*q+1}")
    a.e(f"""
    v_cmp_eq_u32 vcc, 1, v3
    v_mov_b32 v{T+1}, 0
    v_mov_b32 v{T}, 0x3f803f80
    v_mov_b32 v{T+6}, 0x00003f80
    """)
    for q in range(8): a.e(f"v_dot2_f32_bf16 v{T+1}, v{PKK+q}, v{PKK+q}, v{T+1}")
    a.e(f"""
    s_lshl_b32 s20, s5, 17
    s_lshl_b32 s21, s6, 11
    s_add_u32 s20, s20, s21
    s_add_u32 s20, s20, s30
    s_add_u32 s21, s20, {L.KB}
    s_add_u32 s22, s20, {L.VB}
    s_lshl_b32 s20, s3, 12
    s_add_u32 s20, s20, {LSCR + 8*4096}
    v_cndmask_b32 v{PKK+6}, v{PKK+6}, v{T}, vcc
    v_cndmask_b32 v{PKK+7}, v{PKK+7}, v{T+6}, vcc
    v_add_u32 v{T+6}, s20, v1
    v_mov_b32 v{T+2}, v{T+1}
    """)
    clamp(a, range(PKK, PKK + 8))
    a.e(f"""
    buffer_store_dwordx4 {vr(PKK)}, v1, s[8:11], s21 offen sc1
    buffer_store_dwordx4 {vr(PKK+4)}, v1, s[8:11], s21 offen offset:1024 sc1
    v_permlane32_swap_b32 v{T+1}, v{T+2}
    s_waitcnt lgkmcnt(0)
    """)
    for r in range(0, 16, 2): a.e(f"v_pk_mul_f32 v[{AV+r}:{AV+r+1}], v[{AV+r}:{AV+r+1}], v[{RSr+r}:{RSr+r+1}]")
    a.e(f"v_add_f32 v{T+1}, v{T+1}, v{T+2}")
    for r in range(0, 16, 2): a.e(f"v_pk_fma_f32 v[{AV+r}:{AV+r+1}], v[{T+2}:{T+3}], v[{MRr+r}:{MRr+r+1}], v[{AV+r}:{AV+r+1}] op_sel:[1,0,0] op_sel_hi:[1,1,1]")
    a.e(f"v_max_f32_dpp v{T+1}, v{T+1}, v{T+1} quad_perm:[1,0,3,2] row_mask:0xf bank_mask:0xf")
    for q in range(8): a.e(f"v_cvt_pk_bf16_f32 v{PV+q}, v{AV+2*q}, v{AV+2*q+1}")
    a.e(f"v_max_f32_dpp v{T+1}, v{T+1}, v{T+1} quad_perm:[2,3,0,1] row_mask:0xf bank_mask:0xf")
    for q in range(8): a.e(f"v_cndmask_b32 v{PV+q}, v{PV+q}, v{T}, s[24:25]")
    a.e(f"v_max_f32_dpp v{T+1}, v{T+1}, v{T+1} row_half_mirror row_mask:0xf bank_mask:0xf")
    clamp(a, range(PV, PV + 8))
    a.e(f"""
    v_max_f32_dpp v{T+1}, v{T+1}, v{T+1} row_mirror row_mask:0xf bank_mask:0xf
    buffer_store_dwordx4 {vr(PV)}, v1, s[8:11], s22 offen sc1
    buffer_store_dwordx4 {vr(PV+4)}, v1, s[8:11], s22 offen offset:1024 sc1
    s_lshl_b32 s20, s5, 4
    s_add_u32 s20, s20, s4
    s_lshl_b32 s20, s20, 7
    s_lshl_b32 s21, s3, 2
    s_add_u32 s20, s20, s21
    s_add_u32 s20, s20, s30
    s_add_u32 s20, s20, {L.KNB}
    v_readlane_b32 s24, v{T+1}, 0
    v_readlane_b32 s25, v{T+1}, 16
    s_add_u32 s21, s21, {LSM + 3072}
    v_mov_b32 v{T+2}, 0
    v_mov_b32 v{T+3}, s21
    s_max_u32 s24, s24, s25
    s_min_u32 s24, s24, 0x7fc00000
    v_mov_b32 v{T}, s24
    s_mov_b64 exec, 1
    buffer_store_dword v{T}, v{T+2}, s[8:11], s20 offen sc1
    ds_write_b32 v{T+3}, v{T}
    s_mov_b64 exec, -1
    ds_write_b128 v{T+6}, {vr(PKK)}
    ds_write_b128 v{T+6}, {vr(PKK+4)} offset:1024
    ds_write_b128 v{T+6}, {vr(PV)} offset:2048
    ds_write_b128 v{T+6}, {vr(PV+4)} offset:3072
    """)
    a.stamp('qb_pub')
    if a.INSTR: a.e("s_waitcnt lgkmcnt(0)")
    a.c("Q chain while the K/V hand-off is in flight; half way, probe the neighbours and start their K/V tiles towards LDS")
    chain([(k, 0) for k in range(14)], False)
    attn_b_fetch(a)
    chain([(k, 0) for k in range(14, 28)], False)
    a.e(f"v_mov_b32 v{T}, 0\ns_nop 7\ns_nop 2")
    pk_fma_s(a, AQ, MU, CQ, AQ)
    pk_mul_hi(a, AQ, T + 5, AQ)
    for q in range(8): a.e(f"v_cvt_pk_bf16_f32 v{QB+q}, v{AQ+2*q}, v{AQ+2*q+1}")
    for q in range(8): a.e(f"v_dot2_f32_bf16 v{T}, v{QB+q}, v{QB+q}, v{T}")
    a.e(f"""
    s_nop 3
    v_mov_b32 v{RS}, v{T}
    s_nop 1
    v_permlane32_swap_b32 v{T}, v{RS}
    s_nop 1
    v_add_f32 v{MU}, v{T}, v{RS}
    """)

def attn_b_fetch(a):
    T = 4
    a.e(f"""
    s_lshl_b32 s20, s5, 4
    s_add_u32 s20, s20, s4
    s_lshl_b32 s20, s20, 7
    s_add_u32 s20, s20, s30
    s_add_u32 s21, s20, {L.KNB - 256}
    v_lshrrev_b32 v{T}, 2, v2
    v_and_b32 v{T}, 1, v{T}
    v_and_b32 v{T+1}, 3, v2
    v_lshlrev_b32 v{T+2}, 7, v{T}
    v_lshl_add_u32 v{T+2}, v{T+1}, 2, v{T+2}
    v_add_u32 v{T+3}, s4, v{T}
    v_cmp_gt_u32 s[26:27], 2, v{T+3}
    v_mov_b32 v{T+4}, 256
    v_lshl_add_u32 v{T+4}, v{T+1}, 2, v{T+4}
    v_cndmask_b32 v{T+2}, v{T+2}, v{T+4}, s[26:27]
    s_lshl_b32 s24, s4, 2
    s_lshl_b32 s23, s3, 1
    s_add_u32 s24, s24, s23
    s_lshl_b32 s22, s24, 11
    s_lshl_b32 s23, s5, 17
    s_add_u32 s22, s22, s23
    s_add_u32 s22, s22, s30
    s_add_u32 s23, s22, {L.VB - 8*2048}
    s_add_u32 s22, s22, {L.KB - 8*2048}
    s_lshl_b32 s20, s3, 13
    s_add_u32 s20, s20, {LSCR}
    s_add_u32 s25, s20, 2048
    s_add_u32 s26, s20, 4096
    """)
    a.stamp('ab_pre')
    poll(a, lambda: a.e(f"buffer_load_dword v{T+8}, v{T+2}, s[8:11], s21 offen sc1"), [T + 8], T + 9, name='kb')
    a.stamp('ab_kn')
    if a.INSTR: a.e("s_waitcnt lgkmcnt(0)")
    lnn = a.lab('ab_nn')
    a.c("this wave fetches slots 2w,2w+1 (nothing if they lie before the first row)")
    a.e(f"""
    s_cmp_lt_u32 s24, 8
    s_cbranch_scc1 {lnn}
    s_mov_b32 m0, s20
    s_nop 0
    buffer_load_dwordx4 v1, s[8:11], s22 offen lds
    buffer_load_dwordx4 v1, s[8:11], s22 offen offset:1024 lds
    s_mov_b32 m0, s25
    s_nop 0
    buffer_load_dwordx4 v1, s[8:11], s22 offen offset:2048 lds
    buffer_load_dwordx4 v1, s[8:11], s22 offen offset:3072 lds
    buffer_load_dwordx4 v1, s[8:11], s23 offen lds
    buffer_load_dwordx4 v1, s[8:11], s23 offen offset:1024 lds
    s_mov_b32 m0, s26
    s_nop 0
    buffer_load_dwordx4 v1, s[8:11], s23 offen offset:2048 lds
    buffer_load_dwordx4 v1, s[8:11], s23 offen offset:3072 lds
{lnn}:
    """)

def attn_b(a):
    QF, QN = QB, 232
    S0, S1, P, O, MHI, MLO, NL, KV, T = 24, 40, 56, 64, 80, 96, 112, 144, 4
    NR = 3
    SS = [S0, S1]
    a.c("==== attention B : head s5, query tile s6; LDS tile slot i = global tile 4g-8+i")
    a.c("mask tiles used as MFMA C operand")
    a.e(f"v_lshlrev_b32 v{T+5}, 2, v3\nv_sub_u32 v{T+5}, v2, v{T+5}\nv_cvt_f32_i32 v{T+5}, v{T+5}\nv_add_f32 v{T+5}, 0.5, v{T+5}\nv_mul_f32 v{T+5}, {fbits(2e30)}, v{T+5}")
    for r in range(16):
        ar_ = (r & 3) + 8 * (r >> 2)
        a.e(f"v_subrev_f32 v{MLO+r}, {fbits(2e30 * ar_)}, v{T+5}")
    for r in range(16):
        a.e(f"v_min_f32 v{MHI+r}, 0, v{MLO+r}\nv_min_f32_e64 v{MLO+r}, 0, -v{MLO+r}")
    a.e(f"""
    s_min_u32 s28, s6, 8
    v_mov_b32 v{T+9}, {LSM + 3072}
    s_lshl_b32 s20, s3, 12
    s_add_u32 s20, s20, {LSCR + 8*4096}
    v_add_u32 v{T+7}, s20, v1
    s_waitcnt vmcnt(0) lgkmcnt(0)
    s_barrier
    ds_read_b128 {vr(NL)}, v{T+9}
    """)
    a.e(f"v_subrev_u32 v{T+7}, {8*4096}, v{T+7}")
    def rdt(k):
        for q in range(4): a.e(f"ds_read_b128 {vr(KV+16*(k%NR)+4*q)}, v{T+7} offset:{(8-k)*4096+q*1024}")
    a.c("Kmax over the two neighbour blocks and the own block (superset of the window)")
    row_max16(a, T + 8)
    a.e(f"""
    s_waitcnt lgkmcnt(0)
    v_max3_f32 v{T+8}, v{T+8}, v{NL}, v{NL+1}
    v_max3_f32 v{T+8}, v{T+8}, v{NL+2}, v{NL+3}
    s_nop 0
    v_readfirstlane_b32 s24, v{T+8}
    s_mov_b32 exec_lo, 0
    s_nop 1
    v_mul_f32 v{T}, s24, v{QN}
    v_sqrt_f32 v{T}, v{T}
    s_nop 0
    v_mul_f32 v{T}, {fbits(1.02)}, v{T}
    """)
    c_pieces(a, T, T + 1, QF + 6, QF + 7)
    a.e("s_mov_b64 exec, -1\ns_mov_b32 s29, 0")
    a.stamp('ab_go')
    if a.INSTR: a.e("s_waitcnt lgkmcnt(0)")
    lmain, lfin, lslow, lnorm = a.lab('ab_main'), a.lab('ab_fin'), a.lab('ab_slow'), a.lab('ab_norm')
    a.e(f"{lmain}:\ns_lshl_b32 s44, s36, 15\ns_add_u32 s44, s44, {L.WOB}")
    def wob(g, i):
        if g >= 8 or WOB_MODE != 'units': return
        if i == 0: a.e(f"s_add_u32 s43, s44, {g*4096}")
        a.e(f"buffer_load_dwordx4 {ar(AWO+16*g+4*i)}, v1, s[8:11], s43 offen offset:{i*1024}")
    rdt(0); rdt(1)
    for r in range(16): a.e(f"v_mov_b32 v{O+r}, 0")
    def cmask(k): return vr(MHI, 16) if k == 0 else (vr(MLO, 16) if k == 8 else '0')
    def kvb(k): return KV + 16 * (k % NR)
    a.e(f"""
    s_waitcnt lgkmcnt(4)
    {MF} {vr(S0,16)}, {vr(kvb(0))}, {vr(QF)}, {cmask(0)}
    {MF} {vr(S0,16)}, {vr(kvb(0)+4)}, {vr(QF+4)}, {vr(S0,16)}
    s_nop 7
    s_nop 3
    """)
    stubs = []
    for k in range(9):
        sb = SS[k & 1]; sn = SS[(k + 1) & 1]
        def ex(i0):
            for i in range(i0, i0 + 4): a.e(f"v_exp_f32 v{sb+i}, v{sb+i}")
        def cv(j0):
            for jx in (j0, j0 + 1): a.e(f"v_cvt_pk_bf16_f32 v{P+jx}, v{sb+2*jx}, v{sb+2*jx+1}")
        ex(0)
        if k < 8:
            a.e("s_waitcnt lgkmcnt(0)")
            a.e(f"{MF} {vr(sn,16)}, {vr(kvb(k+1))}, {vr(QF)}, {cmask(k+1)}")
        cv(0); wob(k, 0); ex(4)
        if k < 8: a.e(f"{MF} {vr(sn,16)}, {vr(kvb(k+1)+4)}, {vr(QF+4)}, {vr(sn,16)}")
        cv(2); wob(k, 1); ex(8)
        if k > 0: a.e(f"{MF} {vr(O,16)}, {vr(kvb(k-1)+12)}, {vr(P+4)}, {vr(O,16)}")
        cv(4)
        if k + 2 <= 8: rdt(k + 2)
        wob(k, 2)
        ex(12)
        a.e(f"{MF} {vr(O,16)}, {vr(kvb(k)+8)}, {vr(P)}, {vr(O,16)}")
        wob(k, 3)
        cv(6)
        if k < 8:
            st = a.lab('ab_x'); stubs.append((st, k))
            a.e(f"s_cmp_eq_u32 s28, {k}\ns_cbranch_scc1 {st}")
        else:
            a.e(f"s_nop 1\n{MF} {vr(O,16)}, {vr(kvb(k)+12)}, {vr(P+4)}, {vr(O,16)}")
    a.e(f"{lfin}:")
    a.stamp('ab_end')
    a.e(f"""
    s_lshl_b32 s20, s6, 15
    s_lshl_b32 s21, s5, 11
    s_add_u32 s20, s20, s21
    s_add_u32 s20, s20, s30
    s_add_u32 s20, s20, {L.OB}
    s_lshl_b32 s21, s6, 11
    s_lshl_b32 s22, s5, 7
    s_add_u32 s21, s21, s22
    s_add_u32 s21, s21, s30
    s_add_u32 s21, s21, {L.HOB}
    s_mov_b32 s22, {fbits(THR)}
    v_mov_b32 v{T+4}, 0
    s_waitcnt lgkmcnt(0)
    v_mov_b32 v{T+2}, v{O+12}
    v_mov_b32 v{T+3}, v{O+12}
    v_pk_add_f32 v[{S0}:{S0+1}], v[{O}:{O+1}], v[{O+2}:{O+3}]
    v_pk_add_f32 v[{S0+2}:{S0+3}], v[{O+4}:{O+5}], v[{O+6}:{O+7}]
    v_permlane32_swap_b32 v{T+2}, v{T+3}
    v_pk_add_f32 v[{S0}:{S0+1}], v[{S0}:{S0+1}], v[{O+8}:{O+9}]
    v_pk_add_f32 v[{S0+2}:{S0+3}], v[{S0+2}:{S0+3}], v[{O+10}:{O+11}]
    v_pk_add_f32 v[{S0}:{S0+1}], v[{S0}:{S0+1}], v[{O+12}:{O+13}]
    v_pk_add_f32 v[{S0+2}:{S0+3}], v[{S0+2}:{S0+3}], v[{O+14}:{O+15}]
    v_pk_add_f32 v[{S0}:{S0+1}], v[{S0}:{S0+1}], v[{S0+2}:{S0+3}]
    v_cmp_gt_f32 vcc, s22, v{T+3}
    v_cmp_u_f32 s[24:25], v{S0}, v{S0+1}
    v_rcp_f32 v{T+3}, v{T+3}
    s_or_b64 s[26:27], vcc, s[24:25]
    s_cmp_lg_u64 s[26:27], 0
    s_cbranch_scc1 {lslow}
{lnorm}:
    """)
    pk_mul_hi(a, O, T + 3, O)
    for q in range(8): a.e(f"v_cvt_pk_bf16_f32 v{P+q}, v{O+2*q}, v{O+2*q+1}")
    clamp(a, range(P, P + 8))
    a.e(f"""
    buffer_store_dwordx4 {vr(P)}, v1, s[8:11], s20 offen sc1
    buffer_store_dwordx4 {vr(P+4)}, v1, s[8:11], s20 offen offset:1024 sc1
    s_mov_b64 exec, 1
    buffer_store_dword v{T+4}, v{T+4}, s[8:11], s21 offen sc1
    s_mov_b64 exec, -1
    """)
    a.stamp('ab_pub')
    sav = a.lines; a.lines = []
    cu = [a.lab('ab_cu') for _ in range(9)]
    for st, k in stubs:
        a.e(f"{st}:\n{MF} {vr(O,16)}, {vr(kvb(k)+12)}, {vr(P+4)}, {vr(O,16)}\ns_branch {cu[k+1]}")
    for g in range(1, 9):
        a.e(f"{cu[g]}:")
        for i in range(4): wob(g, i)
    a.e(f"s_branch {lfin}")
    lsm, lmx = a.lab('ab_sm'), a.lab('ab_mx')
    a.e(f"""
{lslow}:
    s_cmp_eq_u64 s[24:25], 0
    s_cbranch_scc1 {lmx}
    s_bitcmp1_b32 s29, 1
    s_cbranch_scc1 {lmx}
    s_or_b32 s29, s29, 2
    """)
    a.c("NaN: a neighbour word may not have arrived (sentinel): refetch the neighbour tiles coherently, validated, then rerun")
    a.e(f"""
    s_lshl_b32 s24, s4, 2
    s_lshl_b32 s22, s24, 11
    s_lshl_b32 s23, s5, 17
    s_add_u32 s22, s22, s23
    s_add_u32 s22, s22, s30
    s_add_u32 s23, s22, {L.VB - 8*2048}
    s_add_u32 s22, s22, {L.KB - 8*2048}
    v_add_u32 v{T+10}, {LSCR}, v1
    """)
    for sl in range(8):
        lsk = a.lab('ab_rs')
        a.e(f"s_cmp_lt_u32 s24, {8 - sl}\ns_cbranch_scc1 {lsk}")
        def rl():
            a.e(f"""
            buffer_load_dwordx4 {vr(NL)}, v1, s[8:11], s22 offen sc1
            buffer_load_dwordx4 {vr(NL+4)}, v1, s[8:11], s22 offen offset:1024 sc1
            buffer_load_dwordx4 {vr(NL+8)}, v1, s[8:11], s23 offen sc1
            buffer_load_dwordx4 {vr(NL+12)}, v1, s[8:11], s23 offen offset:1024 sc1
            """)
        poll(a, rl, range(NL, NL + 16), T + 9, name='nbr')
        for q in range(4): a.e(f"ds_write_b128 v{T+10}, {vr(NL+4*q)} offset:{sl*4096+q*1024}")
        a.e(f"s_waitcnt lgkmcnt(0)\n{lsk}:\ns_add_u32 s22, s22, 2048\ns_add_u32 s23, s23, 2048")
    a.e(f"""
    s_branch {lmain}
{lmx}:
    s_cmp_eq_u64 vcc, 0
    s_cbranch_scc1 {lnorm}
    s_bitcmp1_b32 s29, 0
    s_cbranch_scc1 {lnorm}
    """)
    a.c("exact fallback: true (masked) row max, then rerun")
    a.e(f"""
    v_cmp_eq_u32 vcc, 1, v3
    v_mov_b32 v{T}, 0xff800000
    s_or_b32 s29, s29, 1
    v_cndmask_b32 v{QF+6}, v{QF+6}, 0, vcc
    v_cndmask_b32 v{QF+7}, v{QF+7}, 0, vcc
    """)
    for k in range(9):
        a.e(f"""
        ds_read_b128 {vr(KV)}, v{T+7} offset:{(8-k)*4096}
        ds_read_b128 {vr(KV+4)}, v{T+7} offset:{(8-k)*4096+1024}
        s_waitcnt lgkmcnt(0)
        {MF} {vr(S0,16)}, {vr(KV)}, {vr(QF)}, {cmask(k)}
        {MF} {vr(S0,16)}, {vr(KV+4)}, {vr(QF+4)}, {vr(S0,16)}
        s_nop 15
        """)
        for r in range(0, 16, 2): a.e(f"v_max3_f32 v{T}, v{T}, v{S0+r}, v{S0+r+1}")
        if k < 8: a.e(f"s_cmp_eq_u32 s28, {k}\ns_cbranch_scc1 {lsm}")
    a.e(f"""
{lsm}:
    v_mov_b32 v{T+1}, v{T}
    s_nop 1
    v_permlane32_swap_b32 v{T}, v{T+1}
    s_nop 1
    v_max_f32 v{T}, v{T}, v{T+1}
    s_mov_b32 exec_lo, 0
    """)
    c_pieces(a, T, T + 1, QF + 6, QF + 7)
    a.e(f"s_mov_b64 exec, -1\ns_branch {lmain}")
    a.cold.append("\n".join(a.lines)); a.lines = sav
```

```python
from asm import *
F0 = (A(0, L.STM), A(0, L.QA) + 256 * 8192)
F1 = (A(1, L.STIN), A(1, L.HEND))
assert L.HEND == L.QA
NF0 = (F0[1] - F0[0] + 16383) // 16384
NF1 = (F1[1] - F1[0] + 16383) // 16384
NFILL = NF0 + NF1
NPREP = 800 + NFILL
import os
SC = os.environ.get('PREP_SC', '')
PI = os.environ.get('PINSTR')
PST0 = 's_memrealtime s[50:51]\ns_mov_b32 s56, s2' if PI else ''
PEND = f'''s_waitcnt vmcnt(0)
    s_memrealtime s[52:53]
    s_mov_b64 exec, 1
    s_lshl_b32 s54, s56, 2
    s_add_u32 s54, s54, s3
    s_lshl_b32 s54, s54, 3
    s_add_u32 s54, s54, {L.DUMMY + (8 << 20)}
    s_mov_b32 s10, {L.TOTAL}
    v_mov_b32 v40, 0
    s_waitcnt lgkmcnt(0)
    v_mov_b32 v42, s50
    v_mov_b32 v43, s52
    buffer_store_dwordx2 v[42:43], v40, s[8:11], s54 offen
    s_endpgm''' if PI else 's_endpgm'
def gen_prep(a):
    a.begin('prep_kernel', NPREP, vgpr=48, lds=2048, sgpr=64)
    a.e(f"""
    s_cmp_ge_u32 s2, {NPREP}
    s_cbranch_scc1 P_done
    {PST0}
    s_load_dwordx16 s[16:31], s[0:1], 0
    s_load_dwordx2 s[32:33], s[0:1], 80
    v_and_b32 v1, 63, v0
    v_lshrrev_b32 v4, 6, v0
    v_and_b32 v2, 31, v0
    v_bfe_u32 v3, v0, 5, 1
    v_readfirstlane_b32 s3, v4
    v_lshlrev_b32 v5, 4, v1
    v_mov_b32 v8, 0
    v_mov_b32 v9, 0
    v_mov_b32 v16, 0
    v_mov_b32 v17, 0
    v_mov_b32 v18, 0
    v_mov_b32 v19, 0
    v_mov_b32 v20, 0
    v_mov_b32 v21, 0
    v_mov_b32 v22, 0
    v_mov_b32 v23, 0
    s_waitcnt lgkmcnt(0)
    """)
    a.srd(8, 32, L.TOTAL)
    a.e(f"""
    s_cmp_lt_u32 s2, {NFILL}
    s_cbranch_scc1 P_fill
    s_sub_u32 s2, s2, {NFILL}
    s_lshl_b32 s4, s2, 2
    s_add_u32 s4, s4, s3
    """)
    a.e("""
    s_cmp_ge_u32 s2, 736
    s_cbranch_scc1 P_x0
    s_cmp_ge_u32 s2, 672
    s_cbranch_scc1 P_cs
    s_cmp_ge_u32 s2, 336
    s_cbranch_scc1 P_wb
    """)
    for t in range(8): a.e(f"s_mov_b32 s{40+t}, {(8*(t>>2)+(t&3))*896}")
    a.e("""
    s_cmp_ge_u32 s2, 112
    s_cbranch_scc1 P_wo
    """)
    def gather(srd, voff, use_s=True, ld=56):
        for t in range(8):
            op = 'buffer_load_ushort'
            if use_s: a.e(f"{op} v{16+t}, v{voff}, s[{srd}:{srd+3}], s{40+t} offen")
            else: a.e(f"{op} v{16+t}, v{voff}, s[{srd}:{srd+3}], 0 offen offset:{(8*(t>>2)+(t&3))*ld}")
    PACK = "\n".join(f"v_lshl_or_b32 v{8+q}, v{17+2*q}, 16, v{16+2*q}" for q in range(4))
    a.c("WQA fragments: task=s4 -> j=s5, ks=s6")
    a.e("""
    s_mul_i32 s5, s4, 2341
    s_lshr_b32 s5, s5, 16
    s_mul_i32 s6, s5, 28
    s_sub_u32 s6, s4, s6
    """)
    a.srd(12, 18, 448 * 896)
    a.e(f"""
    s_lshl_b32 s7, s6, 4
    v_lshl_add_u32 v6, v3, 2, s7
    s_mul_i32 s34, s5, 56
    v_mul_u32_u24 v7, 896, v6
    v_lshl_add_u32 v7, v2, 1, v7
    v_add_u32 v7, s34, v7
    v_cmp_gt_u32 vcc, 28, v2
    s_and_saveexec_b64 s[36:37], vcc
    """)
    gather(12, 7)
    a.e(f"""
    s_andn2_b64 exec, s[36:37], exec
    s_and_b32 s34, s5, 7
    s_cmp_eq_u32 s34, 7
    s_cbranch_scc1 P_wqa_st
    s_cmp_ge_u32 s5, 8
    s_cbranch_scc1 P_wqa_v
    s_mov_b32 s12, s20
    s_mov_b32 s13, s21
    s_lshl_b32 s34, s5, 3
    s_branch P_wqa_kv
P_wqa_v:
    s_mov_b32 s12, s22
    s_mov_b32 s13, s23
    s_sub_u32 s34, s5, 8
    s_lshl_b32 s34, s34, 3
P_wqa_kv:
    s_mov_b32 s14, {448*56}
    s_mov_b32 s15, 0x00020000
    s_sub_u32 s34, s34, 56
    v_mul_u32_u24 v7, 56, v6
    v_lshl_add_u32 v7, v2, 1, v7
    v_add_u32 v7, s34, v7
    """)
    gather(12, 7, use_s=False)
    a.e(f"""
P_wqa_st:
    s_mov_b64 exec, s[36:37]
    s_lshl_b32 s34, s4, 10
    s_add_u32 s34, s34, {L.WQA}
    s_waitcnt vmcnt(0)
    {PACK}
    buffer_store_dwordx4 v[8:11], v5, s[8:11], s34 offen {SC}
    {PEND}
    """)
    a.e(f"""
P_wo:
    s_sub_u32 s4, s4, 448
    s_cmp_ge_u32 s2, 224
    s_cbranch_scc1 P_wob
    s_mov_b32 s12, s24
    s_mov_b32 s13, s25
    s_mov_b32 s35, {L.WOA}
    s_branch P_wo2
P_wob:
    s_sub_u32 s4, s4, 448
    s_mov_b32 s12, s30
    s_mov_b32 s13, s31
    s_mov_b32 s35, {L.WOB}
P_wo2:
    s_mov_b32 s14, {448*896}
    s_mov_b32 s15, 0x00020000
    s_lshr_b32 s5, s4, 5
    s_and_b32 s6, s4, 31
    s_lshr_b32 s7, s6, 1
    s_mul_i32 s7, s7, 28
    s_and_b32 s34, s6, 1
    s_lshl_b32 s38, s34, 4
    s_add_u32 s7, s7, s38
    v_lshl_add_u32 v6, v3, 2, s7
    v_mul_u32_u24 v7, 896, v6
    v_lshl_add_u32 v7, v2, 1, v7
    s_lshl_b32 s38, s5, 6
    v_add_u32 v7, s38, v7
    """)
    gather(12, 7)
    a.e(f"""
    v_and_b32 v6, s34, v3
    v_cmp_eq_u32 vcc, 0, v6
    s_lshl_b32 s34, s4, 10
    s_add_u32 s34, s34, s35
    s_waitcnt vmcnt(0)
    {PACK}
    v_cndmask_b32 v10, 0, v10, vcc
    v_cndmask_b32 v11, 0, v11, vcc
    buffer_store_dwordx4 v[8:11], v5, s[8:11], s34 offen {SC}
    {PEND}
    """)
    a.e("P_wb:")
    for t in range(8): a.e(f"s_mov_b32 s{40+t}, {(8*(t>>2)+(t&3))*2688}")
    a.srd(12, 28, 448 * 2688)
    a.e(f"""
    s_sub_u32 s4, s4, 1344
    s_mul_i32 s5, s4, 2341
    s_lshr_b32 s5, s5, 16
    s_mul_i32 s6, s5, 28
    s_sub_u32 s6, s4, s6
    s_mul_i32 s7, s5, 21846
    s_lshr_b32 s7, s7, 16
    s_mul_i32 s34, s7, 3
    s_sub_u32 s34, s5, s34
    s_mul_i32 s34, s34, 896
    s_mul_i32 s7, s7, 56
    s_add_u32 s34, s34, s7
    s_lshl_b32 s7, s6, 4
    v_lshl_add_u32 v6, v3, 2, s7
    v_mul_u32_u24 v7, 2688, v6
    v_lshl_add_u32 v7, v2, 1, v7
    v_add_u32 v7, s34, v7
    v_cmp_gt_u32 vcc, 28, v2
    s_and_saveexec_b64 s[36:37], vcc
    """)
    gather(12, 7)
    a.e(f"""
    s_mov_b64 exec, s[36:37]
    s_lshl_b32 s34, s4, 10
    s_add_u32 s34, s34, {L.WB}
    s_waitcnt vmcnt(0)
    {PACK}
    buffer_store_dwordx4 v[8:11], v5, s[8:11], s34 offen {SC}
    {PEND}
    """)
    a.e(f"""
P_cs:
    s_sub_u32 s5, s2, 672
    v_and_b32 v2, 15, v0
    v_lshrrev_b32 v3, 4, v0
    v_mul_u32_u24 v3, 28, v3
    """)
    for t in range(28): a.e(f"v_mov_b32 v{16+t}, 0")
    a.e(f"""
    s_cmp_ge_u32 s5, 16
    s_cbranch_scc1 P_cs_b
    """)
    a.srd(12, 18, 448 * 896)
    a.e(f"""
    s_mul_i32 s34, s5, 56
    v_mul_u32_u24 v7, 896, v3
    v_lshl_add_u32 v7, v2, 2, v7
    v_add_u32 v7, s34, v7
    s_mov_b32 s38, 0
    v_cmp_gt_u32 vcc, 14, v2
    s_and_saveexec_b64 s[36:37], vcc
    """)
    for t in range(28):
        a.e(f"buffer_load_dword v{16+t}, v7, s[12:15], s38 offen offset:{(t%4)*896}")
        if t % 4 == 3: a.e("s_add_u32 s38, s38, 3584")
    a.e(f"""
    s_andn2_b64 exec, s[36:37], exec
    s_lshl_b32 s35, s5, 7
    s_add_u32 s35, s35, {L.CSA}
    s_and_b32 s34, s5, 7
    s_cmp_eq_u32 s34, 7
    s_cbranch_scc1 P_cs_red
    s_cmp_ge_u32 s5, 8
    s_cbranch_scc1 P_cs_v
    s_mov_b32 s12, s20
    s_mov_b32 s13, s21
    s_lshl_b32 s34, s5, 3
    s_branch P_cs_kv
P_cs_v:
    s_mov_b32 s12, s22
    s_mov_b32 s13, s23
    s_sub_u32 s34, s5, 8
    s_lshl_b32 s34, s34, 3
P_cs_kv:
    s_mov_b32 s14, {448*56}
    s_mov_b32 s15, 0x00020000
    s_sub_u32 s34, s34, 56
    v_mul_u32_u24 v7, 56, v3
    v_lshl_add_u32 v7, v2, 2, v7
    v_add_u32 v7, s34, v7
    """)
    for t in range(28):
        a.e(f"buffer_load_dword v{16+t}, v7, s[12:15], 0 offen offset:{t*56}")
    a.e(f"""
    s_branch P_cs_red
P_cs_b:
    s_sub_u32 s5, s5, 16
    """)
    a.srd(12, 28, 448 * 2688)
    a.e(f"""
    s_mul_i32 s7, s5, 21846
    s_lshr_b32 s7, s7, 16
    s_mul_i32 s34, s7, 3
    s_sub_u32 s34, s5, s34
    s_mul_i32 s34, s34, 896
    s_mul_i32 s7, s7, 56
    s_add_u32 s34, s34, s7
    s_mov_b32 s7, 2688
    v_mul_lo_u32 v7, s7, v3
    v_lshl_add_u32 v7, v2, 2, v7
    v_add_u32 v7, s34, v7
    s_lshl_b32 s35, s5, 7
    s_add_u32 s35, s35, {L.CSB}
    s_mov_b32 s38, 0
    v_cmp_gt_u32 vcc, 14, v2
    s_and_saveexec_b64 s[36:37], vcc
    """)
    for t in range(28):
        a.e(f"buffer_load_dword v{16+t}, v7, s[12:15], s38 offen offset:{(t%2)*2688}")
        if t % 2 == 1: a.e("s_add_u32 s38, s38, 5376")
    a.e(f"""
P_cs_red:
    s_mov_b64 exec, s[36:37]
    v_mov_b32 v8, 0
    v_mov_b32 v9, 0
    s_waitcnt vmcnt(0)
    """)
    for t in range(28):
        a.e(f"""
        v_lshlrev_b32 v10, 16, v{16+t}
        v_and_b32 v11, 0xffff0000, v{16+t}
        v_add_f32 v8, v8, v10
        v_add_f32 v9, v9, v11
        """)
    a.e(f"""
    v_lshlrev_b32 v6, 3, v0
    ds_write_b64 v6, v[8:9]
    s_waitcnt lgkmcnt(0)
    s_barrier
    v_cmp_gt_u32 vcc, 32, v0
    s_and_saveexec_b64 s[36:37], vcc
    s_cbranch_execz P_done
    v_lshlrev_b32 v6, 2, v0
    """)
    for t in range(16): a.e(f"ds_read_b32 v{16+t}, v6 offset:{t*128}")
    a.e("s_waitcnt lgkmcnt(0)")
    for t in range(1, 16): a.e(f"v_add_f32 v16, v16, v{16+t}")
    a.e(f"""
    buffer_store_dword v16, v6, s[8:11], s35 offen {SC}
    {PEND}
    """)
    a.e(f"""
P_x0:
    s_sub_u32 s5, s2, 736
    """)
    a.srd(12, 16, S * 896)
    a.e(f"""
    s_lshl_b32 s6, s5, 5
    v_add_u32 v6, s6, v2
    v_mul_u32_u24 v7, 896, v6
    v_lshl_add_u32 v7, v3, 3, v7
    s_mul_i32 s7, s3, 224
    """)
    for q in range(7):
        a.e(f"buffer_load_dwordx2 v[{16+4*q}:{17+4*q}], v7, s[12:15], s7 offen offset:{32*q}")
        a.e(f"buffer_load_dwordx2 v[{18+4*q}:{19+4*q}], v7, s[12:15], s7 offen offset:{32*q+16}")
    a.e(f"""
    s_mul_i32 s34, s5, {28*1024}
    s_mul_i32 s35, s3, {7*1024}
    s_add_u32 s34, s34, s35
    s_add_u32 s34, s34, {A(0, L.XIN)}
    s_add_u32 s35, s34, 4096
    s_mov_b32 s38, 0x3f803f80
    s_waitcnt vmcnt(0)
    """)
    for q in range(7):
        so = 's34' if q < 4 else 's35'
        a.e(f"buffer_store_dwordx4 v[{16+4*q}:{19+4*q}], v5, s[8:11], {so} offen offset:{(q%4)*1024} {SC}")
    for r in range(28):
        a.e(f"v_dot2_f32_bf16 v8, v{16+r}, s38, v8\nv_dot2_f32_bf16 v9, v{16+r}, v{16+r}, v9")
    a.e(f"""
    s_nop 3
    v_mov_b32 v10, v8
    v_mov_b32 v11, v9
    s_nop 1
    v_permlane32_swap_b32 v8, v10
    v_permlane32_swap_b32 v9, v11
    s_nop 1
    v_add_f32 v8, v8, v10
    v_add_f32 v9, v9, v11
    v_cmp_eq_u32 vcc, 0, v3
    v_lshlrev_b32 v6, 3, v2
    v_lshl_add_u32 v6, v3, 10, v6
    v_cndmask_b32 v8, 0, v8, vcc
    v_cndmask_b32 v9, 0, v9, vcc
    v_mov_b32 v10, 0
    v_mov_b32 v11, 0
    s_lshl_b32 s34, s5, 12
    s_lshl_b32 s35, s3, 8
    s_add_u32 s34, s34, s35
    s_add_u32 s34, s34, {A(0, L.STIN)}
    buffer_store_dwordx2 v[8:9], v6, s[8:11], s34 offen {SC}
    buffer_store_dwordx2 v[10:11], v6, s[8:11], s34 offen offset:2048 {SC}
    {PEND}
    """)
    a.e(f"""
P_fill:
    v_mov_b32 v8, -1
    v_mov_b32 v9, -1
    v_mov_b32 v10, -1
    v_mov_b32 v11, -1
    v_lshlrev_b32 v6, 4, v0
    s_lshl_b32 s34, s2, 14
    s_add_u32 s35, s34, {F1[0] - NF0 * 16384}
    s_add_u32 s34, s34, {F0[0]}
    s_cmp_lt_u32 s2, {NF0}
    s_cselect_b32 s34, s34, s35
    s_mov_b32 s35, {F1[1]}
    s_cselect_b32 s10, {F0[1]}, s35
    """)
    for k in range(4):
        a.e(f"buffer_store_dwordx4 v[8:11], v6, s[8:11], s34 offen {SC}\ns_add_u32 s34, s34, 4096")
    a.e(PEND)
    a.e("""
P_done:
    s_endpgm
    """)
```

```python
from asm import *
F0 = (A(0, L.STM), A(0, L.QA) + 256 * 8192)
F1 = (A(1, L.STIN), A(1, L.HEND))
assert L.HEND == L.QA
NF0 = (F0[1] - F0[0] + 16383) // 16384
NF1 = (F1[1] - F1[0] + 16383) // 16384
NFILL = NF0 + NF1
NPREP = 736 + 64 + 224 + NFILL
import os
SC = os.environ.get('PREP_SC', '')
PI = os.environ.get('PINSTR')
PST0 = 's_memrealtime s[50:51]\ns_mov_b32 s56, s2' if PI else ''
PEND = f'''s_waitcnt vmcnt(0)
    s_memrealtime s[52:53]
    s_mov_b64 exec, 1
    s_lshl_b32 s54, s56, 2
    s_add_u32 s54, s54, s3
    s_lshl_b32 s54, s54, 3
    s_add_u32 s54, s54, {L.DUMMY + (8 << 20)}
    s_mov_b32 s10, {L.TOTAL}
    v_mov_b32 v40, 0
    s_waitcnt lgkmcnt(0)
    v_mov_b32 v42, s50
    v_mov_b32 v43, s52
    buffer_store_dwordx2 v[42:43], v40, s[8:11], s54 offen
    s_endpgm''' if PI else 's_endpgm'
def gen_prep(a):
    a.begin('prep_kernel', NPREP, vgpr=48, lds=2048, sgpr=64)
    a.e(f"""
    s_cmp_ge_u32 s2, {NPREP}
    s_cbranch_scc1 P_done
    {PST0}
    s_getpc_b64 s[58:59]
P_pc:
    v_lshlrev_b32 v44, 4, v0
    v_min_u32 v44, P_done-P_pc-16, v44
    global_load_dwordx4 v[44:47], v44, s[58:59]
    s_load_dwordx16 s[16:31], s[0:1], 0
    s_load_dwordx2 s[32:33], s[0:1], 80
    v_and_b32 v1, 63, v0
    v_lshrrev_b32 v4, 6, v0
    v_and_b32 v2, 31, v0
    v_bfe_u32 v3, v0, 5, 1
    v_readfirstlane_b32 s3, v4
    v_lshlrev_b32 v5, 4, v1
    v_mov_b32 v8, 0
    v_mov_b32 v9, 0
    v_mov_b32 v16, 0
    v_mov_b32 v17, 0
    v_mov_b32 v18, 0
    v_mov_b32 v19, 0
    v_mov_b32 v20, 0
    v_mov_b32 v21, 0
    v_mov_b32 v22, 0
    v_mov_b32 v23, 0
    s_waitcnt lgkmcnt(0)
    """)
    a.srd(8, 32, L.TOTAL)
    a.e(f"""
    s_cmp_lt_u32 s2, {NFILL}
    s_cbranch_scc1 P_fill
    s_sub_u32 s2, s2, {NFILL}
    s_lshl_b32 s4, s2, 2
    s_add_u32 s4, s4, s3
    """)
    a.e("""
    s_cmp_ge_u32 s2, 800
    s_cbranch_scc1 P_x0
    s_cmp_ge_u32 s2, 736
    s_cbranch_scc1 P_st
    s_cmp_ge_u32 s2, 672
    s_cbranch_scc1 P_cs
    s_cmp_ge_u32 s2, 336
    s_cbranch_scc1 P_wb
    """)
    for t in range(8): a.e(f"s_mov_b32 s{40+t}, {(8*(t>>2)+(t&3))*896}")
    a.e("""
    s_cmp_ge_u32 s2, 112
    s_cbranch_scc1 P_wo
    """)
    def gather(srd, voff, use_s=True, ld=56):
        for t in range(8):
            op = 'buffer_load_ushort'
            if use_s: a.e(f"{op} v{16+t}, v{voff}, s[{srd}:{srd+3}], s{40+t} offen")
            else: a.e(f"{op} v{16+t}, v{voff}, s[{srd}:{srd+3}], 0 offen offset:{(8*(t>>2)+(t&3))*ld}")
    PACK = "\n".join(f"v_lshl_or_b32 v{8+q}, v{17+2*q}, 16, v{16+2*q}" for q in range(4))
    a.c("WQA fragments: task=s4 -> j=s5, ks=s6")
    a.e("""
    s_mul_i32 s5, s4, 2341
    s_lshr_b32 s5, s5, 16
    s_mul_i32 s6, s5, 28
    s_sub_u32 s6, s4, s6
    """)
    a.srd(12, 18, 448 * 896)
    a.e(f"""
    s_lshl_b32 s7, s6, 4
    v_lshl_add_u32 v6, v3, 2, s7
    s_mul_i32 s34, s5, 56
    v_mul_u32_u24 v7, 896, v6
    v_lshl_add_u32 v7, v2, 1, v7
    v_add_u32 v7, s34, v7
    v_cmp_gt_u32 vcc, 28, v2
    s_and_saveexec_b64 s[36:37], vcc
    """)
    gather(12, 7)
    a.e(f"""
    s_andn2_b64 exec, s[36:37], exec
    s_and_b32 s34, s5, 7
    s_cmp_eq_u32 s34, 7
    s_cbranch_scc1 P_wqa_st
    s_cmp_ge_u32 s5, 8
    s_cbranch_scc1 P_wqa_v
    s_mov_b32 s12, s20
    s_mov_b32 s13, s21
    s_lshl_b32 s34, s5, 3
    s_branch P_wqa_kv
P_wqa_v:
    s_mov_b32 s12, s22
    s_mov_b32 s13, s23
    s_sub_u32 s34, s5, 8
    s_lshl_b32 s34, s34, 3
P_wqa_kv:
    s_mov_b32 s14, {448*56}
    s_mov_b32 s15, 0x00020000
    s_sub_u32 s34, s34, 56
    v_mul_u32_u24 v7, 56, v6
    v_lshl_add_u32 v7, v2, 1, v7
    v_add_u32 v7, s34, v7
    """)
    gather(12, 7, use_s=False)
    a.e(f"""
P_wqa_st:
    s_mov_b64 exec, s[36:37]
    s_lshl_b32 s34, s4, 10
    s_add_u32 s34, s34, {L.WQA}
    s_waitcnt vmcnt(0)
    {PACK}
    buffer_store_dwordx4 v[8:11], v5, s[8:11], s34 offen {SC}
    {PEND}
    """)
    a.e(f"""
P_wo:
    s_sub_u32 s4, s4, 448
    s_cmp_ge_u32 s2, 224
    s_cbranch_scc1 P_wob
    s_mov_b32 s12, s24
    s_mov_b32 s13, s25
    s_mov_b32 s35, {L.WOA}
    s_branch P_wo2
P_wob:
    s_sub_u32 s4, s4, 448
    s_mov_b32 s12, s30
    s_mov_b32 s13, s31
    s_mov_b32 s35, {L.WOB}
P_wo2:
    s_mov_b32 s14, {448*896}
    s_mov_b32 s15, 0x00020000
    s_lshr_b32 s5, s4, 5
    s_and_b32 s6, s4, 31
    s_lshr_b32 s7, s6, 1
    s_mul_i32 s7, s7, 28
    s_and_b32 s34, s6, 1
    s_lshl_b32 s38, s34, 4
    s_add_u32 s7, s7, s38
    v_lshl_add_u32 v6, v3, 2, s7
    v_mul_u32_u24 v7, 896, v6
    v_lshl_add_u32 v7, v2, 1, v7
    s_lshl_b32 s38, s5, 6
    v_add_u32 v7, s38, v7
    """)
    gather(12, 7)
    a.e(f"""
    v_and_b32 v6, s34, v3
    v_cmp_eq_u32 vcc, 0, v6
    s_lshl_b32 s34, s4, 10
    s_add_u32 s34, s34, s35
    s_waitcnt vmcnt(0)
    {PACK}
    v_cndmask_b32 v10, 0, v10, vcc
    v_cndmask_b32 v11, 0, v11, vcc
    buffer_store_dwordx4 v[8:11], v5, s[8:11], s34 offen {SC}
    {PEND}
    """)
    a.e("P_wb:")
    for t in range(8): a.e(f"s_mov_b32 s{40+t}, {(8*(t>>2)+(t&3))*2688}")
    a.srd(12, 28, 448 * 2688)
    a.e(f"""
    s_sub_u32 s4, s4, 1344
    s_mul_i32 s5, s4, 2341
    s_lshr_b32 s5, s5, 16
    s_mul_i32 s6, s5, 28
    s_sub_u32 s6, s4, s6
    s_mul_i32 s7, s5, 21846
    s_lshr_b32 s7, s7, 16
    s_mul_i32 s34, s7, 3
    s_sub_u32 s34, s5, s34
    s_mul_i32 s34, s34, 896
    s_mul_i32 s7, s7, 56
    s_add_u32 s34, s34, s7
    s_lshl_b32 s7, s6, 4
    v_lshl_add_u32 v6, v3, 2, s7
    v_mul_u32_u24 v7, 2688, v6
    v_lshl_add_u32 v7, v2, 1, v7
    v_add_u32 v7, s34, v7
    v_cmp_gt_u32 vcc, 28, v2
    s_and_saveexec_b64 s[36:37], vcc
    """)
    gather(12, 7)
    a.e(f"""
    s_mov_b64 exec, s[36:37]
    s_lshl_b32 s34, s4, 10
    s_add_u32 s34, s34, {L.WB}
    s_waitcnt vmcnt(0)
    {PACK}
    buffer_store_dwordx4 v[8:11], v5, s[8:11], s34 offen {SC}
    {PEND}
    """)
    a.e(f"""
P_cs:
    s_sub_u32 s5, s2, 672
    v_and_b32 v2, 15, v0
    v_lshrrev_b32 v3, 4, v0
    v_mul_u32_u24 v3, 28, v3
    """)
    for t in range(28): a.e(f"v_mov_b32 v{16+t}, 0")
    a.e(f"""
    s_cmp_ge_u32 s5, 16
    s_cbranch_scc1 P_cs_b
    """)
    a.srd(12, 18, 448 * 896)
    a.e(f"""
    s_mul_i32 s34, s5, 56
    v_mul_u32_u24 v7, 896, v3
    v_lshl_add_u32 v7, v2, 2, v7
    v_add_u32 v7, s34, v7
    s_mov_b32 s38, 0
    v_cmp_gt_u32 vcc, 14, v2
    s_and_saveexec_b64 s[36:37], vcc
    """)
    for t in range(28):
        a.e(f"buffer_load_dword v{16+t}, v7, s[12:15], s38 offen offset:{(t%4)*896}")
        if t % 4 == 3: a.e("s_add_u32 s38, s38, 3584")
    a.e(f"""
    s_andn2_b64 exec, s[36:37], exec
    s_lshl_b32 s35, s5, 7
    s_add_u32 s35, s35, {L.CSA}
    s_and_b32 s34, s5, 7
    s_cmp_eq_u32 s34, 7
    s_cbranch_scc1 P_cs_red
    s_cmp_ge_u32 s5, 8
    s_cbranch_scc1 P_cs_v
    s_mov_b32 s12, s20
    s_mov_b32 s13, s21
    s_lshl_b32 s34, s5, 3
    s_branch P_cs_kv
P_cs_v:
    s_mov_b32 s12, s22
    s_mov_b32 s13, s23
    s_sub_u32 s34, s5, 8
    s_lshl_b32 s34, s34, 3
P_cs_kv:
    s_mov_b32 s14, {448*56}
    s_mov_b32 s15, 0x00020000
    s_sub_u32 s34, s34, 56
    v_mul_u32_u24 v7, 56, v3
    v_lshl_add_u32 v7, v2, 2, v7
    v_add_u32 v7, s34, v7
    """)
    for t in range(28):
        a.e(f"buffer_load_dword v{16+t}, v7, s[12:15], 0 offen offset:{t*56}")
    a.e(f"""
    s_branch P_cs_red
P_cs_b:
    s_sub_u32 s5, s5, 16
    """)
    a.srd(12, 28, 448 * 2688)
    a.e(f"""
    s_mul_i32 s7, s5, 21846
    s_lshr_b32 s7, s7, 16
    s_mul_i32 s34, s7, 3
    s_sub_u32 s34, s5, s34
    s_mul_i32 s34, s34, 896
    s_mul_i32 s7, s7, 56
    s_add_u32 s34, s34, s7
    s_mov_b32 s7, 2688
    v_mul_lo_u32 v7, s7, v3
    v_lshl_add_u32 v7, v2, 2, v7
    v_add_u32 v7, s34, v7
    s_lshl_b32 s35, s5, 7
    s_add_u32 s35, s35, {L.CSB}
    s_mov_b32 s38, 0
    v_cmp_gt_u32 vcc, 14, v2
    s_and_saveexec_b64 s[36:37], vcc
    """)
    for t in range(28):
        a.e(f"buffer_load_dword v{16+t}, v7, s[12:15], s38 offen offset:{(t%2)*2688}")
        if t % 2 == 1: a.e("s_add_u32 s38, s38, 5376")
    a.e(f"""
P_cs_red:
    s_mov_b64 exec, s[36:37]
    v_mov_b32 v8, 0
    v_mov_b32 v9, 0
    s_waitcnt vmcnt(0)
    """)
    a.e("s_movk_i32 s38, 0x3f80\ns_mov_b32 s39, 0x3f800000")
    for t in range(28):
        a.e(f"v_dot2_f32_bf16 v8, v{16+t}, s38, v8\nv_dot2_f32_bf16 v9, v{16+t}, s39, v9")
    a.e("s_nop 2")
    a.e(f"""
    v_lshlrev_b32 v6, 3, v0
    ds_write_b64 v6, v[8:9]
    s_waitcnt lgkmcnt(0)
    s_barrier
    v_cmp_gt_u32 vcc, 32, v0
    s_and_saveexec_b64 s[36:37], vcc
    s_cbranch_execz P_done
    v_lshlrev_b32 v6, 2, v0
    """)
    for t in range(16): a.e(f"ds_read_b32 v{16+t}, v6 offset:{t*128}")
    a.e("s_waitcnt lgkmcnt(0)")
    for t in range(1, 16): a.e(f"v_add_f32 v16, v16, v{16+t}")
    a.e(f"""
    buffer_store_dword v16, v6, s[8:11], s35 offen {SC}
    {PEND}
    """)
    a.e(f"""
P_x0:
    s_sub_u32 s4, s4, 3200
    s_mul_i32 s5, s4, 4682
    s_lshr_b32 s5, s5, 16
    s_mul_i32 s6, s5, 14
    s_sub_u32 s6, s4, s6
    """)
    a.srd(12, 16, S * 896)
    a.e(f"""
    s_lshl_b32 s7, s5, 5
    v_add_u32 v6, s7, v2
    v_mul_u32_u24 v7, 896, v6
    v_lshl_add_u32 v7, v3, 3, v7
    s_lshl_b32 s7, s6, 6
    buffer_load_dwordx2 v[16:17], v7, s[12:15], s7 offen
    buffer_load_dwordx2 v[18:19], v7, s[12:15], s7 offen offset:16
    buffer_load_dwordx2 v[20:21], v7, s[12:15], s7 offen offset:32
    buffer_load_dwordx2 v[22:23], v7, s[12:15], s7 offen offset:48
    s_lshl_b32 s34, s4, 11
    s_add_u32 s34, s34, {A(0, L.XIN)}
    s_waitcnt vmcnt(2)
    buffer_store_dwordx4 v[16:19], v5, s[8:11], s34 offen {SC}
    s_waitcnt vmcnt(1)
    buffer_store_dwordx4 v[20:23], v5, s[8:11], s34 offen offset:1024 {SC}
    {PEND}
    """)
    a.e(f"""
P_st:
    s_sub_u32 s4, s4, 2944
    """)
    a.srd(12, 16, S * 896)
    a.e(f"""
    v_lshrrev_b32 v6, 3, v1
    v_and_b32 v7, 7, v1
    s_lshl_b32 s5, s4, 3
    v_add_u32 v12, s5, v6
    v_mul_u32_u24 v12, 896, v12
    v_lshl_add_u32 v12, v7, 4, v12
    """)
    for q in range(7): a.e(f"buffer_load_dwordx4 v[{16+4*q}:{19+4*q}], v12, s[12:15], 0 offen offset:{q*128}")
    a.e(f"""
    s_mov_b32 s38, 0x3f803f80
    s_lshr_b32 s34, s4, 2
    s_lshl_b32 s34, s34, 12
    s_and_b32 s35, s4, 3
    s_lshl_b32 s35, s35, 6
    s_add_u32 s34, s34, s35
    s_add_u32 s34, s34, {A(0, L.STIN)}
    v_lshlrev_b32 v13, 3, v6
    v_lshl_add_u32 v13, v7, 8, v13
    v_cmp_eq_u32 vcc, 0, v7
    v_mov_b32 v10, 0
    v_mov_b32 v11, 0
    """)
    for q in range(7):
        a.e(f"s_waitcnt vmcnt({6-q})")
        for r in range(4):
            a.e(f"v_dot2_f32_bf16 v8, v{16+4*q+r}, s38, v8\nv_dot2_f32_bf16 v9, v{16+4*q+r}, v{16+4*q+r}, v9")
    a.e("s_nop 2")
    for m in ('quad_perm:[1,0,3,2]', 'quad_perm:[2,3,0,1]', 'row_half_mirror'):
        a.e(f"v_add_f32_dpp v8, v8, v8 {m} row_mask:0xf bank_mask:0xf\nv_add_f32_dpp v9, v9, v9 {m} row_mask:0xf bank_mask:0xf\ns_nop 0")
    a.e(f"""
    v_cndmask_b32 v8, 0, v8, vcc
    v_cndmask_b32 v9, 0, v9, vcc
    buffer_store_dwordx2 v[8:9], v13, s[8:11], s34 offen {SC}
    buffer_store_dwordx2 v[10:11], v13, s[8:11], s34 offen offset:2048 {SC}
    {PEND}
    """)
    a.e(f"""
P_fill:
    v_mov_b32 v8, -1
    v_mov_b32 v9, -1
    v_mov_b32 v10, -1
    v_mov_b32 v11, -1
    v_lshlrev_b32 v6, 4, v0
    s_lshl_b32 s34, s2, 14
    s_add_u32 s35, s34, {F1[0] - NF0 * 16384}
    s_add_u32 s34, s34, {F0[0]}
    s_cmp_lt_u32 s2, {NF0}
    s_cselect_b32 s34, s34, s35
    s_mov_b32 s35, {F1[1]}
    s_cselect_b32 s10, {F0[1]}, s35
    """)
    for k in range(4):
        a.e(f"buffer_store_dwordx4 v[8:11], v6, s[8:11], s34 offen {SC}\ns_add_u32 s34, s34, 4096")
    a.e(PEND)
    a.e("""
P_done:
    s_endpgm
    """)
```

```python
from common import *
class Asm:
    def __init__(self):
        self.lines = []; self.kernels = []; self.launches = []; self.uid = 0
    def e(self, s):
        for ln in s.strip('\n').split('\n'):
            ln = ln.strip()
            if not ln: continue
            if ln.endswith(':') or ln.startswith('.'): self.lines.append(ln)
            else: self.lines.append('    ' + ln)
    INSTR = False
    SEL = None
    def stamp(self, n):
        if not self.INSTR: return
        if isinstance(n, str):
            if n not in self.SEL: return
            n = self.SEL.index(n)
        self.e(f"s_memrealtime s[{64+2*n}:{65+2*n}]")
    def cstamp(self, n):
        if self.INSTR: self.e(f"s_memtime s[{64+2*(n+10)}:{65+2*(n+10)}]")
    def stamp_out(self, n, wg=0):
        if not self.INSTR: return
        self.e(f'''
        s_memrealtime s[{64+2*15}:{65+2*15}]
        s_lshl_b32 s99, s33, 8
        s_add_u32 s99, s99, s2
        s_lshl_b32 s99, s99, 2
        s_add_u32 s99, s99, s3
        s_lshl_b32 s99, s99, 7
        s_add_u32 s99, s99, {L.DUMMY + (4 << 20)}
        v_mov_b32 v5, 0
        s_waitcnt lgkmcnt(0)
        s_mov_b64 exec, 1
        ''')
        for i in range(18):
            self.e(f"v_mov_b32 v4, s{64+2*i}\nbuffer_store_dword v4, v5, s[8:11], s99 offen offset:{4*i}")
        self.e("s_mov_b64 exec, -1")
    def c(self, s): self.lines.append('    ; ' + s)
    def lab(self, base):
        self.uid += 1; return f"L_{base}_{self.uid}"
    def begin(self, name, grid, vgpr, agpr=0, lds=0, block=256, sgpr=96):
        self.e(f".globl {name}\n.p2align 8\n.type {name},@function\n{name}:")
        self.kernels.append((name, vgpr, agpr, sgpr))
        self.launches.append((name, grid, block, lds))
    def relaunch(self, name, grid, lds=0, block=256):
        self.launches.append((name, grid, block, lds))
    def srd(self, d, lo, nbytes):
        self.e(f"s_mov_b32 s{d}, s{lo}\ns_mov_b32 s{d+1}, s{lo+1}\ns_mov_b32 s{d+2}, {nbytes}\ns_mov_b32 s{d+3}, 0x00020000")
    def text(self, header=''):
        out = [header] if header else []
        for (n, g, b, l) in self.launches:
            out.append(f"; @launch kernel={n} grid=({g},1,1) block=({b},1,1) lds={l}")
        out.append('.amdgcn_target "amdgcn-amd-amdhsa--gfx950"\n.text')
        out += self.lines
        out.append('.section .rodata,"a"')
        for (n, v, a, sg) in self.kernels:
            acc = (v + 3) // 4 * 4
            nfv = acc + a if a else v
            out.append(f""".p2align 6
.amdhsa_kernel {n}
  .amdhsa_next_free_vgpr {nfv}
  .amdhsa_next_free_sgpr {sg}
  .amdhsa_accum_offset {acc}
  .amdhsa_group_segment_fixed_size 0
  .amdhsa_kernarg_size 88
  .amdhsa_user_sgpr_count 2
  .amdhsa_user_sgpr_kernarg_segment_ptr 1
  .amdhsa_system_sgpr_workgroup_id_x 1
.end_amdhsa_kernel""")
        return "\n".join(out) + "\n"
```

```python
from asm import *
import math, struct
QS = (28 ** -0.5) * math.log2(math.e)
def fbits(x): return '0x%08x' % struct.unpack('<I', struct.pack('<f', x))[0]
MF = 'v_mfma_f32_32x32x16_bf16'
def vr(b, n=4): return f"v[{b}:{b+n-1}]"
def ar(b, n=4): return f"a[{b}:{b+n-1}]"
THR = 2.0 ** -80
SPIN = 1 << 16
LWB = 0
LSCR = 84 * 1024
LSM = 148 * 1024
LKV = 152 * 1024
LDS_TOTAL = 153 * 1024
XRES = 240
AWQ, AWO = 0, 112
VQA, VOA = 236, 237
import os
WOA_MODE = os.environ.get('WOA_MODE', 'peel')
WOB_MODE = os.environ.get('WOB_MODE', 'units')

def check(a, regs, t, fail):
    regs = list(regs)
    if len(regs) == 1: src = regs[0]
    else:
        if len(regs) == 2: a.e(f"v_max_u32 v{t}, v{regs[0]}, v{regs[1]}"); rest = []
        else: a.e(f"v_max3_u32 v{t}, v{regs[0]}, v{regs[1]}, v{regs[2]}"); rest = regs[3:]
        while rest:
            if len(rest) == 1: a.e(f"v_max_u32 v{t}, v{t}, v{rest[0]}"); rest = []
            else: a.e(f"v_max3_u32 v{t}, v{t}, v{rest[0]}, v{rest[1]}"); rest = rest[2:]
        src = t
    a.e(f"""
    v_cmp_eq_u32 vcc, -1, v{src}
    s_nop 1
    s_cmp_lg_u64 vcc, 0
    s_cbranch_scc1 {fail}
    """)

SL1 = int(os.environ.get('SL1', '1')); SL2 = int(os.environ.get('SL2', '2'))
def poll(a, loads, regs, t, sleep=SL1, name='poll', extra=None, nextra=0):
    l0, l1, l2 = a.lab(name), a.lab(name + '_r'), a.lab(name + '_ok')
    if extra is None:
        a.e(f"s_mov_b32 s35, 0\n{l0}:")
        loads()
        a.e("s_waitcnt vmcnt(0)")
        check(a, regs, t, l1)
        cold = f"""
{l1}:
        s_add_u32 s35, s35, 1
        s_cmp_ge_u32 s35, {SPIN}
        s_cbranch_scc1 {l2}
        s_sleep {sleep}
        s_branch {l0}
        """
        a.cold.append(cold)
    else:
        a.e("s_mov_b32 s35, 0")
        loads()
        extra()
        a.e(f"s_waitcnt vmcnt({nextra})")
        check(a, regs, t, l1)
        sav = a.lines; a.lines = []
        a.e(f"""
{l1}:
        s_add_u32 s35, s35, 1
        s_cmp_ge_u32 s35, {SPIN}
        s_cbranch_scc1 {l2}
        """)
        loads()
        a.e("s_waitcnt vmcnt(0)")
        l3 = a.lab(name + '_s')
        check(a, regs, t, l3)
        a.e(f"s_branch {l2}\n{l3}:\ns_sleep {sleep}\ns_branch {l1}")
        a.cold.append("\n".join(a.lines)); a.lines = sav
    a.e(f"{l2}:")

STAG = int(os.environ.get('STAG', '6'))
def poll2(a, load, ra, rb, rd, n, t, name='p2'):
    l0, la, lb, lx, lt = a.lab(name), a.lab(name + '_a'), a.lab(name + '_b'), a.lab(name + '_x'), a.lab(name + '_t')
    def chk_ok(r, ok):
        regs = list(range(r, r + n)); src = r
        if n == 4:
            a.e(f"v_max3_u32 v{t}, v{r}, v{r+1}, v{r+2}\nv_max_u32 v{t}, v{t}, v{r+3}"); src = t
        a.e(f"v_cmp_eq_u32 vcc, -1, v{src}\ns_nop 1\ns_cmp_eq_u64 vcc, 0\ns_cbranch_scc1 {ok}")
    a.e("s_mov_b32 s35, 0")
    load(ra)
    a.e(f"s_sleep {STAG}\n{l0}:")
    load(rb)
    a.e("s_waitcnt vmcnt(1)")
    chk_ok(ra, la)
    load(ra)
    a.e("s_waitcnt vmcnt(1)")
    chk_ok(rb, lb)
    a.e(f"s_add_u32 s35, s35, 1\ns_cmp_lt_u32 s35, {SPIN}\ns_cbranch_scc1 {l0}\n{lb}:")
    if rd is not None:
        for i in range(n): a.e(f"v_mov_b32 v{rd+i}, v{rb+i}")
        a.e(f"s_branch {lx}\n{la}:")
        for i in range(n): a.e(f"v_mov_b32 v{rd+i}, v{ra+i}")
        a.e(f"{lx}:")
    else:
        a.e(f"{la}:")

def wo_loads(a, base, k0, n):
    a.e(f"s_lshl_b32 s55, s36, 15\ns_add_u32 s55, s55, {base + k0*1024}")
    frag_loads(a, lambda k: ar(AWO + 4 * (k0 + k)), n, 55)

def validated(a, loads_sc1, regs, t, name='val'):
    l1, l2 = a.lab(name + '_r'), a.lab(name + '_ok')
    check(a, regs, t, l1)
    a.e(f"{l2}:")
    sav = a.lines; a.lines = []
    a.e(f"{l1}:\ns_mov_b32 s35, 0")
    l3 = a.lab(name + '_l')
    a.e(f"{l3}:\ns_add_u32 s35, s35, 1\ns_cmp_ge_u32 s35, {SPIN}\ns_cbranch_scc1 {l2}")
    loads_sc1()
    a.e("s_waitcnt vmcnt(0)")
    check(a, regs, t, l3)
    a.e(f"s_branch {l2}")
    a.cold.append("\n".join(a.lines)); a.lines = sav

def clamp(a, regs):
    for r in regs: a.e(f"v_min_u32 v{r}, s54, v{r}")

def frag_loads(a, dst_fn, n, sreg, flags='', tmp=29):
    cur = sreg
    for k in range(n):
        if k and k % 4 == 0:
            a.e(f"s_add_u32 s{tmp}, s{sreg}, {k*1024}"); cur = tmp
        a.e(f"buffer_load_dwordx4 {dst_fn(k)}, v1, s[8:11], s{cur} offen offset:{(k%4)*1024} {flags}")

def row_max16(a, x):
    for m in ('quad_perm:[1,0,3,2]', 'quad_perm:[2,3,0,1]', 'row_half_mirror', 'row_mirror'):
        a.e(f"s_nop 1\nv_max_f32_dpp v{x}, v{x}, v{x} {m} row_mask:0xf bank_mask:0xf")

def stats_finish(a, st0, mu, rs, t):
    for q in range(1, 7):
        a.e(f"v_add_f32 v{st0}, v{st0}, v{st0+2*q}\nv_add_f32 v{st0+1}, v{st0+1}, v{st0+2*q+1}")
    a.e(f"""
    v_mov_b32 v{t}, v{st0}
    v_mov_b32 v{t+1}, v{st0+1}
    s_nop 1
    v_permlane32_swap_b32 v{st0}, v{t}
    v_permlane32_swap_b32 v{st0+1}, v{t+1}
    s_nop 1
    v_add_f32 v{st0}, v{st0}, v{t}
    v_add_f32 v{st0+1}, v{st0+1}, v{t+1}
    v_mul_f32 v{mu}, {fbits(-1.0/448)}, v{st0}
    v_mul_f32 v{t}, {fbits(1.0/448)}, v{st0+1}
    v_fma_f32 v{t}, -v{mu}, v{mu}, v{t}
    v_max_f32 v{t}, 0, v{t}
    v_add_f32 v{t}, {fbits(1e-5)}, v{t}
    v_rsq_f32 v{rs}, v{t}
    s_nop 0
    """)

def stats_poll(a, st0, off, smt, vaddr, t, extra=None, nextra=0):
    a.e(f"""
    v_mul_u32_u24 v{vaddr}, {7*256}, v3
    v_lshl_add_u32 v{vaddr}, v2, 3, v{vaddr}
    s_lshl_b32 s20, s{smt}, 12
    s_add_u32 s20, s20, s30
    s_add_u32 s20, s20, {off}
    """)
    def ld():
        for q in range(7):
            a.e(f"buffer_load_dwordx2 v[{st0+2*q}:{st0+2*q+1}], v{vaddr}, s[8:11], s20 offen offset:{q*256} sc1")
    poll(a, ld, range(st0, st0 + 14), t, name='st', extra=extra, nextra=nextra)

def c_pieces(a, c, t, d0, d1):
    a.e(f"""
    v_and_b32 v{t}, 0xffff0000, v{c}
    v_sub_f32 v{t+1}, v{c}, v{t}
    v_and_b32 v{t+2}, 0xffff0000, v{t+1}
    v_sub_f32 v{t+1}, v{t+1}, v{t+2}
    v_lshrrev_b32 v{t}, 16, v{t}
    v_or_b32 v{t}, v{t}, v{t+2}
    v_lshrrev_b32 v{t+1}, 16, v{t+1}
    v_xor_b32 v{d0}, 0x80008000, v{t}
    v_xor_b32 v{d1}, 0x00008000, v{t+1}
    """)

def pk_fma_s(a, d, s_, x, c, n=16, neg=False):
    assert s_ % 2 == 0 and d % 2 == 0 and x % 2 == 0 and c % 2 == 0
    for r in range(0, n, 2):
        a.e(f"v_pk_fma_f32 v[{d+r}:{d+r+1}], v[{s_}:{s_+1}], v[{x+r}:{x+r+1}], v[{c+r}:{c+r+1}] op_sel_hi:[0,1,1]")
def pk_mul_s(a, d, s_, x, n=16):
    assert s_ % 2 == 0 and d % 2 == 0 and x % 2 == 0
    for r in range(0, n, 2):
        a.e(f"v_pk_mul_f32 v[{d+r}:{d+r+1}], v[{s_}:{s_+1}], v[{x+r}:{x+r+1}] op_sel_hi:[0,1]")
def pk_mul_hi(a, d, s_, x, n=16):
    assert s_ % 2 == 1
    for r in range(0, n, 2):
        a.e(f"v_pk_mul_f32 v[{d+r}:{d+r+1}], v[{s_-1}:{s_}], v[{x+r}:{x+r+1}] op_sel:[1,0] op_sel_hi:[1,1]")

def entry(a, done):
    if os.environ.get('MAP', 'flat') == 'flat':
        MAPCODE = "s_lshr_b32 s4, s2, 4\ns_and_b32 s5, s2, 15"
    elif os.environ.get('MAP') == 'half':
        MAPCODE = '''s_lshr_b32 s4, s2, 1
    s_and_b32 s4, s4, 3
    s_lshl_b32 s4, s4, 2
    s_lshr_b32 s5, s2, 3
    s_and_b32 s5, s5, 3
    s_add_u32 s4, s4, s5
    s_and_b32 s5, s2, 1
    s_lshl_b32 s5, s5, 3
    s_lshr_b32 s6, s2, 5
    s_add_u32 s5, s5, s6'''
    elif os.environ.get('MAP') == 'quad':
        MAPCODE = '''s_lshr_b32 s4, s2, 2
    s_and_b32 s4, s4, 1
    s_lshl_b32 s4, s4, 3
    s_lshr_b32 s5, s2, 3
    s_and_b32 s5, s5, 7
    s_add_u32 s4, s4, s5
    s_and_b32 s5, s2, 3
    s_lshl_b32 s5, s5, 2
    s_lshr_b32 s6, s2, 6
    s_add_u32 s5, s5, s6'''
    else:
        MAPCODE = '''s_and_b32 s4, s2, 7
    s_lshl_b32 s4, s4, 1
    s_lshr_b32 s5, s2, 7
    s_add_u32 s4, s4, s5
    s_lshr_b32 s5, s2, 3
    s_and_b32 s5, s5, 15'''
    a.e(f"""
    s_cmp_ge_u32 s2, 256
    s_cbranch_scc1 {done}
    """)
    a.stamp('entry')
    if os.environ.get('CPF', '1') == '1':
        a.c("warm the L2 with this kernel's own code (read-only): every wave touches one 1 KB piece")
        a.e(f"""
        s_getpc_b64 s[60:61]
M_pc:
        s_lshr_b32 s20, s2, 3
        s_and_b32 s20, s20, 7
        s_lshl_b32 s20, s20, 12
        s_min_u32 s20, s20, M_done-M_pc-4096
        v_lshlrev_b32 v4, 4, v0
        v_add_u32 v4, s20, v4
        """)
        a.e("global_load_dwordx4 v[8:11], v4, s[60:61]")
    a.e(f"""
    s_load_dwordx2 s[16:17], s[0:1], 80
    s_load_dwordx2 s[18:19], s[0:1], 64
    v_lshrrev_b32 v4, 6, v0
    v_and_b32 v1, 63, v0
    v_and_b32 v2, 31, v0
    v_readfirstlane_b32 s3, v4
    v_bfe_u32 v3, v0, 5, 1
    v_lshlrev_b32 v1, 4, v1
    {MAPCODE}
    s_lshl_b32 s6, s4, 2
    s_and_b32 s31, s5, 3
    s_add_u32 s31, s31, s6
    s_add_u32 s6, s6, s3
    s_lshl_b32 s7, s4, 4
    s_add_u32 s7, s7, s5
    s_and_b32 s32, s5, 12
    s_add_u32 s32, s32, s3
    s_min_u32 s36, s32, 13
    s_mov_b32 s30, {L.ARENA0}
    s_mov_b32 s33, 0
    s_mov_b32 s54, 0xfffffffe
    s_waitcnt lgkmcnt(0)
    """)
    a.srd(8, 16, L.TOTAL)
    a.srd(12, 18, S * 896)
    a.e(f"""
    v_lshrrev_b32 v4, 3, v2
    v_and_b32 v5, 7, v2
    v_lshlrev_b32 v5, 4, v5
    v_lshl_add_u32 v5, v3, 9, v5
    v_lshl_add_u32 v{VQA}, v4, 13, v5
    v_lshl_add_u32 v{VOA}, v4, 11, v5
    """)
    a.c("first QKV_A: inputs come from the previous kernel, no polling; resident WQA fragments; residual tile of x0")
    XF, CS, STT, T = 16, 144, 160, 176
    a.e(f"""
    s_mul_i32 s21, s31, {28*1024}
    s_mul_i32 s22, s3, {7*1024}
    s_add_u32 s21, s21, s22
    s_add_u32 s27, s21, {A(0, L.XIN)}
    s_add_u32 s22, s22, {LSCR}
    """)
    a.e("s_mov_b32 m0, s22\ns_nop 0\nbuffer_load_dwordx4 v1, s[8:11], s27 offen offset:0 lds\nbuffer_load_dwordx4 v1, s[8:11], s27 offen offset:1024 lds\nbuffer_load_dwordx4 v1, s[8:11], s27 offen offset:2048 lds\nbuffer_load_dwordx4 v1, s[8:11], s27 offen offset:3072 lds\ns_add_u32 s29, s27, 4096\ns_add_u32 s25, s22, 4096\ns_mov_b32 m0, s25\ns_nop 0\nbuffer_load_dwordx4 v1, s[8:11], s29 offen offset:0 lds\nbuffer_load_dwordx4 v1, s[8:11], s29 offen offset:1024 lds\nbuffer_load_dwordx4 v1, s[8:11], s29 offen offset:2048 lds")
    a.e(f"""
    v_mul_u32_u24 v{T}, {7*256}, v3
    v_lshl_add_u32 v{T}, v2, 3, v{T}
    s_lshl_b32 s20, s31, 12
    s_add_u32 s20, s20, {A(0, L.STIN)}
    """)
    for q in range(7): a.e(f"buffer_load_dwordx2 v[{STT+2*q}:{STT+2*q+1}], v{T}, s[8:11], s20 offen offset:{q*256}")
    a.e(f"""
    s_mul_i32 s20, s32, {28*1024}
    s_add_u32 s20, s20, {L.WQA}
    """)
    frag_loads(a, lambda k: ar(AWQ + 4 * k), 28, 20)
    a.e(f"""
    s_lshl_b32 s20, s32, 7
    s_add_u32 s20, s20, {L.CSA}
    v_lshlrev_b32 v{T+1}, 4, v3
    """)
    for q in range(4): a.e(f"buffer_load_dwordx4 {vr(CS+4*q)}, v{T+1}, s[8:11], s20 offen offset:{q*32}")
    a.e(f"""
    s_mul_i32 s20, s31, {28*1024}
    s_lshl_b32 s23, s36, 11
    s_add_u32 s20, s20, s23
    s_add_u32 s20, s20, {A(0, L.XIN)}
    buffer_load_dwordx4 {vr(XRES)}, v1, s[8:11], s20 offen
    buffer_load_dwordx4 {vr(XRES+4)}, v1, s[8:11], s20 offen offset:1024
    s_waitcnt vmcnt(34)
    s_branch M_qa_entry
    """)

def qkv_a(a):
    XF, ACC, CS, STT, MU, RS, T, PK, QP = 16, 128, 144, 160, 174, 175, 176, 184, 192
    a.c("==== QKV_A : m-tile s31, column group s32")
    a.e("s_barrier")
    a.e(f"""
    s_lshl_b32 s21, s32, 7
    s_add_u32 s21, s21, {L.CSA}
    v_lshlrev_b32 v{T+1}, 4, v3
    """)
    for q in range(4): a.e(f"buffer_load_dwordx4 {vr(CS+4*q)}, v{T+1}, s[8:11], s21 offen offset:{q*32}")
    if WOA_MODE == 'poll': stats_poll(a, STT, L.STIN, 31, T, T + 2, lambda: wo_loads(a, L.WOA, 0, 16), 16)
    else: stats_poll(a, STT, L.STIN, 31, T, T + 2)
    a.stamp('qa_st')
    a.e(f"""
    s_mul_i32 s21, s31, {28*1024}
    s_mul_i32 s22, s3, {7*1024}
    s_add_u32 s21, s21, s22
    s_add_u32 s21, s21, s30
    s_add_u32 s27, s21, {L.XIN}
    s_add_u32 s22, s22, {LSCR}
    """)
    a.e("s_mov_b32 m0, s22\ns_nop 0\nbuffer_load_dwordx4 v1, s[8:11], s27 offen offset:0 lds\nbuffer_load_dwordx4 v1, s[8:11], s27 offen offset:1024 lds\nbuffer_load_dwordx4 v1, s[8:11], s27 offen offset:2048 lds\nbuffer_load_dwordx4 v1, s[8:11], s27 offen offset:3072 lds\ns_add_u32 s29, s27, 4096\ns_add_u32 s25, s22, 4096\ns_mov_b32 m0, s25\ns_nop 0\nbuffer_load_dwordx4 v1, s[8:11], s29 offen offset:0 lds\nbuffer_load_dwordx4 v1, s[8:11], s29 offen offset:1024 lds\nbuffer_load_dwordx4 v1, s[8:11], s29 offen offset:2048 lds")
    a.e("M_qa_entry:")
    stats_finish(a, STT, MU, RS, T)
    lmm, lredo, lok = a.lab('qa_mm'), a.lab('qa_redo'), a.lab('qa_ok')
    a.e(f"""
    v_add_u32 v{T+5}, s22, v1
    v_add_u32 v{T+3}, {LSCR}, v1
    v_mul_f32 v{T}, {fbits(QS)}, v{RS}
    s_mov_b32 s53, 0
    s_cmp_eq_u32 s33, 0
    s_cbranch_scc1 {lmm}_b
    s_waitcnt vmcnt(0)
{lmm}_b:
    s_barrier
{lmm}:
    v_cmp_eq_u32 vcc, 1, v3
    """)
    a.stamp('qa_pan')
    if a.INSTR: a.e("s_waitcnt lgkmcnt(0)")
    for k in range(28): a.e(f"ds_read_b128 {vr(XF+4*k)}, v{T+3} offset:{k*1024}")
    sav = a.lines; a.lines = []
    a.e(f"{lredo}:\ns_cmp_lg_u32 s53, 0\ns_cbranch_scc1 {lok}\ns_mov_b32 s53, 1\ns_barrier")
    poll(a, lambda: frag_loads(a, lambda k: vr(XF + 4 * k), 7, 27, 'sc1'), range(XF, XF + 28), T + 4, name='xar')
    for k in range(7): a.e(f"ds_write_b128 v{T+5}, {vr(XF+4*k)} offset:{k*1024}")
    a.e(f"s_waitcnt lgkmcnt(0)\ns_barrier\ns_branch {lmm}")
    a.cold.append("\n".join(a.lines)); a.lines = sav
    a.e(f"v_cndmask_b32 v{T+1}, v{T}, v{RS}, vcc")
    for k in range(28):
        a.e(f"s_waitcnt vmcnt({33-k}) lgkmcnt({min(15, 27-k)})")
        a.e(f"{MF} {vr(ACC,16)}, {ar(AWQ+4*k)}, {vr(XF+4*k)}, {'0' if k == 0 else vr(ACC,16)}")
    a.e("s_waitcnt vmcnt(0)")
    U = 200
    a.c("K / V quad first (all-to-all critical path): staged through LDS so that whole fragments are stored by one wave")
    a.e(f"""
    s_and_b32 s21, s3, 1
    s_lshl_b32 s21, s21, 9
    s_lshr_b32 s22, s3, 1
    s_lshl_b32 s22, s22, 3
    s_add_u32 s21, s21, s22
    s_add_u32 s21, s21, {LKV}
    v_lshl_add_u32 v{U}, v2, 4, s21
    v_lshrrev_b32 v{U+1}, 4, v2
    v_lshlrev_b32 v{U+1}, 9, v{U+1}
    v_bfe_u32 v{U+2}, v2, 2, 1
    v_lshl_add_u32 v{U+1}, v{U+2}, 8, v{U+1}
    v_bfe_u32 v{U+2}, v2, 3, 1
    v_lshl_add_u32 v{U+1}, v{U+2}, 3, v{U+1}
    v_and_b32 v{U+2}, 3, v2
    v_lshl_add_u32 v{U+1}, v{U+2}, 1, v{U+1}
    s_lshl_b32 s21, s3, 6
    s_add_u32 s21, s21, {LKV}
    v_add_u32 v{U+1}, s21, v{U+1}
    v_cmp_u_f32 s[24:25], v{ACC}, v{ACC}
    s_nop 1
    s_cmp_lg_u64 s[24:25], 0
    s_cbranch_scc1 {lredo}
{lok}:
    """)
    for r in range(12, 16): a.e(f"v_fmac_f32 v{ACC+r}, v{MU}, v{CS+r}")
    for r in range(12, 16): a.e(f"v_mul_f32 v{ACC+r}, v{ACC+r}, v{T+1}")
    for q in (6, 7): a.e(f"v_cvt_pk_bf16_f32 v{PK+q}, v{ACC+2*q}, v{ACC+2*q+1}")
    lv, lb, lq, lnc = a.lab('qa_v'), a.lab('qa_bar'), a.lab('qa_q'), a.lab('qa_nc')
    a.e(f"""
    v_mov_b32 v{U+4}, v{PK+6}
    v_mov_b32 v{U+5}, v{PK+7}
    s_and_b32 s21, s32, 7
    s_cmp_lg_u32 s21, 7
    s_cbranch_scc1 {lnc}
    s_movk_i32 s23, 0x3f80
    s_cmp_eq_u32 s32, 7
    s_cselect_b32 s21, 0x3f803f80, s23
    s_cselect_b32 s22, s23, 0
    v_mov_b32 v{U+4}, s21
    v_mov_b32 v{U+5}, s22
{lnc}:
    s_mov_b32 exec_lo, 0
    s_cmp_ge_u32 s32, 8
    s_cbranch_scc1 {lv}
    ds_write_b64 v{U}, v[{U+4}:{U+5}]
    s_branch {lb}
{lv}:
    ds_write_b16 v{U+1}, v{U+4}
    ds_write_b16_d16_hi v{U+1}, v{U+4} offset:16
    ds_write_b16 v{U+1}, v{U+5} offset:32
    ds_write_b16_d16_hi v{U+1}, v{U+5} offset:48
{lb}:
    s_mov_b64 exec, -1
    v_add_u32 v{U}, {LKV}, v1
    s_waitcnt lgkmcnt(0)
    s_barrier
    s_cmp_lg_u32 s3, 0
    s_cbranch_scc1 {lq}
    ds_read_b128 {vr(U+4)}, v{U}
    s_lshr_b32 s22, s32, 2
    s_lshl_b32 s24, s31, 7
    s_add_u32 s24, s24, s30
    s_add_u32 s24, s24, {L.KNA}
    s_lshl_b32 s21, s22, 2
    s_add_u32 s24, s24, s21
    s_lshl_b32 s20, s31, 11
    s_add_u32 s20, s20, s30
    s_lshl_b32 s21, s22, 10
    s_add_u32 s23, s20, s21
    s_add_u32 s23, s23, {L.KA}
    s_lshl_b32 s21, s22, 8
    s_add_u32 s20, s20, s21
    s_add_u32 s20, s20, {L.VA - 512}
    s_cmp_lt_u32 s22, 2
    s_cselect_b32 s20, s23, s20
    s_cselect_b64 s[26:27], -1, 0
    v_lshrrev_b32 v{U+1}, 4, v0
    v_lshlrev_b32 v{U+1}, 9, v{U+1}
    v_and_b32 v{U+2}, 15, v0
    v_lshl_add_u32 v{U+1}, v{U+2}, 4, v{U+1}
    v_cndmask_b32 v{U+1}, v{U+1}, v1, s[26:27]
    v_mov_b32 v{U+2}, 0
    v_lshlrev_b32 v{U}, 13, v2
    s_waitcnt lgkmcnt(0)
    """)
    clamp(a, range(U + 4, U + 8))
    a.e(f"buffer_store_dwordx4 {vr(U+4)}, v{U+1}, s[8:11], s20 offen sc1")
    for q in range(4): a.e(f"v_dot2_f32_bf16 v{U+2}, v{U+4+q}, v{U+4+q}, v{U+2}")
    a.e(f"""
    s_nop 2
    v_mov_b32 v{U+3}, v{U+2}
    s_nop 1
    v_permlane32_swap_b32 v{U+2}, v{U+3}
    s_nop 1
    v_add_f32 v{U+2}, v{U+2}, v{U+3}
    """)
    row_max16(a, U + 2)
    a.e(f"""
    s_nop 1
    v_readlane_b32 s22, v{U+2}, 0
    v_readlane_b32 s23, v{U+2}, 16
    s_max_u32 s22, s22, s23
    s_min_u32 s22, s22, 0x7fc00000
    s_and_b32 s22, s22, s26
    v_mov_b32 v{U+1}, s22
    s_mov_b64 exec, 0xffff
    buffer_store_dword v{U+1}, v{U}, s[8:11], s24 offen sc1
    s_mov_b64 exec, -1
{lq}:
    """)
    clamp(a, (PK + 6, PK + 7))
    a.c("Q part")
    pk_fma_s(a, ACC, MU, CS, ACC, 12)
    pk_mul_s(a, ACC, T, ACC, 12)
    for q in range(6): a.e(f"v_cvt_pk_bf16_f32 v{PK+q}, v{ACC+2*q}, v{ACC+2*q+1}")
    clamp(a, range(PK, PK + 6))
    a.e(f"""
    s_lshl_b32 s20, s31, 15
    s_lshr_b32 s21, s32, 2
    s_lshl_b32 s21, s21, 11
    s_add_u32 s20, s20, s21
    s_lshl_b32 s21, s3, 7
    s_add_u32 s20, s20, s21
    s_add_u32 s47, s20, {L.QA}
    s_add_u32 s20, s47, s30
    buffer_store_dwordx4 {vr(PK)}, v{VQA}, s[8:11], s20 offen sc1
    v_cndmask_b32 v{T+2}, v{PK+6}, 0, vcc
    v_cndmask_b32 v{T+3}, v{PK+7}, 0, vcc
    v_mov_b32 v{T}, 0
    v_mov_b32 v{T+1}, 0
    """)
    for q in range(6): a.e(f"v_dot2_f32_bf16 v{T+(q&1)}, v{PK+q}, v{PK+q}, v{T+(q&1)}")
    a.e(f"""
    v_dot2_f32_bf16 v{T}, v{T+2}, v{T+2}, v{T}
    v_dot2_f32_bf16 v{T+1}, v{T+3}, v{T+3}, v{T+1}
    v_mov_b32 v{QP}, v{PK+4}
    v_mov_b32 v{QP+1}, v{PK+5}
    v_mov_b32 v{QP+3}, v{T+3}
    s_nop 0
    v_add_f32 v{T}, v{T}, v{T+1}
    v_mov_b32 v{T+1}, v{T}
    s_nop 1
    v_permlane32_swap_b32 v{T}, v{T+1}
    s_nop 1
    v_add_f32 v{T}, v{T}, v{T+1}
    v_min_u32 v{T}, s54, v{T}
    v_cndmask_b32 v{QP+2}, v{PK+6}, v{T}, vcc
    buffer_store_dwordx4 {vr(QP)}, v{VQA}, s[8:11], s20 offen offset:1024 sc1
    """)
    a.stamp('qa_pub')
    if a.INSTR and os.environ.get('ACK'):
        a.e("s_waitcnt vmcnt(0)")
    a.stamp('qa_ack')

def attn_a(a):
    QF, S0, S1, P, O, KV, T, FS = 16, 48, 64, 80, 88, 152, 216, 232
    NB = 4
    SS = [S0, S1]
    a.c("==== attention A : rows 8*s7.., all heads; waves split the keys; q slot s = tile (wave+s)&3, slot 0 is finalised by this wave")
    a.e(f"""
    s_barrier
    s_lshl_b32 s21, s6, 11
    s_add_u32 s21, s21, s30
    s_add_u32 s21, s21, {L.KNA}
    v_and_b32 v{T+8}, 15, v2
    v_lshlrev_b32 v{T+8}, 7, v{T+8}
    s_lshl_b32 s20, s7, 13
    s_add_u32 s20, s20, s30
    s_add_u32 s20, s20, {L.QA}
    s_lshl_b32 s26, s3, 11
    s_add_u32 s27, s26, 2048
    s_and_b32 s27, s27, 0x1fff
    s_add_u32 s28, s26, 4096
    s_and_b32 s28, s28, 0x1fff
    s_add_u32 s53, s26, 6144
    s_and_b32 s53, s53, 0x1fff
    s_lshr_b32 s57, s27, 2
    s_lshr_b32 s58, s28, 2
    s_lshr_b32 s59, s53, 2
    s_add_u32 s26, s26, s20
    s_add_u32 s27, s27, s20
    s_add_u32 s28, s28, s20
    s_add_u32 s53, s53, s20
    s_lshl_b32 s22, s3, 15
    s_add_u32 s22, s22, s30
    s_add_u32 s23, s22, {L.VA}
    s_add_u32 s22, s22, {L.KA}
    """)
    for r in range(64): a.e(f"v_mov_b32 v{O+r}, 0")
    for r in range(8): a.e(f"v_mov_b32 v{P+r}, 0")
    for r in range(4): a.e(f"v_mov_b32 v{KV+16*(NB-1)+12+r}, 0")
    for r in range(4): a.e(f"v_mov_b32 v{FS+r}, -1")
    if WOA_MODE == 'poll':
        lw = a.lab('aa_w0')
        a.e(f"s_cmp_lg_u32 s33, 0\ns_cbranch_scc1 {lw}")
        wo_loads(a, L.WOA, 0, 16)
        a.e(f"{lw}:")
    else:
        a.e(f"s_lshl_b32 s55, s36, 15\ns_add_u32 s55, s55, {L.WOA}")
    a.c("Q' fragments (validated below)")
    def q_load(fl=''):
        a.e(f"""
        buffer_load_dwordx4 {vr(QF)}, v1, s[8:11], s26 offen {fl}
        buffer_load_dwordx4 {vr(QF+4)}, v1, s[8:11], s26 offen offset:1024 {fl}
        buffer_load_dwordx4 {vr(QF+8)}, v1, s[8:11], s27 offen {fl}
        buffer_load_dwordx4 {vr(QF+12)}, v1, s[8:11], s27 offen offset:1024 {fl}
        buffer_load_dwordx4 {vr(QF+16)}, v1, s[8:11], s28 offen {fl}
        buffer_load_dwordx4 {vr(QF+20)}, v1, s[8:11], s28 offen offset:1024 {fl}
        buffer_load_dwordx4 {vr(QF+24)}, v1, s[8:11], s53 offen {fl}
        buffer_load_dwordx4 {vr(QF+28)}, v1, s[8:11], s53 offen offset:1024 {fl}
        """)
    q_load()
    a.c("sentinel fills (issued inside the loop) of the payload regions this workgroup itself writes later: own arena, x / Q' of the next")
    VF = FS + 6
    a.e(f"""
    s_lshl_b32 s41, s5, 17
    s_lshl_b32 s42, s6, 11
    s_add_u32 s41, s41, s42
    s_add_u32 s41, s41, s30
    s_add_u32 s42, s41, {L.VB}
    s_add_u32 s41, s41, {L.KB}
    s_lshl_b32 s43, s6, 15
    s_lshl_b32 s44, s5, 11
    s_add_u32 s43, s43, s44
    s_add_u32 s43, s43, s30
    s_add_u32 s43, s43, {L.OB}
    s_mul_i32 s44, s31, {28*1024}
    s_lshl_b32 s45, s36, 11
    s_add_u32 s44, s44, s45
    s_add_u32 s44, s44, s30
    s_add_u32 s52, s44, {L.ARENA + L.XIN}
    s_add_u32 s44, s44, {L.XM}
    s_lshr_b32 s45, s7, 2
    s_lshl_b32 s45, s45, 15
    s_and_b32 s46, s7, 3
    s_lshl_b32 s46, s46, 7
    s_add_u32 s45, s45, s46
    s_add_u32 s45, s45, s30
    s_add_u32 s45, s45, {L.OA}
    s_lshl_b32 s46, s3, 13
    s_add_u32 s45, s45, s46
    s_mov_b32 s56, s45
    s_add_u32 s46, s47, s30
    s_add_u32 s46, s46, {L.ARENA}
    v_mov_b32 v{VF}, v{VOA}
    v_mov_b32 v{VF+1}, v{VQA}
    s_mov_b32 s37, s22
    s_mov_b32 s38, s23
    s_lshl_b32 s20, s3, 9
    s_add_u32 s20, s20, {LSM+1024}
    v_lshl_add_u32 v{T+9}, v2, 2, s20
    v_lshlrev_b32 v{T+10}, 2, v2
    v_add_u32 v{T+10}, {LSM+1024}, v{T+10}
    v_add_u32 v{T+11}, s58, v{T+10}
    v_add_u32 v{T+12}, s59, v{T+10}
    v_add_u32 v{T+10}, s57, v{T+10}
    """)
    def kn_extra():
        wo_loads(a, L.WOA, 16, 16)
    if os.environ.get('P2', '0') == '1': poll2(a, lambda r: a.e(f"buffer_load_dwordx4 {vr(r)}, v{T+8}, s[8:11], s21 offen sc1"), S0, S0 + 4, T, 4, T + 4, name='kn')
    else: poll(a, lambda: a.e(f"buffer_load_dwordx4 {vr(T)}, v{T+8}, s[8:11], s21 offen sc1"), range(T, T + 4), T + 4, sleep=SL2, name='kn', extra=(kn_extra if WOA_MODE == 'poll' else None), nextra=16)
    a.stamp('aa_kn')
    def kv_load(b, fl='', adv=True, sk=22, sv=23):
        a.e(f"""
        buffer_load_dwordx4 {vr(KV+16*b)}, v1, s[8:11], s{sk} offen {fl}
        buffer_load_dwordx4 {vr(KV+16*b+4)}, v1, s[8:11], s{sk} offen offset:1024 {fl}
        buffer_load_dwordx4 {vr(KV+16*b+8)}, v1, s[8:11], s{sv} offen {fl}
        buffer_load_dwordx4 {vr(KV+16*b+12)}, v1, s[8:11], s{sv} offen offset:1024 {fl}
        """)
        if adv: a.e(f"s_add_u32 s{sk}, s{sk}, 2048\ns_add_u32 s{sv}, s{sv}, 2048")
    for b in range(3): kv_load(b)
    a.c("per-wave stand-in shift c = 1.02*|q'|*Kmax(own keys): Cauchy-Schwarz upper bound of the row max over this wave's keys")
    a.e(f"""
    v_add_f32 v{T}, v{T}, v{T+1}
    v_add_f32 v{T+2}, v{T+2}, v{T+3}
    v_add_f32 v{T}, v{T}, v{T+2}
    """)
    row_max16(a, T)
    a.e(f"""
    s_nop 1
    v_readfirstlane_b32 s24, v{T}
    """)
    validated(a, lambda: q_load('sc1'), range(QF, QF + 32), T, 'qa')
    a.e("s_mov_b32 exec_lo, 0")
    for t in range(4):
        q2 = QF + 8 * t + 6
        a.e(f"""
        v_mul_f32 v{T}, s24, v{q2}
        v_sqrt_f32 v{T}, v{T}
        s_nop 0
        v_mul_f32 v{T}, {fbits(1.02)}, v{T}
        ds_write_b32 v{T+9+t}, v{T} offset:{t*128}
        """)
        c_pieces(a, T, T + 1, q2, q2 + 1)
    a.e("s_mov_b64 exec, -1")
    a.e("s_waitcnt vmcnt(0)")
    def kv_reload():
        a.e("s_mov_b32 s39, s37\ns_mov_b32 s40, s38")
        for b in range(3): kv_load(b, 'sc1', True, 39, 40)
    validated(a, kv_reload, range(KV, KV + 48), T, 'kv')
    a.e(f"""
    {MF} {vr(S0,16)}, {vr(KV)}, {vr(QF)}, 0
    {MF} {vr(S0,16)}, {vr(KV+4)}, {vr(QF+4)}, {vr(S0,16)}
    s_mov_b32 s29, 0
    s_add_u32 s22, s22, 4096
    s_add_u32 s23, s23, 4096
    s_add_u32 s60, s16, s22
    s_addc_u32 s61, s17, 0
    s_add_u32 s62, s16, s23
    s_addc_u32 s63, s17, 0
    s_add_u32 s55, s55, 4096
    s_add_u32 s48, s16, s55
    s_addc_u32 s49, s17, 0
    s_nop 2
    """)
    a.stamp('aa_go')
    a.cstamp(6)
    slots = {0: ('s41', 'v1', 0), 1: ('s41', 'v1', 1024), 2: ('s45', f'v{VF}', 0), 3: ('s45', f'v{VF}', 1024)}
    lp = a.lab('aa_loop')
    def body(peel):
        u = 0
        for b in range(NB):
            for t in range(4):
                sb = SS[u & 1]; sn = SS[(u + 1) & 1]
                kb = KV + 16 * (b if t < 3 else (b + 1) % NB)
                qn = QF + 8 * ((t + 1) % 4)
                vp = KV + 16 * (b if t > 0 else (b - 1) % NB) + 12
                vc = KV + 16 * b + 8
                op = O + 16 * ((t - 1) % 4); oc = O + 16 * t
                def ex(i0):
                    for i in range(i0, i0 + 4): a.e(f"v_exp_f32 v{sb+i}, v{sb+i}")
                def cv(j0):
                    for jx in (j0, j0 + 1): a.e(f"v_cvt_pk_bf16_f32 v{P+jx}, v{sb+2*jx}, v{sb+2*jx+1}")
                def woa(k):
                    if not peel: return
                    if k and k % 8 == 0: a.e("s_add_u32 s48, s48, 8192\ns_addc_u32 s49, s49, 0")
                    a.e(f"global_load_dwordx4 {ar(AWO+4*k)}, v1, s[48:49] offset:{-4096+(k%8)*1024}")
                ex(0)
                if t == 3 and not (peel and b < 2):
                    n = 11 + ((8 - 1) + 8 + 6 if peel else 0)
                    a.e(f"s_waitcnt vmcnt({n})")
                a.e(f"{MF} {vr(sn,16)}, {vr(kb)}, {vr(qn)}, 0")
                cv(0); woa(2 * u); ex(4)
                a.e(f"{MF} {vr(sn,16)}, {vr(kb+4)}, {vr(qn+4)}, {vr(sn,16)}")
                cv(2); ex(8)
                a.e(f"{MF} {vr(op,16)}, {vr(vp)}, {vr(P+4)}, {vr(op,16)}")
                cv(4)
                if t == 0:
                    bb = (b - 1) % NB
                    a.e(f"""
                    global_load_dwordx4 {vr(KV+16*bb)}, v1, s[60:61] offset:{-4096+b*2048}
                    global_load_dwordx4 {vr(KV+16*bb+4)}, v1, s[60:61] offset:{-3072+b*2048}
                    global_load_dwordx4 {vr(KV+16*bb+8)}, v1, s[62:63] offset:{-4096+b*2048}
                    global_load_dwordx4 {vr(KV+16*bb+12)}, v1, s[62:63] offset:{-3072+b*2048}
                    """)
                elif t == 2:
                    sr, vo, of = slots[b]
                    a.e(f"buffer_store_dwordx4 {vr(FS)}, {vo}, s[8:11], {sr} offen offset:{of} sc1")
                ex(12)
                a.e(f"{MF} {vr(oc,16)}, {vr(vc)}, {vr(P)}, {vr(oc,16)}")
                cv(6); woa(2 * u + 1)
                u += 1
        a.e(f"""
        s_mov_b32 s41, s42
        s_mov_b32 s42, s43
        s_mov_b32 s43, s44
        s_mov_b32 s45, s46
        s_mov_b32 s46, s52
        v_mov_b32 v{VF}, v{VF+1}
        v_mov_b32 v{VF+1}, v1
        s_add_u32 s60, s60, 8192
        s_addc_u32 s61, s61, 0
        s_add_u32 s62, s62, 8192
        s_addc_u32 s63, s63, 0
        s_add_u32 s29, s29, 1
        """)
    if WOA_MODE == 'peel':
        a.c("first four key tiles: also prefetch the WOA fragments (consumed after attention)")
        body(True)
    a.e(f".p2align 6\n{lp}:")
    body(False)
    a.e(f"""
    s_cmp_lt_u32 s29, 4
    s_cbranch_scc1 {lp}
    s_mul_i32 s57, s57, 24
    s_mul_i32 s58, s58, 24
    {MF} {vr(O+48,16)}, {vr(KV+16*(NB-1)+12)}, {vr(P+4)}, {vr(O+48,16)}
    s_mul_i32 s59, s59, 24
    v_add_u32 v{T+3}, {LSCR}, v1
    v_add_u32 v{T}, s57, v{T+3}
    v_add_u32 v{T+1}, s58, v{T+3}
    v_add_u32 v{T+2}, s59, v{T+3}
    s_mul_i32 s20, s3, 12288
    v_add_u32 v{T+3}, s20, v{T+3}
    s_lshl_b32 s21, s7, 7
    s_lshl_b32 s22, s3, 2
    s_add_u32 s21, s21, s22
    s_add_u32 s21, s21, s30
    s_add_u32 s21, s21, {L.HOA}
    s_mov_b32 s20, {fbits(THR)}
    """)
    a.stamp('aa_end')
    a.cstamp(7)
    a.c("send the three foreign q tiles to their owners through LDS; rescale all partials to a common shift")
    for t in range(1, 4):
        for q in range(4): a.e(f"ds_write_b128 v{T+t-1}, {vr(O+16*t+4*q)} offset:{(t-1)*4096+q*1024}")
    a.e("s_waitcnt vmcnt(0) lgkmcnt(0)\ns_barrier")
    a.stamp('aa_bar')
    if a.INSTR: a.e("s_waitcnt lgkmcnt(0)")
    R = KV
    F = S0
    for w in range(4): a.e(f"ds_read_b32 v{F+w}, v{T+9} offset:{w*128}")
    for w in range(3):
        for q in range(4): a.e(f"ds_read_b128 {vr(R+16*w+4*q)}, v{T+3} offset:{w*4096+q*1024}")
    a.e(f"""
    v_mov_b32 v{T+5}, 0
    s_waitcnt lgkmcnt(12)
    v_max3_f32 v{T+6}, v{F}, v{F+1}, v{F+2}
    v_max_f32 v{T+6}, v{T+6}, v{F+3}
    """)
    for w in range(4): a.e(f"v_sub_f32 v{F+w}, v{F+w}, v{T+6}")
    for w in range(4): a.e(f"v_exp_f32 v{F+w}, v{F+w}")
    for r in range(16): a.e(f"v_mul_f32 v{O+r}, v{F}, v{O+r}")
    for w in range(3):
        a.e(f"s_waitcnt lgkmcnt({8-4*w})")
        for r in range(16): a.e(f"v_fmac_f32 v{O+r}, v{F+1+w}, v{R+16*w+r}")
    lnorm, lslow = a.lab('aa_norm'), a.lab('aa_slow')
    a.e(f"""
    v_mov_b32 v{T+2}, v{O+12}
    v_mov_b32 v{T+3}, v{O+12}
    v_pk_add_f32 v[{T+6}:{T+7}], v[{O}:{O+1}], v[{O+2}:{O+3}]
    v_pk_add_f32 v[{T+10}:{T+11}], v[{O+4}:{O+5}], v[{O+6}:{O+7}]
    v_permlane32_swap_b32 v{T+2}, v{T+3}
    v_pk_add_f32 v[{T+6}:{T+7}], v[{T+6}:{T+7}], v[{O+8}:{O+9}]
    v_pk_add_f32 v[{T+10}:{T+11}], v[{T+10}:{T+11}], v[{O+10}:{O+11}]
    v_pk_add_f32 v[{T+6}:{T+7}], v[{T+6}:{T+7}], v[{O+12}:{O+13}]
    v_pk_add_f32 v[{T+10}:{T+11}], v[{T+10}:{T+11}], v[{O+14}:{O+15}]
    v_pk_add_f32 v[{T+6}:{T+7}], v[{T+6}:{T+7}], v[{T+10}:{T+11}]
    v_cmp_gt_f32 vcc, s20, v{T+3}
    v_cmp_u_f32 s[24:25], v{T+6}, v{T+7}
    v_rcp_f32 v{T+2}, v{T+3}
    s_or_b64 vcc, vcc, s[24:25]
    s_cmp_lg_u64 vcc, 0
    s_cbranch_scc1 {lslow}
{lnorm}:
    """)
    for r in range(16): a.e(f"v_mul_f32 v{O+r}, v{T+2}, v{O+r}")
    for q in range(8): a.e(f"v_cvt_pk_bf16_f32 v{P+q}, v{O+2*q}, v{O+2*q+1}")
    clamp(a, range(P, P + 8))
    a.e(f"""
    buffer_store_dwordx4 {vr(P)}, v{VOA}, s[8:11], s56 offen sc1
    buffer_store_dwordx4 {vr(P+4)}, v{VOA}, s[8:11], s56 offen offset:1024 sc1
    s_mov_b64 exec, 1
    buffer_store_dword v{T+5}, v{T+5}, s[8:11], s21 offen sc1
    s_mov_b64 exec, -1
    """)
    a.stamp('aa_pub')
    sav = a.lines; a.lines = []
    l1, l2, l1r, l2r = a.lab('aa_s1'), a.lab('aa_s2'), a.lab('aa_s1r'), a.lab('aa_s2r')
    a.e(f"{lslow}:")
    a.c("exact fallback: this wave redoes its 32 queries over all keys with the true row max (validated coherent loads)")
    a.e(f"""
    buffer_load_dwordx4 {vr(QF)}, v1, s[8:11], s26 offen sc1
    buffer_load_dwordx4 {vr(QF+4)}, v1, s[8:11], s26 offen offset:1024 sc1
    v_cmp_eq_u32 vcc, 1, v3
    v_mov_b32 v{T}, 0xff800000
    s_add_u32 s22, s30, {L.KA}
    s_mov_b32 s29, 0
    s_mov_b32 s35, 0
    s_waitcnt vmcnt(0)
    v_cndmask_b32 v{QF+6}, v{QF+6}, 0, vcc
    v_cndmask_b32 v{QF+7}, v{QF+7}, 0, vcc
{l1}:
    buffer_load_dwordx4 {vr(KV)}, v1, s[8:11], s22 offen sc1
    buffer_load_dwordx4 {vr(KV+4)}, v1, s[8:11], s22 offen offset:1024 sc1
    s_waitcnt vmcnt(0)
    s_add_u32 s35, s35, 1
    s_cmp_ge_u32 s35, {SPIN}
    s_cbranch_scc1 {l1r}
    """)
    check(a, range(KV, KV + 8), T + 1, l1)
    a.e(f"""
{l1r}:
    s_add_u32 s22, s22, 2048
    {MF} {vr(S0,16)}, {vr(KV)}, {vr(QF)}, 0
    {MF} {vr(S0,16)}, {vr(KV+4)}, {vr(QF+4)}, {vr(S0,16)}
    s_nop 15
    """)
    for r in range(0, 16, 2): a.e(f"v_max3_f32 v{T}, v{T}, v{S0+r}, v{S0+r+1}")
    a.e(f"""
    s_add_u32 s29, s29, 1
    s_cmp_lt_u32 s29, 64
    s_cbranch_scc1 {l1}
    v_mov_b32 v{T+1}, v{T}
    s_nop 1
    v_permlane32_swap_b32 v{T}, v{T+1}
    s_nop 1
    v_max_f32 v{T}, v{T}, v{T+1}
    s_mov_b32 exec_lo, 0
    """)
    c_pieces(a, T, T + 1, QF + 6, QF + 7)
    a.e(f"""
    s_mov_b64 exec, -1
    s_add_u32 s22, s30, {L.KA}
    s_add_u32 s23, s30, {L.VA}
    s_mov_b32 s29, 0
    """)
    for r in range(16): a.e(f"v_mov_b32 v{O+r}, 0")
    a.e(f"{l2}:")
    kv_load(0, 'sc1', False)
    a.e(f"""
    s_waitcnt vmcnt(0)
    s_add_u32 s35, s35, 1
    s_cmp_ge_u32 s35, {SPIN}
    s_cbranch_scc1 {l2r}
    """)
    check(a, range(KV, KV + 16), T + 1, l2)
    a.e(f"""
{l2r}:
    s_add_u32 s22, s22, 2048
    s_add_u32 s23, s23, 2048
    {MF} {vr(S0,16)}, {vr(KV)}, {vr(QF)}, 0
    {MF} {vr(S0,16)}, {vr(KV+4)}, {vr(QF+4)}, {vr(S0,16)}
    s_nop 15
    """)
    for r in range(16): a.e(f"v_exp_f32 v{S0+r}, v{S0+r}")
    a.e("s_nop 0")
    for q in range(8): a.e(f"v_cvt_pk_bf16_f32 v{P+q}, v{S0+2*q}, v{S0+2*q+1}")
    a.e(f"""
    s_nop 1
    {MF} {vr(O,16)}, {vr(KV+8)}, {vr(P)}, {vr(O,16)}
    {MF} {vr(O,16)}, {vr(KV+12)}, {vr(P+4)}, {vr(O,16)}
    s_add_u32 s29, s29, 1
    s_cmp_lt_u32 s29, 64
    s_cbranch_scc1 {l2}
    s_nop 15
    v_mov_b32 v{T+2}, v{O+12}
    v_mov_b32 v{T+3}, v{O+12}
    s_nop 1
    v_permlane32_swap_b32 v{T+2}, v{T+3}
    s_nop 1
    v_rcp_f32 v{T+2}, v{T+3}
    s_nop 0
    s_branch {lnorm}
    """)
    a.cold.append("\n".join(a.lines)); a.lines = sav

def out_proj(a, which, sbase):
    OF, ACC, PK, T = 16, 144, XRES, 176
    isA = which == 'A'
    a.c(f"==== out projection {which} : m-tile s31, column group s32")
    a.e("s_barrier")
    if isA:
        a.e(f"""
        s_lshl_b32 s21, s31, 9
        s_add_u32 s21, s21, s30
        s_add_u32 s21, s21, {L.HOA}
        v_lshrrev_b32 v{T+1}, 2, v2
        v_and_b32 v{T+1}, 3, v{T+1}
        v_lshlrev_b32 v{T+1}, 7, v{T+1}
        v_and_b32 v{T+2}, 3, v2
        v_lshl_add_u32 v{T+1}, v{T+2}, 2, v{T+1}
        """)
    else:
        a.e(f"""
        s_lshl_b32 s21, s31, 11
        s_add_u32 s21, s21, s30
        s_add_u32 s21, s21, {L.HOB}
        v_and_b32 v{T+1}, 15, v2
        v_lshlrev_b32 v{T+1}, 7, v{T+1}
        """)
    a.e(f"""
    s_lshl_b32 s20, s31, 15
    s_lshl_b32 s22, s3, 13
    s_add_u32 s20, s20, s22
    s_add_u32 s20, s20, s30
    s_add_u32 s20, s20, {L.OA if isA else L.OB}
    s_mov_b32 s27, s20
    s_add_u32 s22, s22, {LSCR}
    v_add_u32 v{T}, s22, v1
    v_add_u32 v{T+3}, {LSCR}, v1
    """)
    if isA:
        a.c("first pass only: QKV_B weights of this head into LDS (resident afterwards)")
        lnw = a.lab('aa_nowb')
        a.e(f"""
        s_cmp_lg_u32 s33, 0
        s_cbranch_scc1 {lnw}
        s_mul_i32 s44, s5, {84*1024}
        s_mul_i32 s45, s3, {21*1024}
        s_add_u32 s44, s44, s45
        s_add_u32 s44, s44, {L.WB}
        """)
        for k in range(21):
            if k % 4 == 0:
                if k: a.e("s_add_u32 s44, s44, 4096\ns_add_u32 s45, s45, 4096")
                a.e("s_mov_b32 m0, s45\ns_nop 0")
            a.e(f"buffer_load_dwordx4 v1, s[8:11], s44 offen offset:{(k%4)*1024} lds")
        a.e(f"{lnw}:")

    if os.environ.get('P2', '0') == '1': poll2(a, lambda r: a.e(f"buffer_load_dword v{r}, v{T+1}, s[8:11], s21 offen sc1"), T + 2, T + 5, None, 1, T + 4, name='ho')
    else: poll(a, lambda: a.e(f"buffer_load_dword v{T+2}, v{T+1}, s[8:11], s21 offen sc1"), [T + 2], T + 4, name='ho')
    a.stamp(sbase + '_hint')
    a.e("s_mov_b32 m0, s22\ns_nop 0\nbuffer_load_dwordx4 v1, s[8:11], s20 offen offset:0 lds\nbuffer_load_dwordx4 v1, s[8:11], s20 offen offset:1024 lds\nbuffer_load_dwordx4 v1, s[8:11], s20 offen offset:2048 lds\nbuffer_load_dwordx4 v1, s[8:11], s20 offen offset:3072 lds\ns_add_u32 s29, s20, 4096\ns_add_u32 s25, s22, 4096\ns_mov_b32 m0, s25\ns_nop 0\nbuffer_load_dwordx4 v1, s[8:11], s29 offen offset:0 lds\nbuffer_load_dwordx4 v1, s[8:11], s29 offen offset:1024 lds\nbuffer_load_dwordx4 v1, s[8:11], s29 offen offset:2048 lds\nbuffer_load_dwordx4 v1, s[8:11], s29 offen offset:3072 lds")
    XU = 160
    for q in range(8): a.e(f"v_lshlrev_b32 v{XU+2*q}, 16, v{XRES+q}\nv_and_b32 v{XU+2*q+1}, 0xffff0000, v{XRES+q}")
    lskip, lmm, lredo, lok = a.lab('op_skip'), a.lab('op_mm'), a.lab('op_redo'), a.lab('op_ok')
    a.e(f"""
    s_mov_b32 s53, 0
    s_waitcnt vmcnt(0)
    s_barrier
{lmm}:
    """)
    a.stamp(sbase + '_pan')
    if a.INSTR: a.e("s_waitcnt lgkmcnt(0)")
    for k in range(32): a.e(f"ds_read_b128 {vr(OF+4*k)}, v{T+3} offset:{k*1024}")
    for k in range(32):
        a.e(f"s_waitcnt lgkmcnt({min(15, 31-k)})")
        a.e(f"{MF} {vr(ACC,16)}, {ar(AWO+4*k)}, {vr(OF+4*k)}, {vr(XU,16) if k == 0 else vr(ACC,16)}")
    sav = a.lines; a.lines = []
    a.c("a word that had not arrived (sentinel = NaN pair) poisons its row in every wave alike: reload coherently, validate, redo once")
    a.e(f"{lredo}:\ns_cmp_lg_u32 s53, 0\ns_cbranch_scc1 {lok}\ns_mov_b32 s53, 1\ns_barrier")
    poll(a, lambda: frag_loads(a, lambda k: vr(OF + 4 * k), 8, 27, 'sc1'), range(OF, OF + 32), T + 4, name='ofr')
    for k in range(8): a.e(f"ds_write_b128 v{T}, {vr(OF+4*k)} offset:{k*1024}")
    a.e(f"s_waitcnt lgkmcnt(0)\ns_barrier\ns_branch {lmm}")
    a.cold.append("\n".join(a.lines)); a.lines = sav
    a.stamp(sbase + '_mm')
    nxt = 0 if isA else L.ARENA
    xo, so = (L.XM, L.STM) if isA else (L.XIN, L.STIN)
    a.e(f"""
    s_mul_i32 s20, s31, {28*1024}
    s_lshl_b32 s21, s32, 11
    s_add_u32 s20, s20, s21
    s_add_u32 s20, s20, s30
    s_add_u32 s20, s20, {nxt + xo}
    s_lshl_b32 s21, s31, 12
    s_lshl_b32 s22, s32, 8
    s_add_u32 s21, s21, s22
    s_add_u32 s21, s21, s30
    s_add_u32 s21, s21, {nxt + so}
    s_mov_b32 s22, 0x3f803f80
    v_lshlrev_b32 v{T+6}, 3, v2
    s_nop 1
    v_cmp_u_f32 vcc, v{ACC}, v{ACC}
    s_nop 1
    s_cmp_lg_u64 vcc, 0
    s_cbranch_scc1 {lredo}
{lok}:
    s_cmp_ge_u32 s32, 14
    s_cbranch_scc1 {lskip}
    v_mov_b32 v{T}, 0
    v_mov_b32 v{T+1}, 0
    """)
    for q in range(8): a.e(f"v_cvt_pk_bf16_f32 v{PK+q}, v{ACC+2*q}, v{ACC+2*q+1}")
    lfin = a.lab('op_fin')
    if not isA:
        a.e(f"s_cmp_lg_u32 s33, 0\ns_cbranch_scc1 {lfin}")
    clamp(a, range(PK, PK + 8))
    a.e(f"""
    buffer_store_dwordx4 {vr(PK)}, v1, s[8:11], s20 offen sc1
    buffer_store_dwordx4 {vr(PK+4)}, v1, s[8:11], s20 offen offset:1024 sc1
    """)
    for q in range(8):
        a.e(f"v_dot2_f32_bf16 v{T}, v{PK+q}, s22, v{T}\nv_dot2_f32_bf16 v{T+1}, v{PK+q}, v{PK+q}, v{T+1}")
    a.e(f"""
    s_nop 3
    v_mov_b32 v{T+2}, v{T}
    v_mov_b32 v{T+3}, v{T+1}
    s_nop 1
    v_permlane32_swap_b32 v{T}, v{T+2}
    v_permlane32_swap_b32 v{T+1}, v{T+3}
    s_nop 1
    v_add_f32 v{T}, v{T}, v{T+2}
    v_add_f32 v{T+1}, v{T+1}, v{T+3}
    v_min_u32 v{T}, s54, v{T}
    v_min_u32 v{T+1}, s54, v{T+1}
    s_mov_b32 exec_hi, 0
    buffer_store_dwordx2 v[{T}:{T+1}], v{T+6}, s[8:11], s21 offen sc1
    s_mov_b64 exec, -1
    """)
    if not isA:
        sav = a.lines; a.lines = []
        a.e(f"""
{lfin}:
        s_lshl_b32 s21, s31, 5
        v_add_u32 v{T}, s21, v2
        v_mul_u32_u24 v{T}, 896, v{T}
        v_lshl_add_u32 v{T}, v3, 3, v{T}
        s_lshl_b32 s21, s32, 6
        """)
        for q in range(4): a.e(f"buffer_store_dwordx2 v[{PK+2*q}:{PK+2*q+1}], v{T}, s[12:15], s21 offen offset:{16*q}")
        a.e(f"s_branch {lskip}")
        a.cold.append("\n".join(a.lines)); a.lines = sav
    a.e(f"{lskip}:")
    a.stamp(sbase + '_pub')

QB = 224
def qkv_b(a):
    XF, AQ, AK, AV, WR, CQ, CK, STT, MU, RS, T = 16, 128, 144, 160, 176, 192, 208, 4, 232, 233, 248
    NWR = 4
    STT = 176 - 0
    a.c("==== QKV_B : head s5, m-tile s6")
    a.e("s_barrier")
    a.e(f"""
    s_mul_i32 s21, s5, 384
    s_add_u32 s21, s21, {L.CSB}
    v_lshlrev_b32 v{T+1}, 4, v3
    v_lshlrev_b32 v{T+2}, 2, v2
    """)
    for q in range(4): a.e(f"buffer_load_dwordx4 {vr(CQ+4*q)}, v{T+1}, s[8:11], s21 offen offset:{q*32}")
    for q in range(4): a.e(f"buffer_load_dwordx4 {vr(CK+4*q)}, v{T+1}, s[8:11], s21 offen offset:{128+q*32}")
    a.e(f"buffer_load_dword v{T+3}, v{T+2}, s[8:11], s21 offen offset:256")
    ST2 = 128
    if WOB_MODE == 'poll': stats_poll(a, ST2, L.STM, 6, T, T + 1, lambda: wo_loads(a, L.WOB, 0, 16), 16)
    else: stats_poll(a, ST2, L.STM, 6, T, T + 1)
    a.stamp('qb_st')
    a.e(f"""
    s_mul_i32 s21, s6, {28*1024}
    s_add_u32 s21, s21, s30
    s_add_u32 s21, s21, {L.XM}
    s_mov_b32 s35, 0
    """)
    frag_loads(a, lambda k: vr(XF + 4 * k), 28, 21)
    stats_finish(a, ST2, MU, RS, T + 5)
    a.e(f"""
    v_mul_f32 v{T+5}, v{MU}, v{RS}
    s_lshl_b32 s20, s3, 8
    s_add_u32 s20, s20, {LSM}
    v_lshl_add_u32 v{T+6}, v2, 2, s20
    v_lshl_add_u32 v{T+7}, v3, 4, s20
    ds_write_b32 v{T+6}, v{RS}
    ds_write_b32 v{T+6}, v{T+5} offset:128
    v_add_u32 v{T+4}, {56*1024}, v1
    """)
    lmm, lredo, lok = a.lab('qb_mm'), a.lab('qb_redo'), a.lab('qb_ok')
    a.e(f"{lmm}:")
    def chain(seq, first):
        def rd(idx):
            k, p = seq[idx]; o = (p * 28 + k) * 1024
            if o >= 56 * 1024: a.e(f"ds_read_b128 {vr(WR+4*(idx%NWR))}, v{T+4} offset:{o-56*1024}")
            else: a.e(f"ds_read_b128 {vr(WR+4*(idx%NWR))}, v1 offset:{o}")
        for idx in range(NWR - 1): rd(idx)
        for idx, (k, p) in enumerate(seq):
            if idx + NWR - 1 < len(seq): rd(idx + NWR - 1)
            rem = min(NWR - 1, len(seq) - 1 - idx)
            if first and p == 1: a.e(f"s_waitcnt vmcnt({27-k}) lgkmcnt({rem})")
            else: a.e(f"s_waitcnt lgkmcnt({rem})")
            acc = [AQ, AK, AV][p]; w = vr(WR + 4 * (idx % NWR)); x = vr(XF + 4 * k)
            cc = '0' if k == 0 else vr(acc, 16)
            if p < 2: a.e(f"{MF} {vr(acc,16)}, {w}, {x}, {cc}")
            else: a.e(f"{MF} {vr(acc,16)}, {x}, {w}, {cc}")
    a.c("K and V chains first (published to the neighbours); WOB fragments are prefetched in between")
    chain([(k, p) for k in range(28) for p in (1, 2)], True)
    a.stamp('qb_mm')
    if a.INSTR: a.e("s_waitcnt lgkmcnt(0)")
    a.e('s_nop 3')
    RSr, MRr, PKK, PV = AQ, WR, AK, AV
    for q in range(4):
        a.e(f"ds_read_b128 {vr(RSr+4*q)}, v{T+7} offset:{q*32}\nds_read_b128 {vr(MRr+4*q)}, v{T+7} offset:{128+q*32}")
    a.c("a not-yet-arrived x word (sentinel = bf16 NaN pair) poisons the row: any NaN -> re-load coherently, validate, redo")
    a.e(f"""
    v_cmp_u_f32 vcc, v{AK}, v{AK}
    v_mul_f32 v{T+5}, {fbits(QS)}, v{RS}
    v_cmp_eq_u32 s[24:25], 28, v2
    s_cmp_lg_u64 vcc, 0
    s_cbranch_scc1 {lredo}
{lok}:
    """)
    sav = a.lines; a.lines = []
    lr2 = a.lab('qb_r2')
    a.e(f"""
{lredo}:
    s_cmp_lg_u32 s35, 0
    s_cbranch_scc1 {lok}
    s_waitcnt lgkmcnt(0)
{lr2}:
    s_add_u32 s35, s35, 1
    s_cmp_ge_u32 s35, {SPIN}
    s_cbranch_scc1 {lmm}
    """)
    frag_loads(a, lambda k: vr(XF + 4 * k), 28, 21, 'sc1')
    a.e("s_waitcnt vmcnt(0)")
    check(a, range(XF, XF + 112), T, lr2)
    a.e(f"s_branch {lmm}")
    a.cold.append("\n".join(a.lines)); a.lines = sav
    pk_fma_s(a, AK, MU, CK, AK)
    pk_mul_hi(a, AK, RS, AK)
    for q in range(8): a.e(f"v_cvt_pk_bf16_f32 v{PKK+q}, v{AK+2*q}, v{AK+2*q+1}")
    a.e(f"""
    v_cmp_eq_u32 vcc, 1, v3
    v_mov_b32 v{T+1}, 0
    v_mov_b32 v{T}, 0x3f803f80
    v_mov_b32 v{T+6}, 0x00003f80
    """)
    for q in range(8): a.e(f"v_dot2_f32_bf16 v{T+1}, v{PKK+q}, v{PKK+q}, v{T+1}")
    a.e(f"""
    s_lshl_b32 s20, s5, 17
    s_lshl_b32 s21, s6, 11
    s_add_u32 s20, s20, s21
    s_add_u32 s20, s20, s30
    s_add_u32 s21, s20, {L.KB}
    s_add_u32 s22, s20, {L.VB}
    s_lshl_b32 s20, s3, 12
    s_add_u32 s20, s20, {LSCR + 8*4096}
    v_cndmask_b32 v{PKK+6}, v{PKK+6}, v{T}, vcc
    v_cndmask_b32 v{PKK+7}, v{PKK+7}, v{T+6}, vcc
    v_add_u32 v{T+6}, s20, v1
    v_mov_b32 v{T+2}, v{T+1}
    """)
    clamp(a, range(PKK, PKK + 8))
    a.e(f"""
    buffer_store_dwordx4 {vr(PKK)}, v1, s[8:11], s21 offen sc1
    buffer_store_dwordx4 {vr(PKK+4)}, v1, s[8:11], s21 offen offset:1024 sc1
    v_permlane32_swap_b32 v{T+1}, v{T+2}
    s_waitcnt lgkmcnt(0)
    """)
    for r in range(0, 16, 2): a.e(f"v_pk_mul_f32 v[{AV+r}:{AV+r+1}], v[{AV+r}:{AV+r+1}], v[{RSr+r}:{RSr+r+1}]")
    a.e(f"v_add_f32 v{T+1}, v{T+1}, v{T+2}")
    for r in range(0, 16, 2): a.e(f"v_pk_fma_f32 v[{AV+r}:{AV+r+1}], v[{T+2}:{T+3}], v[{MRr+r}:{MRr+r+1}], v[{AV+r}:{AV+r+1}] op_sel:[1,0,0] op_sel_hi:[1,1,1]")
    a.e(f"v_max_f32_dpp v{T+1}, v{T+1}, v{T+1} quad_perm:[1,0,3,2] row_mask:0xf bank_mask:0xf")
    for q in range(8): a.e(f"v_cvt_pk_bf16_f32 v{PV+q}, v{AV+2*q}, v{AV+2*q+1}")
    a.e(f"v_max_f32_dpp v{T+1}, v{T+1}, v{T+1} quad_perm:[2,3,0,1] row_mask:0xf bank_mask:0xf")
    for q in range(8): a.e(f"v_cndmask_b32 v{PV+q}, v{PV+q}, v{T}, s[24:25]")
    a.e(f"v_max_f32_dpp v{T+1}, v{T+1}, v{T+1} row_half_mirror row_mask:0xf bank_mask:0xf")
    clamp(a, range(PV, PV + 8))
    a.e(f"""
    v_max_f32_dpp v{T+1}, v{T+1}, v{T+1} row_mirror row_mask:0xf bank_mask:0xf
    buffer_store_dwordx4 {vr(PV)}, v1, s[8:11], s22 offen sc1
    buffer_store_dwordx4 {vr(PV+4)}, v1, s[8:11], s22 offen offset:1024 sc1
    s_lshl_b32 s20, s5, 4
    s_add_u32 s20, s20, s4
    s_lshl_b32 s20, s20, 7
    s_lshl_b32 s21, s3, 2
    s_add_u32 s20, s20, s21
    s_add_u32 s20, s20, s30
    s_add_u32 s20, s20, {L.KNB}
    v_readlane_b32 s24, v{T+1}, 0
    v_readlane_b32 s25, v{T+1}, 16
    s_add_u32 s21, s21, {LSM + 3072}
    v_mov_b32 v{T+2}, 0
    v_mov_b32 v{T+3}, s21
    s_max_u32 s24, s24, s25
    s_min_u32 s24, s24, 0x7fc00000
    v_mov_b32 v{T}, s24
    s_mov_b64 exec, 1
    buffer_store_dword v{T}, v{T+2}, s[8:11], s20 offen sc1
    ds_write_b32 v{T+3}, v{T}
    s_mov_b64 exec, -1
    ds_write_b128 v{T+6}, {vr(PKK)}
    ds_write_b128 v{T+6}, {vr(PKK+4)} offset:1024
    ds_write_b128 v{T+6}, {vr(PV)} offset:2048
    ds_write_b128 v{T+6}, {vr(PV+4)} offset:3072
    """)
    a.stamp('qb_pub')
    if a.INSTR: a.e("s_waitcnt lgkmcnt(0)")
    a.c("Q chain while the K/V hand-off is in flight; half way, probe the neighbours and start their K/V tiles towards LDS")
    chain([(k, 0) for k in range(14)], False)
    attn_b_fetch(a)
    chain([(k, 0) for k in range(14, 28)], False)
    a.e(f"v_mov_b32 v{T}, 0\ns_nop 7\ns_nop 2")
    pk_fma_s(a, AQ, MU, CQ, AQ)
    pk_mul_hi(a, AQ, T + 5, AQ)
    for q in range(8): a.e(f"v_cvt_pk_bf16_f32 v{QB+q}, v{AQ+2*q}, v{AQ+2*q+1}")
    for q in range(8): a.e(f"v_dot2_f32_bf16 v{T}, v{QB+q}, v{QB+q}, v{T}")
    a.e(f"""
    s_nop 3
    v_mov_b32 v{RS}, v{T}
    s_nop 1
    v_permlane32_swap_b32 v{T}, v{RS}
    s_nop 1
    v_add_f32 v{MU}, v{T}, v{RS}
    """)

def attn_b_fetch(a):
    T = 4
    a.e(f"""
    s_lshl_b32 s20, s5, 4
    s_add_u32 s20, s20, s4
    s_lshl_b32 s20, s20, 7
    s_add_u32 s20, s20, s30
    s_add_u32 s21, s20, {L.KNB - 256}
    v_lshrrev_b32 v{T}, 2, v2
    v_and_b32 v{T}, 1, v{T}
    v_and_b32 v{T+1}, 3, v2
    v_lshlrev_b32 v{T+2}, 7, v{T}
    v_lshl_add_u32 v{T+2}, v{T+1}, 2, v{T+2}
    v_add_u32 v{T+3}, s4, v{T}
    v_cmp_gt_u32 s[26:27], 2, v{T+3}
    v_mov_b32 v{T+4}, 256
    v_lshl_add_u32 v{T+4}, v{T+1}, 2, v{T+4}
    v_cndmask_b32 v{T+2}, v{T+2}, v{T+4}, s[26:27]
    s_lshl_b32 s24, s4, 2
    s_lshl_b32 s23, s3, 1
    s_add_u32 s24, s24, s23
    s_lshl_b32 s22, s24, 11
    s_lshl_b32 s23, s5, 17
    s_add_u32 s22, s22, s23
    s_add_u32 s22, s22, s30
    s_add_u32 s23, s22, {L.VB - 8*2048}
    s_add_u32 s22, s22, {L.KB - 8*2048}
    s_lshl_b32 s20, s3, 13
    s_add_u32 s20, s20, {LSCR}
    s_add_u32 s25, s20, 2048
    s_add_u32 s26, s20, 4096
    """)
    a.stamp('ab_pre')
    poll(a, lambda: a.e(f"buffer_load_dword v{T+8}, v{T+2}, s[8:11], s21 offen sc1"), [T + 8], T + 9, name='kb')
    a.stamp('ab_kn')
    if a.INSTR: a.e("s_waitcnt lgkmcnt(0)")
    lnn = a.lab('ab_nn')
    a.c("this wave fetches slots 2w,2w+1 (nothing if they lie before the first row)")
    a.e(f"""
    s_cmp_lt_u32 s24, 8
    s_cbranch_scc1 {lnn}
    s_mov_b32 m0, s20
    s_nop 0
    buffer_load_dwordx4 v1, s[8:11], s22 offen lds
    buffer_load_dwordx4 v1, s[8:11], s22 offen offset:1024 lds
    s_mov_b32 m0, s25
    s_nop 0
    buffer_load_dwordx4 v1, s[8:11], s22 offen offset:2048 lds
    buffer_load_dwordx4 v1, s[8:11], s22 offen offset:3072 lds
    buffer_load_dwordx4 v1, s[8:11], s23 offen lds
    buffer_load_dwordx4 v1, s[8:11], s23 offen offset:1024 lds
    s_mov_b32 m0, s26
    s_nop 0
    buffer_load_dwordx4 v1, s[8:11], s23 offen offset:2048 lds
    buffer_load_dwordx4 v1, s[8:11], s23 offen offset:3072 lds
{lnn}:
    """)

def attn_b(a):
    QF, QN = QB, 232
    S0, S1, P, O, MHI, MLO, NL, KV, T = 24, 40, 56, 64, 80, 96, 112, 144, 4
    NR = 3
    SS = [S0, S1]
    a.c("==== attention B : head s5, query tile s6; LDS tile slot i = global tile 4g-8+i")
    a.c("mask tiles used as MFMA C operand")
    a.e(f"v_lshlrev_b32 v{T+5}, 2, v3\nv_sub_u32 v{T+5}, v2, v{T+5}\nv_cvt_f32_i32 v{T+5}, v{T+5}\nv_add_f32 v{T+5}, 0.5, v{T+5}\nv_mul_f32 v{T+5}, {fbits(2e30)}, v{T+5}")
    for r in range(16):
        ar_ = (r & 3) + 8 * (r >> 2)
        a.e(f"v_subrev_f32 v{MLO+r}, {fbits(2e30 * ar_)}, v{T+5}")
    for r in range(16):
        a.e(f"v_min_f32 v{MHI+r}, 0, v{MLO+r}\nv_min_f32_e64 v{MLO+r}, 0, -v{MLO+r}")
    a.e(f"""
    s_min_u32 s28, s6, 8
    v_mov_b32 v{T+9}, {LSM + 3072}
    s_lshl_b32 s20, s3, 12
    s_add_u32 s20, s20, {LSCR + 8*4096}
    v_add_u32 v{T+7}, s20, v1
    s_waitcnt vmcnt(0) lgkmcnt(0)
    s_barrier
    ds_read_b128 {vr(NL)}, v{T+9}
    """)
    a.e(f"v_subrev_u32 v{T+7}, {8*4096}, v{T+7}")
    def rdt(k):
        for q in range(4): a.e(f"ds_read_b128 {vr(KV+16*(k%NR)+4*q)}, v{T+7} offset:{(8-k)*4096+q*1024}")
    a.c("Kmax over the two neighbour blocks and the own block (superset of the window)")
    row_max16(a, T + 8)
    a.e(f"""
    s_waitcnt lgkmcnt(0)
    v_max3_f32 v{T+8}, v{T+8}, v{NL}, v{NL+1}
    v_max3_f32 v{T+8}, v{T+8}, v{NL+2}, v{NL+3}
    s_nop 0
    v_readfirstlane_b32 s24, v{T+8}
    s_mov_b32 exec_lo, 0
    s_nop 1
    v_mul_f32 v{T}, s24, v{QN}
    v_sqrt_f32 v{T}, v{T}
    s_nop 0
    v_mul_f32 v{T}, {fbits(1.02)}, v{T}
    """)
    c_pieces(a, T, T + 1, QF + 6, QF + 7)
    a.e("s_mov_b64 exec, -1\ns_mov_b32 s29, 0")
    a.stamp('ab_go')
    if a.INSTR: a.e("s_waitcnt lgkmcnt(0)")
    lmain, lfin, lslow, lnorm = a.lab('ab_main'), a.lab('ab_fin'), a.lab('ab_slow'), a.lab('ab_norm')
    a.e(f"{lmain}:\ns_lshl_b32 s44, s36, 15\ns_add_u32 s44, s44, {L.WOB}\ns_add_u32 s50, s16, s44\ns_addc_u32 s51, s17, 0")
    def wob(g, i):
        if g >= 8 or WOB_MODE != 'units': return
        if i == 0: a.e(f"s_add_u32 s48, s50, {g*4096}\ns_addc_u32 s49, s51, 0")
        a.e(f"global_load_dwordx4 {ar(AWO+16*g+4*i)}, v1, s[48:49] offset:{i*1024}")
    rdt(0); rdt(1)
    for r in range(16): a.e(f"v_mov_b32 v{O+r}, 0")
    def cmask(k): return vr(MHI, 16) if k == 0 else (vr(MLO, 16) if k == 8 else '0')
    def kvb(k): return KV + 16 * (k % NR)
    a.e(f"""
    s_waitcnt lgkmcnt(4)
    {MF} {vr(S0,16)}, {vr(kvb(0))}, {vr(QF)}, {cmask(0)}
    {MF} {vr(S0,16)}, {vr(kvb(0)+4)}, {vr(QF+4)}, {vr(S0,16)}
    s_nop 7
    s_nop 3
    """)
    stubs = []
    for k in range(9):
        sb = SS[k & 1]; sn = SS[(k + 1) & 1]
        def ex(i0):
            for i in range(i0, i0 + 4): a.e(f"v_exp_f32 v{sb+i}, v{sb+i}")
        def cv(j0):
            for jx in (j0, j0 + 1): a.e(f"v_cvt_pk_bf16_f32 v{P+jx}, v{sb+2*jx}, v{sb+2*jx+1}")
        ex(0)
        if k < 8:
            a.e("s_waitcnt lgkmcnt(0)")
            a.e(f"{MF} {vr(sn,16)}, {vr(kvb(k+1))}, {vr(QF)}, {cmask(k+1)}")
        cv(0); wob(k, 0); ex(4)
        if k < 8: a.e(f"{MF} {vr(sn,16)}, {vr(kvb(k+1)+4)}, {vr(QF+4)}, {vr(sn,16)}")
        cv(2); wob(k, 1); ex(8)
        if k > 0: a.e(f"{MF} {vr(O,16)}, {vr(kvb(k-1)+12)}, {vr(P+4)}, {vr(O,16)}")
        cv(4)
        if k + 2 <= 8: rdt(k + 2)
        wob(k, 2)
        ex(12)
        a.e(f"{MF} {vr(O,16)}, {vr(kvb(k)+8)}, {vr(P)}, {vr(O,16)}")
        wob(k, 3)
        cv(6)
        if k < 8:
            st = a.lab('ab_x'); stubs.append((st, k))
            a.e(f"s_cmp_eq_u32 s28, {k}\ns_cbranch_scc1 {st}")
        else:
            a.e(f"s_nop 1\n{MF} {vr(O,16)}, {vr(kvb(k)+12)}, {vr(P+4)}, {vr(O,16)}")
    a.e(f"{lfin}:")
    a.stamp('ab_end')
    a.e(f"""
    s_lshl_b32 s20, s6, 15
    s_lshl_b32 s21, s5, 11
    s_add_u32 s20, s20, s21
    s_add_u32 s20, s20, s30
    s_add_u32 s20, s20, {L.OB}
    s_lshl_b32 s21, s6, 11
    s_lshl_b32 s22, s5, 7
    s_add_u32 s21, s21, s22
    s_add_u32 s21, s21, s30
    s_add_u32 s21, s21, {L.HOB}
    s_mov_b32 s22, {fbits(THR)}
    v_mov_b32 v{T+4}, 0
    s_waitcnt lgkmcnt(0)
    v_mov_b32 v{T+2}, v{O+12}
    v_mov_b32 v{T+3}, v{O+12}
    v_pk_add_f32 v[{S0}:{S0+1}], v[{O}:{O+1}], v[{O+2}:{O+3}]
    v_pk_add_f32 v[{S0+2}:{S0+3}], v[{O+4}:{O+5}], v[{O+6}:{O+7}]
    v_permlane32_swap_b32 v{T+2}, v{T+3}
    v_pk_add_f32 v[{S0}:{S0+1}], v[{S0}:{S0+1}], v[{O+8}:{O+9}]
    v_pk_add_f32 v[{S0+2}:{S0+3}], v[{S0+2}:{S0+3}], v[{O+10}:{O+11}]
    v_pk_add_f32 v[{S0}:{S0+1}], v[{S0}:{S0+1}], v[{O+12}:{O+13}]
    v_pk_add_f32 v[{S0+2}:{S0+3}], v[{S0+2}:{S0+3}], v[{O+14}:{O+15}]
    v_pk_add_f32 v[{S0}:{S0+1}], v[{S0}:{S0+1}], v[{S0+2}:{S0+3}]
    v_cmp_gt_f32 vcc, s22, v{T+3}
    v_cmp_u_f32 s[24:25], v{S0}, v{S0+1}
    v_rcp_f32 v{T+3}, v{T+3}
    s_or_b64 s[26:27], vcc, s[24:25]
    s_cmp_lg_u64 s[26:27], 0
    s_cbranch_scc1 {lslow}
{lnorm}:
    """)
    pk_mul_hi(a, O, T + 3, O)
    for q in range(8): a.e(f"v_cvt_pk_bf16_f32 v{P+q}, v{O+2*q}, v{O+2*q+1}")
    clamp(a, range(P, P + 8))
    a.e(f"""
    buffer_store_dwordx4 {vr(P)}, v1, s[8:11], s20 offen sc1
    buffer_store_dwordx4 {vr(P+4)}, v1, s[8:11], s20 offen offset:1024 sc1
    s_mov_b64 exec, 1
    buffer_store_dword v{T+4}, v{T+4}, s[8:11], s21 offen sc1
    s_mov_b64 exec, -1
    """)
    a.stamp('ab_pub')
    sav = a.lines; a.lines = []
    cu = [a.lab('ab_cu') for _ in range(9)]
    for st, k in stubs:
        a.e(f"{st}:\n{MF} {vr(O,16)}, {vr(kvb(k)+12)}, {vr(P+4)}, {vr(O,16)}\ns_branch {cu[k+1]}")
    for g in range(1, 9):
        a.e(f"{cu[g]}:")
        for i in range(4): wob(g, i)
    a.e(f"s_branch {lfin}")
    lsm, lmx = a.lab('ab_sm'), a.lab('ab_mx')
    a.e(f"""
{lslow}:
    s_cmp_eq_u64 s[24:25], 0
    s_cbranch_scc1 {lmx}
    s_bitcmp1_b32 s29, 1
    s_cbranch_scc1 {lmx}
    s_or_b32 s29, s29, 2
    """)
    a.c("NaN: a neighbour word may not have arrived (sentinel): refetch the neighbour tiles coherently, validated, then rerun")
    a.e(f"""
    s_lshl_b32 s24, s4, 2
    s_lshl_b32 s22, s24, 11
    s_lshl_b32 s23, s5, 17
    s_add_u32 s22, s22, s23
    s_add_u32 s22, s22, s30
    s_add_u32 s23, s22, {L.VB - 8*2048}
    s_add_u32 s22, s22, {L.KB - 8*2048}
    v_add_u32 v{T+10}, {LSCR}, v1
    """)
    for sl in range(8):
        lsk = a.lab('ab_rs')
        a.e(f"s_cmp_lt_u32 s24, {8 - sl}\ns_cbranch_scc1 {lsk}")
        def rl():
            a.e(f"""
            buffer_load_dwordx4 {vr(NL)}, v1, s[8:11], s22 offen sc1
            buffer_load_dwordx4 {vr(NL+4)}, v1, s[8:11], s22 offen offset:1024 sc1
            buffer_load_dwordx4 {vr(NL+8)}, v1, s[8:11], s23 offen sc1
            buffer_load_dwordx4 {vr(NL+12)}, v1, s[8:11], s23 offen offset:1024 sc1
            """)
        poll(a, rl, range(NL, NL + 16), T + 9, name='nbr')
        for q in range(4): a.e(f"ds_write_b128 v{T+10}, {vr(NL+4*q)} offset:{sl*4096+q*1024}")
        a.e(f"s_waitcnt lgkmcnt(0)\n{lsk}:\ns_add_u32 s22, s22, 2048\ns_add_u32 s23, s23, 2048")
    a.e(f"""
    s_branch {lmain}
{lmx}:
    s_cmp_eq_u64 vcc, 0
    s_cbranch_scc1 {lnorm}
    s_bitcmp1_b32 s29, 0
    s_cbranch_scc1 {lnorm}
    """)
    a.c("exact fallback: true (masked) row max, then rerun")
    a.e(f"""
    v_cmp_eq_u32 vcc, 1, v3
    v_mov_b32 v{T}, 0xff800000
    s_or_b32 s29, s29, 1
    v_cndmask_b32 v{QF+6}, v{QF+6}, 0, vcc
    v_cndmask_b32 v{QF+7}, v{QF+7}, 0, vcc
    """)
    for k in range(9):
        a.e(f"""
        ds_read_b128 {vr(KV)}, v{T+7} offset:{(8-k)*4096}
        ds_read_b128 {vr(KV+4)}, v{T+7} offset:{(8-k)*4096+1024}
        s_waitcnt lgkmcnt(0)
        {MF} {vr(S0,16)}, {vr(KV)}, {vr(QF)}, {cmask(k)}
        {MF} {vr(S0,16)}, {vr(KV+4)}, {vr(QF+4)}, {vr(S0,16)}
        s_nop 15
        """)
        for r in range(0, 16, 2): a.e(f"v_max3_f32 v{T}, v{T}, v{S0+r}, v{S0+r+1}")
        if k < 8: a.e(f"s_cmp_eq_u32 s28, {k}\ns_cbranch_scc1 {lsm}")
    a.e(f"""
{lsm}:
    v_mov_b32 v{T+1}, v{T}
    s_nop 1
    v_permlane32_swap_b32 v{T}, v{T+1}
    s_nop 1
    v_max_f32 v{T}, v{T}, v{T+1}
    s_mov_b32 exec_lo, 0
    """)
    c_pieces(a, T, T + 1, QF + 6, QF + 7)
    a.e(f"s_mov_b64 exec, -1\ns_branch {lmain}")
    a.cold.append("\n".join(a.lines)); a.lines = sav
```
